```python
import torch

def _softmax(x, axis=-1):
    return torch.softmax(x, dim=axis)
def _gelu(x):
    return torch.nn.functional.gelu(x, approximate="tanh")
def _silu(x):
    return torch.nn.functional.silu(x)
def _sigmoid(x):
    return torch.sigmoid(x)
def _layernorm(x, axis=-1, eps=1e-5):
    m = x.mean(dim=axis, keepdim=True)
    v = x.var(dim=axis, keepdim=True, unbiased=False)
    return (x - m) / torch.sqrt(v + eps)
def _scatter_add(tgt, idx, src, axis=0):
    return tgt.clone().index_add_(axis, idx, src)
def _segment_sum(src, seg, n):
    out = torch.zeros((n,) + src.shape[1:], dtype=src.dtype)
    return out.index_add_(0, seg, src)
def _pad(x, pw):
    flat = tuple(v for pair in reversed(pw) for v in pair)
    return torch.nn.functional.pad(x, flat)

kernel_name = 'interleave_layers__sliding_block_cached__sliding_block_cached__decode'

def setup_inputs():

    _w = (lambda a: (lambda t: t.to(torch.bfloat16) if t.is_floating_point() else t)(torch.as_tensor(a)))
    def _A_setup():
        B, Sq, D = 8, 1, 448
        Hq, Hkv, Sk, Dh = 16, 8, 4096, 256
        assert Hq % Hkv == 0, (Hq, Hkv)
        return {
            "x": _w((lambda *s: torch.randn(*s, dtype=torch.bfloat16) * 0.1)(B, Sq, D)),
            "k_cache": _w((lambda *s: torch.randn(*s, dtype=torch.bfloat16) * 0.8)(B, Hkv, Sk, Dh)),
            "v_cache": _w((lambda *s: torch.randn(*s, dtype=torch.bfloat16) * 3.2)(B, Hkv, Sk, Dh)),
            "wq": _w((lambda *s: torch.randn(*s, dtype=torch.bfloat16) * 0.8)(D, Hq * Dh) * (D ** -0.5)),
            "wo": _w((lambda *s: torch.randn(*s, dtype=torch.bfloat16) * 3.2)(Hq * Dh, D) * ((Hq * Dh) ** -0.5)),
        }
    _A_in = _A_setup()

    def _B_setup():
        B, Sq, D = 8, 1, 448
        Hq, Hkv, Sk, Dh = 16, 8, 4096, 256
        assert Hq % Hkv == 0, (Hq, Hkv)
        return {
            "x": _w((lambda *s: torch.randn(*s, dtype=torch.bfloat16) * 0.1)(B, Sq, D)),
            "k_cache": _w((lambda *s: torch.randn(*s, dtype=torch.bfloat16) * 0.8)(B, Hkv, Sk, Dh)),
            "v_cache": _w((lambda *s: torch.randn(*s, dtype=torch.bfloat16) * 1.6)(B, Hkv, Sk, Dh)),
            "wq": _w((lambda *s: torch.randn(*s, dtype=torch.bfloat16) * 0.8)(D, Hq * Dh) * (D ** -0.5)),
            "wo": _w((lambda *s: torch.randn(*s, dtype=torch.bfloat16) * 1.6)(Hq * Dh, D) * ((Hq * Dh) ** -0.5)),
        }
    _B_in = _B_setup()

    return {
        "A_x": _A_in["x"],
        "A_k_cache": _A_in["k_cache"],
        "A_v_cache": _A_in["v_cache"],
        "A_wq": _A_in["wq"],
        "A_wo": _A_in["wo"],
        "B_x": _B_in["x"],
        "B_k_cache": _B_in["k_cache"],
        "B_v_cache": _B_in["v_cache"],
        "B_wq": _B_in["wq"],
        "B_wo": _B_in["wo"],
    }

def reference(A_x, A_k_cache, A_v_cache, A_wq, A_wo, B_x, B_k_cache, B_v_cache, B_wq, B_wo):
    def _A_ref(x, k_cache, v_cache, wq, wo):
        B, Sq, D = x.shape
        Hq, Dh = 16, 256
        Hkv, Sk = k_cache.shape[1], k_cache.shape[2]
        W = min(4096, max(256, Sk // 4))
        rep = Hq // Hkv
        q = (lambda x, *d: x.permute(*d))((x @ wq).reshape(B, Sq, Hq, Dh), 0, 2, 1, 3)
        k = (lambda x, n, axis: torch.repeat_interleave(x, n, dim=axis))(k_cache[:, :, Sk - W:, :], rep, axis=1)
        v = (lambda x, n, axis: torch.repeat_interleave(x, n, dim=axis))(v_cache[:, :, Sk - W:, :], rep, axis=1)
        scores = torch.einsum("bhqd,bhkd->bhqk", q, k) * (Dh ** -0.5)
        p = _softmax(scores, axis=-1)
        o = torch.einsum("bhqk,bhkd->bhqd", p, v)
        return (lambda x, *d: x.permute(*d))(o, 0, 2, 1, 3).reshape(B, Sq, Hq * Dh) @ wo

    def _B_ref(x, k_cache, v_cache, wq, wo):
        B, Sq, D = x.shape
        Hq, Dh = 16, 256
        Hkv, Sk = k_cache.shape[1], k_cache.shape[2]
        W = min(4096, max(256, Sk // 4))
        rep = Hq // Hkv
        q = (lambda x, *d: x.permute(*d))((x @ wq).reshape(B, Sq, Hq, Dh), 0, 2, 1, 3)
        k = (lambda x, n, axis: torch.repeat_interleave(x, n, dim=axis))(k_cache[:, :, Sk - W:, :], rep, axis=1)
        v = (lambda x, n, axis: torch.repeat_interleave(x, n, dim=axis))(v_cache[:, :, Sk - W:, :], rep, axis=1)
        scores = torch.einsum("bhqd,bhkd->bhqk", q, k) * (Dh ** -0.5)
        p = _softmax(scores, axis=-1)
        o = torch.einsum("bhqk,bhkd->bhqd", p, v)
        return (lambda x, *d: x.permute(*d))(o, 0, 2, 1, 3).reshape(B, Sq, Hq * Dh) @ wo

    x = A_x
    x = x + _A_ref(_layernorm(x, axis=-1), A_k_cache, A_v_cache, A_wq, A_wo)
    x = x + _B_ref(_layernorm(x, axis=-1), B_k_cache, B_v_cache, B_wq, B_wo)
    x = x + _A_ref(_layernorm(x, axis=-1), A_k_cache, A_v_cache, A_wq, A_wo)
    x = x + _B_ref(_layernorm(x, axis=-1), B_k_cache, B_v_cache, B_wq, B_wo)
    return x
```

```python
KN = "interleave_layers__sliding_block_cached__sliding_block_cached__decode"
REF = open("cdna_kernels/" + KN + ".s.ref").read().split("\n")
def header(launch_lines):
    out = []
    for l in REF:
        if l.startswith("; @launch"):
            break
        out.append(l)
    out += launch_lines
    out += ['.amdgcn_target "amdgcn-amd-amdhsa--gfx950"', ".text"]
    return out
def kernel_begin(name):
    return [f".globl {name}", ".p2align 8", f".type {name},@function", f"{name}:"]
def kernel_desc(name, vgpr=512, sgpr=102, accum=256):
    return ['.section .rodata,"a"', ".p2align 6", f".amdhsa_kernel {name}",
            f"  .amdhsa_next_free_vgpr {vgpr}", f"  .amdhsa_next_free_sgpr {sgpr}", f"  .amdhsa_accum_offset {accum}",
            "  .amdhsa_group_segment_fixed_size 0", "  .amdhsa_kernarg_size 104", "  .amdhsa_user_sgpr_count 2",
            "  .amdhsa_user_sgpr_kernarg_segment_ptr 1", "  .amdhsa_system_sgpr_workgroup_id_x 1",
            "  .amdhsa_float_denorm_mode_32 3",
            ".end_amdhsa_kernel", ".text"]
```

```python
import sys
from gen_common import *

WQA_LDS = 131072
WQB_LDS = WQA_LDS + 14336
SCR = WQB_LDS + 14336
LDS_TOTAL = 163840
BASE = 0x100000
GSTRIDE = 53376
QOFF, XCOFF, OOFF, STOFF, XOFF = 0, 8192, 8320, 41088, 43136
X3OFF = 8 * GSTRIDE
LSTRIDE = X3OFF + 229376
WS_SIZE = BASE + 4 * LSTRIDE
STAMP_OFF = 0x1000000

sW, sG, sJ, sB, sS = 3, 4, 5, 6, 7
pAX, pKA, pVA, pWQA, pWOA, pKB, pVB, pWQB, pWOB, pOUT, pDBG, pWS = 8, 10, 12, 14, 16, 20, 22, 24, 26, 28, 30, 32
rKA, rVA, rKB, rVB, rWS, rTMP = 36, 40, 44, 48, 52, 56
sRET = 60
sRing, sScrW = 62, 63
sM = 64
sT0, sT1 = 72, 73
sTO, sMode, sLOC, sX3, sL, sC = 74, 75, 76, 77, 78, 79
mPair, m1, m2, m3, mP, mOdd, mX, mQ = 80, 82, 84, 86, 88, 90, 92, 94
sA0, sA1, sA2, sA3 = 96, 97, 98, 99
sSB, sSI = 100, 101
sJQ = 18
sQM = 19
sRET2 = 0
sOW, sOR, sSR, sXW = 10, 11, 12, 13
sPH, sAge, sKBok = 36, 37, 38
WO_I, WO_C, H3_I, H3_C, QP_I, QP_C, AT_I, AT_C, DONE = range(9)

vL, vKb, vVb0, vVb1, vKr0, vVr0, vScr, vQr, vPw, vPr, vOw, vQw, vX3w, vXw, vXn, vWr, vXres, vSink, vSr, vST = range(20)
T = 20
CS = 28
S = 32
D = 48
QP = 64
WOA, WOB = 96, 112
VAT = 128

CSCALE = 0x3DB8AA3B
ONES = 0x3F803F80


def srd(r): return f"s[{r}:{r+3}]"
def sp(r): return f"s[{r}:{r+1}]"
def vr(r, n=4): return f"v[{r}:{r+n-1}]"
def ar(r, n=4): return f"a[{r}:{r+n-1}]"
DPP = "row_mask:0xf bank_mask:0xf"
MFMA = "v_mfma_f32_16x16x32_bf16"


class Op:
    def __init__(self, pos, counted): self.pos, self.counted, self.done = pos, counted, False


class Gen:
    def __init__(self, T_=7, wpol="nt", stamps=False, force_slow=False, P1=20, gaps=(4, 8, 4, 4), warm=True,
                 codepf=True, TO=300000, burst=0, noreset=False, rstpol='sc1', Thi=12, Tlo=6, K0=8, dbgx=0, posst=False, WQ1=4, P2=50, pfpol='nt', P0=20, WQ2=9, hold=3, exp=''):
        self.exp = exp
        self.hold = hold
        self.A = (Thi - Tlo + 1) // 2
        self.WQ2 = WQ2
        self.P0 = P0
        self.P2, self.pfpol = P2, pfpol
        self.WQ1 = WQ1
        self.posst = posst
        self.dbgx = dbgx
        self.noreset, self.rstpol, self.Thi, self.Tlo, self.K0, self.Tbase = noreset, rstpol, Thi, Tlo, K0, T_
        self.L = []
        self.T, self.wpol, self.stamps, self.force_slow = T_, wpol, stamps, force_slow
        self.P1, self.gaps, self.warm, self.codepf, self.TO, self.burst = P1, gaps, warm, codepf, TO, burst
        self.nlab = 0
        self.slow = []
        self.stamp_names = {}
        self.nops = 0
        self.live = []
        self.lg_epoch = 0
        self.slot_epoch = [-1] * 8
        self.log = []
        self.stream = []
        self.thr_on = False
        self.slot_pending = [False] * 8

    def a(self, s): self.L.append("    " + s)
    def lab(self, s): self.L.append(s + ":")
    def newlab(self, p="L"):
        self.nlab += 1
        return f"{p}_{self.nlab}"

    def stamp(self, name, idx, layered=False):
        if not self.stamps: return
        if self.posst and layered: return
        a = self.a
        a("s_memrealtime s[34:35]")
        if layered:
            a(f"s_add_u32 s{sSI}, s{sSB}, {idx}")
            for L in range(4): self.stamp_names[16 + L * 12 + idx] = f"L{L+1}.{name}"
        else:
            a(f"s_mov_b32 s{sSI}, {idx}")
            self.stamp_names[idx] = name
        a(f"s_lshl_b64 exec, 1, s{sSI}")
        a("s_waitcnt lgkmcnt(0)")
        a(f"v_mov_b32 v{vST}, s34")
        a("s_mov_b64 exec, -1")

    def counted(self):
        o = Op(self.nops, True); self.nops += 1; self.live.append(o); return o
    def optional(self):
        o = Op(self.nops, False); self.live.append(o); return o
    def after(self, o): return self.nops - 1 - o.pos if o.counted else self.nops - o.pos
    def wait_vm(self, k):
        assert k <= 63
        self.a(f"s_waitcnt vmcnt({k})")
        for o in self.live:
            if self.after(o) >= k: o.done = True
        self.live = [o for o in self.live if not o.done]
    def wait_for(self, o):
        if not o.done: self.wait_vm(self.after(o))
    def throttle(self):
        if self.thr_on and len(self.stream) >= self.T: self.wait_for(self.stream[-self.T])
    def streamop(self):
        o = self.counted(); self.stream.append(o); return o
    def lg0(self):
        self.a("s_waitcnt lgkmcnt(0)")
        self.lg_epoch += 1
    def slot_free(self, m):
        assert not self.slot_pending[m], m
        self.slot_pending[m] = True
        if self.slot_epoch[m] == self.lg_epoch: self.lg0()
    def slot_read(self, m):
        self.slot_epoch[m] = self.lg_epoch
        self.slot_pending[m] = False

    def pub(self, instr):
        l1, l2 = self.newlab("Lslow"), self.newlab("Lback")
        self.a(f"s_cbranch_scc0 {l1}")
        self.a(instr)
        self.lab(l2)
        self.slow.append((l1, instr + " sc1", l2))

    def retry_stub(self, name, target, go):
        self.lab(name)
        self.a(f"s_cmp_eq_u32 s{sTO}, 0")
        self.a(f"s_cbranch_scc1 {go}")
        self.a(f"s_sub_u32 s{sTO}, s{sTO}, 1")
        self.a(f"s_branch {target}")

    def call(self, target): self.a(f"s_call_b64 {sp(sRET)}, {target}")
    def ret(self): self.a(f"s_setpc_b64 {sp(sRET)}")

    def check(self, regs, acc, waits=False):
        a = self.a
        first = True
        for n, (r, c) in enumerate(regs):
            if waits: a(f"s_waitcnt vmcnt({len(regs)-1-n})")
            rs = list(range(r, r + c))
            if first:
                assert c >= 3
                a(f"v_max3_u32 v{acc}, v{rs[0]}, v{rs[1]}, v{rs[2]}"); rs = rs[3:]
                first = False
            while len(rs) >= 2:
                a(f"v_max3_u32 v{acc}, v{acc}, v{rs[0]}, v{rs[1]}"); rs = rs[2:]
            if rs: a(f"v_max_u32 v{acc}, v{acc}, v{rs[0]}")
        a(f"v_cmp_eq_u32 vcc, -1, v{acc}")

    def check_and_call(self, regs, acc, poll, go):
        self.check(regs, acc)
        l1, l2 = self.newlab("Lgo"), self.newlab("Ldn")
        self.a(f"s_cbranch_vccz {l1}")
        self.call(poll)
        self.a(f"s_branch {l2}")
        self.lab(l1)
        self.call(go)
        self.lab(l2)

    att_regs = [(S, 4)]
    def att_issue(self):
        a = self.a
        a(f"s_lshl_b32 s{sA0}, s{sB}, 10"); a(f"s_add_u32 s{sA0}, s{sA0}, s{sLOC}"); a(f"s_sub_u32 s{sA0}, s{sA0}, s{sScrW}")
        a(f"buffer_load_dwordx4 {vr(S)}, v{vScr}, {srd(rWS)}, s{sA0} offen sc1")
    def r_att(self):
        a = self.a
        self.lab("ATT_poll")
        self.att_issue()
        self.check(self.att_regs, T + 0, waits=True)
        a("s_cbranch_vccnz ATT_retry")
        self.lab("ATT_go")
        self.stamp("att_go", 6, True)
        a(f"ds_write_b128 v{vScr}, {vr(S)}")
        for i in range(8): a(f"ds_read_b128 {vr(QP+4*i)}, v{vQr} offset:{64*i}")
        a(f"s_bitcmp1_b32 s{sL}, 0")
        a("s_cbranch_scc1 ATT_qkB")
        def sel(t):
            d = D + 4 * t
            if t == 0:
                return [f"v_cndmask_b32 v{T+0}, v{d}, v{d+2}, {sp(mPair)}", f"v_cndmask_b32 v{T+1}, v{d+1}, v{d+3}, {sp(mPair)}"]
            mk = [None, m1, m2, m3][t]
            return [f"v_cndmask_b32 v{T+2}, v{d}, v{d+2}, {sp(mPair)}", f"v_cndmask_b32 v{T+3}, v{d+1}, v{d+3}, {sp(mPair)}",
                    f"v_cndmask_b32 v{T+0}, v{T+0}, v{T+2}, {sp(mk)}", f"v_cndmask_b32 v{T+1}, v{T+1}, v{T+3}, {sp(mk)}"]
        def qk(base):
            for t in range(4):
                fill = sel(t - 2) if t >= 2 else []
                for i in range(8):
                    if t == 0: a(f"s_waitcnt lgkmcnt({7-i})")
                    c = "0" if i == 0 else vr(D + 4 * t)
                    a(f"{MFMA} {vr(D+4*t)}, {ar(base+32*t+4*i)}, {vr(QP+4*i)}, {c}")
                    if fill and i >= 1: a(fill.pop(0))
        qk(0)
        a("s_branch ATT_sm")
        self.lab("ATT_qkB")
        qk(128)
        self.lab("ATT_sm")
        z = [f"v_mov_b64 v[{QP+2*k}:{QP+2*k+1}], 0" for k in range(16)]
        def Z(n):
            for _ in range(n): a(z.pop(0) if z else "s_nop 0")
        for x in sel(2): a(x)
        Z(4)
        for x in sel(3): a(x)
        m, t = T + 2, T + 3
        a(f"v_max_f32 v{m}, v{T+0}, v{T+1}")
        for r in (8, 4, 2):
            Z(2); a(f"v_max_f32_dpp v{m}, v{m}, v{m} row_ror:{r} {DPP}")
        for sw in ("v_permlane16_swap_b32", "v_permlane32_swap_b32"):
            a(f"v_mov_b32 v{t}, v{m}"); Z(2); a(f"{sw} v{m}, v{t}"); a(f"v_max_f32 v{m}, v{m}, v{t}")
        a(f"v_mul_f32 v{T+4}, s{sC}, v{m}")
        a(f"v_fma_f32 v{T+0}, v{T+0}, s{sC}, -v{T+4}")
        a(f"v_fma_f32 v{T+1}, v{T+1}, s{sC}, -v{T+4}")
        a(f"v_exp_f32 v{T+0}, v{T+0}")
        a(f"v_exp_f32 v{T+1}, v{T+1}")
        a("s_mov_b64 exec, 3")
        a(f"ds_write_b32 v{vPw}, v{T+4} offset:256")
        a("s_mov_b64 exec, -1")
        a(f"v_cvt_pk_bf16_f32 v{T+2}, v{T+0}, v{T+1}")
        a(f"ds_write_b32 v{vPw}, v{T+2}")
        a(f"v_add_f32 v{T+5}, v{T+0}, v{T+1}")
        Z(len(z))
        a("s_waitcnt lgkmcnt(0)")
        self.stamp("att_end", 7, True)
        self.ret()
        self.retry_stub("ATT_retry", "ATT_poll", "ATT_go")

    def pv_reads(self):
        a = self.a
        a("s_barrier")
        a(f"s_mov_b64 exec, {sp(mP)}")
        for m in range(8): a(f"ds_read_b128 {vr(QP+4*m)}, v{vPr} offset:{16*m}")
        a("s_mov_b64 exec, -1")
        a(f"v_and_b32 v{T+2}, 0xffffff7f, v{vPr}")
        a(f"ds_read2_b32 v[{T+6}:{T+7}], v{T+2} offset0:64 offset1:96")
    def pv_shadow(self):
        l, c0, c1, M0, M1, t = T + 5, T + 6, T + 7, T + 0, T + 1, T + 2
        o = []
        for r in (8, 4, 2):
            o += ["N", "N", f"v_add_f32_dpp v{l}, v{l}, v{l} row_ror:{r} {DPP}"]
        for sw in ("v_permlane16_swap_b32", "v_permlane32_swap_b32"):
            o += [f"v_mov_b32 v{t+1}, v{l}", "N", "N", f"{sw} v{l}, v{t+1}", f"v_add_f32 v{l}, v{l}, v{t+1}"]
        o += ["W"]
        o += [f"v_mov_b32 v{M0}, v{c0}", f"v_mov_b32 v{t}, v{c0}", f"v_mov_b32 v{M1}, v{c1}", f"v_mov_b32 v{t+1}, v{c1}", "N",
              f"v_permlane16_swap_b32 v{M0}, v{t}", f"v_permlane16_swap_b32 v{M1}, v{t+1}",
              f"v_max_f32 v{M0}, v{M0}, v{t}", f"v_max_f32 v{M1}, v{M1}, v{t+1}",
              f"v_mov_b32 v{t}, v{M0}", f"v_mov_b32 v{t+1}, v{M1}", "N", "N",
              f"v_permlane32_swap_b32 v{M0}, v{t}", f"v_permlane32_swap_b32 v{M1}, v{t+1}",
              f"v_max_f32 v{M0}, v{M0}, v{t}", f"v_max_f32 v{M1}, v{M1}, v{t+1}",
              f"v_sub_f32 v{c0}, v{c0}, v{M0}", f"v_sub_f32 v{c1}, v{c1}, v{M1}",
              f"v_cndmask_b32 v{M0}, v{M0}, v{M1}, {sp(mOdd)}",
              f"v_exp_f32 v{c0}, v{c0}", f"v_exp_f32 v{c1}, v{c1}",
              f"v_sub_f32 v{t}, v{T+4}, v{M0}",
              f"v_exp_f32 v{t}, v{t}",
              f"v_and_b32 v{t+1}, 1, v{vL}",
              f"v_mul_f32 v{l}, v{l}, v{t}",
              f"v_lshlrev_b32 v{t+1}, 10, v{t+1}",
              f"v_cndmask_b32 v{l}, v{l}, v{M0}, {sp(m1)}",
              f"v_and_b32 v{t}, 2, v{vL}",
              f"v_min_u32 v{l}, -2, v{l}",
              f"v_lshl_add_u32 v{t}, v{t}, 3, v{t+1}",
              f"s_lshl_b32 s{sA0}, s{sJ}, 5", f"s_lshl_b32 s{sA1}, s{sW}, 2", f"s_add_u32 s{sA0}, s{sA0}, s{sA1}",
              f"s_add_u32 s{sA0}, s{sA0}, s{sLOC}", f"s_add_u32 s{sA0}, s{sA0}, {STOFF}",
              "STATS"]
        return o
    def emit_shadow_item(self, x):
        a = self.a
        if x == "N": a("s_nop 0")
        elif x == "W": a("s_waitcnt lgkmcnt(0)")
        elif x == "STATS":
            a(f"s_cmp_lg_u32 s{sMode}, 0")
            a("s_mov_b64 exec, 15")
            self.pub(f"buffer_store_dword v{T+5}, v{T+2}, {srd(rWS)}, s{sA0} offen")
            a("s_mov_b64 exec, -1")
        else: a(x)
    def r_pv(self):
        a = self.a
        self.lab("PV")
        self.pv_reads()
        sh = self.pv_shadow()
        for m in range(8):
            a(f"s_waitcnt lgkmcnt({8-m})")
            for dt in range(4):
                c = "0" if m == 0 else vr(D + 4 * dt)
                a(f"{MFMA} {vr(D+4*dt)}, {vr(QP+4*m)}, {vr(VAT+16*m+4*dt)}, {c}")
                if sh and sh[0] == "N": sh.pop(0)
                n = 0
                while sh and n < 2:
                    x = sh.pop(0); self.emit_shadow_item(x); n += 1
                    if x == "STATS": break
        for x in sh: self.emit_shadow_item(x)
        self.lab("EPI")
        c0, c1 = T + 6, T + 7
        a(f"s_add_u32 s{sA0}, s{sOW}, s{sLOC}"); a("s_nop 3")
        self.stamp("pv_mfma_end", 8, True)
        for dt in (0, 1, 2, 3):
            a(f"v_mul_f32 v{D+4*dt}, v{D+4*dt}, v{c0}")
            a(f"v_mul_f32 v{D+4*dt+1}, v{D+4*dt+1}, v{c1}")
        a(f"v_permlane32_swap_b32 v{D+0}, v{D+8}")
        a(f"v_permlane32_swap_b32 v{D+1}, v{D+9}")
        a(f"v_permlane32_swap_b32 v{D+4}, v{D+12}")
        a(f"v_permlane32_swap_b32 v{D+5}, v{D+13}")
        a(f"v_add_f32 v{D+0}, v{D+0}, v{D+8}")
        a(f"v_add_f32 v{D+4}, v{D+4}, v{D+12}")
        a(f"v_add_f32 v{D+1}, v{D+1}, v{D+9}")
        a(f"v_add_f32 v{D+5}, v{D+5}, v{D+13}")
        a(f"s_cmp_lg_u32 s{sMode}, 0")
        a(f"v_permlane16_swap_b32 v{D+0}, v{D+4}")
        a("s_nop 0")
        a(f"v_permlane16_swap_b32 v{D+1}, v{D+5}")
        a(f"v_add_f32 v{D+0}, v{D+0}, v{D+4}")
        a(f"v_add_f32 v{D+1}, v{D+1}, v{D+5}")
        a(f"v_cndmask_b32 v{T+0}, v{D+1}, v{D+0}, {sp(mOdd)}")
        a("s_nop 1")
        a(f"v_mov_b32_dpp v{T+1}, v{T+0} quad_perm:[1,0,3,2] {DPP}")
        a(f"v_cndmask_b32 v{T+2}, v{D+0}, v{T+1}, {sp(mOdd)}")
        a(f"v_cndmask_b32 v{T+3}, v{T+1}, v{D+1}, {sp(mOdd)}")
        a(f"v_cvt_pk_bf16_f32 v{T+0}, v{T+2}, v{T+3}")
        a(f"v_min_u32 v{T+0}, -2, v{T+0}")
        self.pub(f"buffer_store_dword v{T+0}, v{vOw}, {srd(rWS)}, s{sA0} offen")
        self.stamp("o_pub", 9, True)
        self.ret()

    wo_regs = [(QP + 16, 4), (QP, 4), (QP + 4, 4), (QP + 8, 4), (QP + 12, 4)]
    def wo_issue(self):
        a = self.a
        a(f"s_add_u32 s{sA0}, s{sOR}, s{sLOC}"); a(f"s_add_u32 s{sA2}, s{sSR}, s{sLOC}")
        a(f"buffer_load_dwordx4 {vr(QP+16)}, v{vSr}, {srd(rWS)}, s{sA2} offen sc1")
        for rt in range(2):
            for i in range(2):
                a(f"buffer_load_dwordx4 {vr(QP+8*rt+4*i)}, v{vScr}, {srd(rWS)}, s{sA0} offen offset:{2048*rt+1024*i} sc1")
    def r_wo(self):
        a = self.a
        self.lab("WO_poll")
        self.wo_issue()
        self.check(self.wo_regs, T + 0, waits=True)
        a("s_cbranch_vccnz WO_retry")
        self.lab("WO_go")
        self.stamp("wo_go", 0, True)
        Lj, M, Mb, e, bp = QP + 16, QP + 20, QP + 21, QP + 22, T + 1
        sh = [f"v_permlane32_swap_b32 v{Lj+3}, v{M}",
              f"v_add_f32 v{Lj}, v{Lj}, v{Lj+1}", f"v_add_f32 v{Lj+2}, v{Lj+2}, v{Lj+3}",
              f"v_max_f32_dpp v{Mb}, v{M}, v{M} quad_perm:[1,0,3,2] {DPP}",
              f"v_add_f32 v{Lj}, v{Lj}, v{Lj+2}", f"v_and_b32 v{bp}, 48, v{vL}",
              f"v_max_f32_dpp v{Mb}, v{Mb}, v{Mb} quad_perm:[2,3,0,1] {DPP}",
              f"v_sub_f32 v{e}, v{M}, v{Mb}", f"v_exp_f32 v{e}, v{e}", "N",
              f"v_mul_f32 v{Lj}, v{Lj}, v{e}", "N", "N",
              f"v_add_f32_dpp v{Lj}, v{Lj}, v{Lj} quad_perm:[1,0,3,2] {DPP}", "N", "N",
              f"v_add_f32_dpp v{Lj}, v{Lj}, v{Lj} quad_perm:[2,3,0,1] {DPP}",
              f"v_rcp_f32 v{Lj}, v{Lj}", "N", f"v_mul_f32 v{e}, v{e}, v{Lj}"]
        a(f"s_bitcmp1_b32 s{sL}, 0")
        a("s_cbranch_scc1 WO_B")
        def mm(W):
            s2 = list(sh)
            for rt in range(2):
                for i in range(2):
                    for ct in range(2):
                        d = D + 8 * rt + 4 * ct
                        c = "0" if i == 0 else vr(d)
                        a(f"{MFMA} {vr(d)}, {vr(QP+8*rt+4*i)}, {vr(W+8*i+4*ct)}, {c}")
                        if s2 and s2[0] == "N": s2.pop(0)
                        for _ in range(2):
                            if s2: self.emit_shadow_item(s2.pop(0))
            for x in s2: self.emit_shadow_item(x)
        mm(WOA)
        a("s_branch WO_j")
        self.lab("WO_B")
        mm(WOB)
        self.lab("WO_j")
        for rt in range(2):
            for r in range(4):
                a(f"ds_bpermute_b32 v{QP+24+4*rt+r}, v{bp}, v{e} offset:{(16*rt+r)*4}")
        a(f"s_mul_i32 s{sA0}, s{sW}, 1020")
        a(f"v_subrev_u32 v{T+2}, s{sA0}, v{vScr}")
        self.x3_soff(sA0, sA1)
        for rt in range(2):
            a(f"s_waitcnt lgkmcnt({4 if rt == 0 else 2})")
            c = QP + 24 + 4 * rt
            d0, d1 = D + 8 * rt, D + 8 * rt + 4
            a(f"v_mul_f32 v{d0}, v{d0}, v{c}"); a(f"v_mul_f32 v{d1}, v{d1}, v{c}")
            for r in range(1, 4):
                a(f"v_fmac_f32 v{d0}, v{d0+r}, v{c+r}"); a(f"v_fmac_f32 v{d1}, v{d1+r}, v{c+r}")
            a(f"ds_write_b32 v{T+2}, v{d0} offset:{(2*rt)*1024}")
            a(f"ds_write_b32 v{T+2}, v{d1} offset:{(2*rt+1)*1024}")
        a("s_waitcnt lgkmcnt(0)")
        a("s_barrier")
        a(f"ds_read_b128 {vr(QP)}, v{vScr}")
        a("s_waitcnt lgkmcnt(0)")
        a(f"v_add_f32 v{QP}, v{QP}, v{QP+1}"); a(f"v_add_f32 v{QP+2}, v{QP+2}, v{QP+3}"); a(f"v_add_f32 v{QP}, v{QP}, v{QP+2}")
        a(f"v_min_u32 v{QP}, -2, v{QP}")
        a(f"buffer_store_dword v{QP}, v{vX3w}, {srd(rWS)}, s{sA0} offen sc1")
        self.stamp("x3_pub", 1, True)
        self.ret()
        self.retry_stub("WO_retry", "WO_poll", "WO_go")

    h3_regs = [(QP + 4, 4), (QP + 8, 4)]
    def h3_issue(self):
        a = self.a
        a(f"s_lshl_b32 s{sA0}, s{sJ}, 13"); a(f"s_lshl_b32 s{sA1}, s{sW}, 11"); a(f"s_add_u32 s{sA0}, s{sA0}, s{sA1}")
        a(f"s_add_u32 s{sA0}, s{sA0}, s{sX3}"); a(f"s_sub_u32 s{sA0}, s{sA0}, s{sScrW}")
        a(f"buffer_load_dwordx4 {vr(QP+4)}, v{vScr}, {srd(rWS)}, s{sA0} offen sc1")
        a(f"buffer_load_dwordx4 {vr(QP+8)}, v{vScr}, {srd(rWS)}, s{sA0} offen offset:1024 sc1")
    def x_soff(self, dst):
        a = self.a
        a(f"s_and_b32 s{dst}, s{sJ}, 1"); a(f"s_lshl_b32 s{dst}, s{dst}, 1"); a(f"s_and_b32 s{sT1}, s{sW}, 1")
        a(f"s_add_u32 s{dst}, s{dst}, s{sT1}"); a(f"s_mul_i32 s{dst}, s{dst}, 1792")
        a(f"s_lshr_b32 s{sT1}, s{sJ}, 1"); a(f"s_lshl_b32 s{sT1}, s{sT1}, 6"); a(f"s_add_u32 s{dst}, s{dst}, s{sT1}")
        a(f"s_lshr_b32 s{sT1}, s{sW}, 1"); a(f"s_lshl_b32 s{sT1}, s{sT1}, 5"); a(f"s_add_u32 s{dst}, s{dst}, s{sT1}")
    def r_h3(self):
        a = self.a
        self.lab("H3_poll")
        self.h3_issue()
        self.check(self.h3_regs, T + 0, waits=True)
        a("s_cbranch_vccnz H3_retry")
        self.lab("H3_go")
        self.stamp("h3_go", 2, True)
        A, B = QP + 4, QP + 8
        for k in (0, 2, 1, 3): a(f"v_add_f32 v{A+k}, v{A+k}, v{B+k}")
        a(f"v_lshlrev_b32 v{T+4}, 16, v{vXres}")
        a(f"v_permlane32_swap_b32 v{A}, v{A+2}")
        a(f"v_permlane32_swap_b32 v{A+1}, v{A+3}")
        a(f"v_add_f32 v{A}, v{A}, v{A+2}")
        a(f"v_add_f32 v{A+1}, v{A+1}, v{A+3}")
        a(f"v_and_b32 v{T+5}, 0xffff0000, v{vXres}")
        a(f"v_add_f32_dpp v{A}, v{A}, v{A} row_ror:8 {DPP}")
        a(f"v_add_f32_dpp v{A+1}, v{A+1}, v{A+1} row_ror:8 {DPP}")
        a(f"v_mov_b32 v{A+2}, v{A}")
        a(f"v_mov_b32 v{A+3}, v{A+1}")
        a(f"s_add_u32 s{sA0}, s{sXW}, s{sLOC}")
        a(f"v_permlane16_swap_b32 v{A}, v{A+2}")
        a(f"v_permlane16_swap_b32 v{A+1}, v{A+3}")
        a(f"v_add_f32 v{A}, v{A}, v{A+2}")
        a(f"v_add_f32 v{A+1}, v{A+1}, v{A+3}")
        a(f"v_cvt_pk_bf16_f32 v{A}, v{A}, v{A+1}")
        a(f"v_lshlrev_b32 v{A+1}, 16, v{A}")
        a(f"v_and_b32 v{A}, 0xffff0000, v{A}")
        a(f"v_add_f32 v{A+1}, v{A+1}, v{T+4}")
        a(f"v_add_f32 v{A}, v{A}, v{T+5}")
        a(f"v_cvt_pk_bf16_f32 v{vXres}, v{A+1}, v{A}")
        a(f"s_mov_b64 exec, {sp(mX)}")
        a(f"s_cmp_eq_u32 s{sL}, 3")
        a("s_cbranch_scc1 H3_final")
        a(f"v_min_u32 v{A}, -2, v{vXres}")
        a(f"s_cmp_lg_u32 s{sMode}, 0")
        self.pub(f"buffer_store_dword v{A}, v{vXw}, {srd(rWS)}, s{sA0} offen")
        a("s_mov_b64 exec, -1")
        self.stamp("x_pub", 3, True)
        self.ret()
        self.lab("H3_final")
        a(f"s_mov_b32 s{rTMP}, s{pOUT}"); a(f"s_mov_b32 s{rTMP+1}, s{pOUT+1}"); a(f"s_mov_b32 s{rTMP+2}, 7168"); a(f"s_mov_b32 s{rTMP+3}, 0x20000")
        a(f"buffer_store_dword v{vXres}, v{vXn}, {srd(rTMP)}, s{sA3} offen")
        a("s_mov_b64 exec, -1")
        self.stamp("x_pub", 3, True)
        self.ret()
        self.retry_stub("H3_retry", "H3_poll", "H3_go")

    qp_regs = [(QP + 4 * i, 4) for i in range(7)]
    WSLOT = [S, S + 4, S + 8, S + 12, D + 8, D + 12, QP + 28]
    WORDER = [k for i in range(7) for k in (i, 7 + i)]
    def w_read(self, k, dst):
        self.a(f"ds_read_b64_tr_b16 {vr(dst,2)}, v{vWr} offset:{k*2048}")
        self.a(f"ds_read_b64_tr_b16 {vr(dst+2,2)}, v{vWr} offset:{k*2048+256}")
    def qp_preload(self):
        for n in range(7): self.w_read(self.WORDER[n], self.WSLOT[n])
    def qp_issue(self):
        a = self.a
        a(f"s_sub_u32 s{sA0}, s{sLOC}, s{sScrW}")
        a(f"s_add_u32 s{sA0}, s{sA0}, {(XOFF - LSTRIDE) & 0xffffffff}"); a(f"s_add_u32 s{sA1}, s{sA0}, 4096")
        for i in range(7):
            a(f"buffer_load_dwordx4 {vr(QP+4*i)}, v{vScr}, {srd(rWS)}, s{sA0 + i // 4} offen offset:{1024*(i%4)} sc1")
    def x_first(self):
        a = self.a
        t0, t1 = D + 14, D + 15
        a(f"v_and_b32 v{t0}, 7, v{vL}"); a(f"v_mul_u32_u24 v{t0}, 896, v{t0}"); a(f"v_bfe_u32 v{t1}, v{vL}, 3, 1"); a(f"v_mul_u32_u24 v{t1}, 448, v{t1}")
        a(f"v_add_u32 v{t0}, v{t0}, v{t1}"); a(f"v_and_b32 v{t1}, 48, v{vL}"); a(f"v_add_u32 v{t0}, v{t0}, v{t1}")
        self.tmp_srd(pAX, 7168)
        for i in range(7):
            a(f"buffer_load_dwordx4 {vr(QP+4*i)}, v{t0}, {srd(rTMP)}, 0 offen offset:{64*i}")
    def r_qp(self):
        a = self.a
        self.lab("QP_first")
        self.qp_issue()
        self.qp_preload()
        a("s_branch QP_chk")
        self.lab("QP_poll")
        self.qp_issue()
        self.lab("QP_chk")
        self.check(self.qp_regs, T + 4, waits=True)
        a("s_cbranch_vccnz QP_retry")
        self.lab("QP_go")
        self.stamp("qp_go", 4, True)
        for k in range(4): a(f"v_mov_b32 v{T+k}, 0")
        a("s_waitcnt lgkmcnt(0)")
        dots = []
        for i in range(7):
            for r in range(4):
                x = QP + 4 * i + r
                dots.append(f"v_dot2c_f32_bf16 v{T+(r&1)}, s{sT0}, v{x}")
                dots.append(f"v_dot2c_f32_bf16 v{T+2+(r&1)}, v{x}, v{x}")
        a(f"s_mov_b32 s{sT0}, {ONES}")
        for n in range(14):
            i, half = n // 2, n % 2
            d = D + 4 * half
            if n >= 7: a(f"s_waitcnt lgkmcnt({2*(13-n)})")
            c = "0" if i == 0 else vr(d)
            a(f"{MFMA} {vr(d)}, {vr(self.WSLOT[n%7])}, {vr(QP+4*i)}, {c}")
            if n < 7: self.w_read(self.WORDER[n + 7], self.WSLOT[n])
            for _ in range(4): a(dots.pop(0))
        s1, s2, t = T + 0, T + 2, T + 1
        a(f"s_lshl_b32 s{sA0}, s{sJQ}, 5"); a(f"s_add_u32 s{sA0}, s{sA0}, s{sLOC}")
        a("s_nop 0")
        a(f"v_add_f32 v{s1}, v{T+0}, v{T+1}"); a(f"v_add_f32 v{s2}, v{T+2}, v{T+3}")
        a("s_nop 1")
        a(f"v_permlane32_swap_b32 v{s1}, v{s2}")
        a(f"v_add_f32 v{s1}, v{s1}, v{s2}")
        a(f"v_mov_b32 v{t}, v{s1}")
        a(f"v_add_f32_dpp v{D+0}, v{D+4}, v{D+0} row_ror:8 {DPP}")
        a(f"v_add_f32_dpp v{D+1}, v{D+5}, v{D+1} row_ror:8 {DPP}")
        a(f"v_permlane16_swap_b32 v{s1}, v{t}")
        a(f"v_add_f32 v{s1}, v{s1}, v{t}")
        a(f"v_add_f32_dpp v{D+2}, v{D+6}, v{D+2} row_ror:8 {DPP}")
        a(f"v_add_f32_dpp v{D+3}, v{D+7}, v{D+3} row_ror:8 {DPP}")
        a(f"v_add_f32_dpp v{s1}, v{s1}, v{s1} row_ror:8 {DPP}")
        a(f"v_mul_f32 v{s1}, 0x3b124925, v{s1}")
        a(f"v_mov_b32 v{t}, v{s1}")
        a("s_nop 1")
        a(f"v_permlane32_swap_b32 v{s1}, v{t}")
        a(f"v_fma_f32 v{t}, -v{s1}, v{s1}, v{t}")
        a(f"v_max_f32 v{t}, 0, v{t}")
        a(f"v_add_f32 v{t}, 0x3727c5ac, v{t}")
        a(f"v_rsq_f32 v{t}, v{t}")
        for r in range(4): a(f"v_fma_f32 v{D+r}, -v{s1}, v{CS+r}, v{D+r}")
        for r in range(4): a(f"v_mul_f32 v{D+r}, v{D+r}, v{t}")
        a(f"v_cvt_pk_bf16_f32 v{D+4}, v{D+0}, v{D+1}")
        a(f"v_cvt_pk_bf16_f32 v{D+5}, v{D+2}, v{D+3}")
        a(f"s_mov_b64 exec, {sp(mQ)}")
        a(f"v_min_u32 v{D+4}, -2, v{D+4}"); a(f"v_min_u32 v{D+5}, -2, v{D+5}")
        a(f"s_cmp_lg_u32 s{sMode}, 0")
        self.pub(f"buffer_store_dwordx2 {vr(D+4,2)}, v{vQw}, {srd(rWS)}, s{sA0} offen")
        a("s_mov_b64 exec, -1")
        self.stamp("q_pub", 5, True)
        self.ret()
        self.retry_stub("QP_retry", "QP_poll", "QP_go")

    def to_qp(self, delay):
        a = self.a
        self.advance_layer()
        self.stamp_layer()
        a(f"s_cmp_eq_u32 s{sQM}, 1")
        a(f"s_cselect_b32 s{sPH}, {QP_I}, {AT_I}")
        a(f"s_cselect_b32 s{sAge}, {delay}, {delay + self.gaps[3] + self.A}")
    def r_handler(self):
        a = self.a
        G, A = self.gaps, self.A
        ret = f"s_setpc_b64 {sp(sRET2)}"
        self.lab("HND")
        a(f"s_cmp_eq_u32 s{sAge}, 0"); a("s_cbranch_scc1 HND_act")
        a(f"s_sub_u32 s{sAge}, s{sAge}, 1")
        a(f"s_bitcmp1_b32 s{sPH}, 0"); a("s_cbranch_scc1 HND_ret")
        a(f"s_cmp_gt_u32 s{sAge}, {self.hold}"); a("s_cbranch_scc1 HND_ret")
        a(f"s_waitcnt vmcnt({self.Tlo - 2})"); a(ret)
        self.lab("HND_act")
        for stt, nm in ((DONE, "HND_ret"), (WO_C, "H_WOC"), (H3_I, "H_H3Iw"), (H3_C, "H_H3C"), (QP_I, "H_QPIw"), (QP_C, "H_QPC"), (AT_I, "H_ATI"), (AT_C, "H_ATC")):
            a(f"s_cmp_eq_u32 s{sPH}, {stt}"); a(f"s_cbranch_scc1 {nm}")
        def issue(lab, fn, nxt_):
            self.lab(lab + "w"); a(f"s_waitcnt vmcnt({self.Tlo})")
            self.lab(lab); fn(); a(f"s_mov_b32 s{sPH}, {nxt_}"); a(f"s_mov_b32 s{sAge}, {A-1}"); a(ret)
        issue("H_WOI", self.wo_issue, WO_C)
        self.lab("H_WOC")
        a(f"s_waitcnt vmcnt({2*A})")
        self.check(self.wo_regs, T + 0); a("s_cbranch_vccnz H_WOI")
        self.lab("G2_chk")
        a(f"v_cmp_eq_u32 vcc, 0, v{T+7}")
        a("s_cbranch_vccz G2_ok")
        a(f"s_cmp_eq_u32 s{sTO}, 0"); a("s_cbranch_scc1 G2_ok"); a(f"s_sub_u32 s{sTO}, s{sTO}, 1")
        a("s_sleep 4")
        a(f"global_load_dword v{T+7}, v{T+6}, {sp(pDBG)} offset:128 sc1"); a("s_waitcnt vmcnt(0)"); a("s_branch G2_chk")
        self.lab("G2_ok")
        a("s_waitcnt lgkmcnt(0)")
        self.call("WO_go")
        a(f"s_mov_b32 s{sPH}, {H3_I}"); a(f"s_mov_b32 s{sAge}, {G[1]}"); a(ret)
        issue("H_H3I", self.h3_issue, H3_C)
        self.lab("H_H3C")
        a(f"s_waitcnt vmcnt({2*A})")
        self.check(self.h3_regs, T + 0); a("s_cbranch_vccnz H_H3I")
        self.call("H3_go")
        self.to_qp(G[2])
        a(ret)
        issue("H_QPI", self.qp_issue, QP_C)
        self.lab("H_QPC")
        a(f"s_waitcnt vmcnt({2*A})")
        self.check(self.qp_regs, T + 4); a("s_cbranch_vccnz H_QPI")
        self.qp_preload()
        self.call("QP_go")
        a(f"s_mov_b32 s{sPH}, {AT_I}"); a(f"s_mov_b32 s{sAge}, {G[3]}"); a(ret)
        self.lab("H_ATI")
        a(f"s_cmp_eq_u32 s{sKBok}, 0"); a("s_cbranch_scc1 HND_ret")
        issue("H_ATI2", self.att_issue, AT_C)
        self.lab("H_ATC")
        a(f"s_waitcnt vmcnt({2*A})")
        self.check(self.att_regs, T + 0); a("s_cbranch_vccnz H_ATI2")
        a(f"s_cmp_lt_u32 s{sKBok}, 2"); a("s_cbranch_scc1 HND_ret")
        a("s_waitcnt lgkmcnt(0)")
        self.call("ATT_go")
        a(f"s_mov_b32 s{sPH}, {DONE}")
        self.lab("HND_ret")
        a(ret)
    def finish_chain(self):
        a = self.a
        l1, l2, l3, l4 = (self.newlab("Lfin") for _ in range(4))
        a(f"s_cmp_gt_u32 s{sPH}, {WO_C}"); a(f"s_cbranch_scc1 {l1}")
        a("s_waitcnt vmcnt(0)")
        self.lab("F2_chk")
        a(f"v_cmp_eq_u32 vcc, 0, v{T+7}")
        a("s_cbranch_vccz F2_ok")
        a(f"s_cmp_eq_u32 s{sTO}, 0"); a("s_cbranch_scc1 F2_ok"); a(f"s_sub_u32 s{sTO}, s{sTO}, 1")
        a(f"global_load_dword v{T+7}, v{T+6}, {sp(pDBG)} offset:128 sc1"); a("s_waitcnt vmcnt(0)"); a("s_branch F2_chk")
        self.lab("F2_ok")
        self.call("WO_poll")
        self.lab(l1)
        a(f"s_cmp_gt_u32 s{sPH}, {H3_C}"); a(f"s_cbranch_scc1 {l2}")
        self.call("H3_poll")
        self.to_qp(0)
        self.lab(l2)
        a(f"s_cmp_gt_u32 s{sPH}, {QP_C}"); a(f"s_cbranch_scc1 {l3}")
        self.call("QP_first")
        self.lab(l3)
        a(f"s_cmp_eq_u32 s{sPH}, {DONE}"); a(f"s_cbranch_scc1 {l4}")
        self.call("ATT_poll")
        self.lab(l4)

    def r_cs(self):
        a = self.a
        self.lab("CSUM")
        for k in range(4): a(f"v_mov_b32 v{T+k}, {ONES}")
        for k in range(4): self.w_read(k, S + 4 * k)
        for k in range(14):
            a(f"s_waitcnt lgkmcnt({min(6, 2*(13-k))})")
            c = "0" if k == 0 else vr(CS)
            a(f"{MFMA} {vr(CS)}, {vr(S+4*(k%4))}, {vr(T)}, {c}")
            if k + 4 < 14: self.w_read(k + 4, S + 4 * (k % 4))
        a("s_nop 7")
        self.ret()

    def k_dma(self, r, m, i):
        a = self.a
        if i == 0:
            self.slot_free(m)
            a(f"s_add_u32 m0, s{sRing}, {m*4096}")
        x = (8 * (m & 1) + 2 * i) << 4
        if x: a(f"v_xor_b32 v{D+15}, {x}, v{vKb}")
        elif i == 0: a("s_nop 0")
        self.throttle()
        a(f"buffer_load_dwordx4 v{D+15 if x else vKb}, {srd(r)}, s{sM+m} offen offset:{i*1024} nt lds")
        return self.streamop()
    def k_copy(self, base, t):
        a = self.a
        for k in range(1, 4): a(f"v_xor_b32 v{D+11+k}, {k<<6}, v{vKr0}")
        for i in range(8):
            ad = vKr0 if i % 4 == 0 else D + 11 + i % 4
            a(f"ds_read_b128 {ar(base+32*t+4*i)}, v{ad} offset:{t*8192+(i//4)*256}")
        self.slot_read(2 * t); self.slot_read(2 * t + 1)
    def v_dma(self, r, m, w):
        if "vask" in self.exp: return self.k_dma(r, m, w)
        a = self.a
        if w == 0:
            self.slot_free(m)
            a(f"s_add_u32 m0, s{sRing}, {m*4096}")
            a("s_nop 0")
        else:
            a(f"s_add_u32 s{sT0}, s{sM+m}, {3072*w}")
        self.throttle()
        a(f"buffer_load_dwordx4 v{vVb0+(w&1)}, {srd(r)}, s{sM+m if w == 0 else sT0} offen offset:{w*1024} nt lds")
        return self.streamop()
    def v_addr(self, tmp):
        for k in range(1, 4): self.a(f"v_xor_b32 v{tmp+k-1}, {k<<5}, v{vVr0}")
    def v_read(self, m, dst, tmp):
        for dt in range(4):
            ad = vVr0 if dt == 0 else tmp + dt - 1
            for h in range(2):
                self.a(f"ds_read_b64_tr_b16 {vr(dst+4*dt+2*h,2)}, v{ad} offset:{m*4096+h*512}")
    def v_copy(self, m):
        self.v_addr(D + 12); self.v_read(m, VAT + 16 * m, D + 12); self.slot_read(m)
    def tmp_srd(self, p, size):
        a = self.a
        a(f"s_mov_b32 s{rTMP}, s{p}"); a(f"s_mov_b32 s{rTMP+1}, s{p+1}"); a(f"s_mov_b32 s{rTMP+2}, {size}"); a(f"s_mov_b32 s{rTMP+3}, 0x20000")
    def wo_dma(self, p, slot, k):
        a = self.a
        if k: return self.wo_op
        self.slot_free(slot)
        l = self.if_j28()
        self.tmp_srd(p, 4096 * 896)
        a(f"s_lshl_b32 s{sT0}, s{sG}, 1"); a(f"s_and_b32 s{sT1}, s{sJ}, 1"); a(f"s_add_u32 s{sT0}, s{sT0}, s{sT1}")
        a(f"s_lshl_b32 s{sT0}, s{sT0}, 2"); a(f"s_add_u32 s{sT0}, s{sT0}, s{sW}"); a(f"s_mul_i32 s{sT0}, s{sT0}, {64*896}")
        a(f"s_lshr_b32 s{sT1}, s{sJ}, 1"); a(f"s_lshl_b32 s{sT1}, s{sT1}, 6"); a(f"s_add_u32 s{sT0}, s{sT0}, s{sT1}")
        a(f"v_lshrrev_b32 v{D+15}, 2, v{vL}"); a(f"v_mul_u32_u24 v{D+15}, 896, v{D+15}")
        a(f"v_and_b32 v{D+14}, 3, v{vL}"); a(f"v_lshl_add_u32 v{D+15}, v{D+14}, 4, v{D+15}")
        for kk in range(4):
            a(f"s_add_u32 m0, s{sRing}, {slot*4096+kk*1024}")
            if kk: a(f"s_add_u32 s{sT0}, s{sT0}, {16*896}")
            else: a("s_nop 0")
            a(f"buffer_load_dwordx4 v{D+15}, {srd(rTMP)}, s{sT0} offen {self.wpol} lds")
        self.lab(l)
        self.wo_op = self.optional()
        return self.wo_op
    def wo_copy(self, W, slot):
        a = self.a
        a(f"v_lshrrev_b32 v{D+12}, 4, v{vL}"); a(f"v_lshlrev_b32 v{D+12}, 9, v{D+12}")
        a(f"v_bfe_u32 v{D+13}, v{vL}, 2, 2"); a(f"v_lshl_add_u32 v{D+12}, v{D+13}, 6, v{D+12}")
        a(f"v_and_b32 v{D+13}, 3, v{vL}"); a(f"v_lshl_add_u32 v{D+12}, v{D+13}, 3, v{D+12}")
        a(f"v_add_u32 v{D+12}, s{sRing}, v{D+12}")
        for i in range(2):
            for ct in range(2):
                for h in range(2):
                    a(f"ds_read_b64_tr_b16 {vr(W+8*i+4*ct+2*h,2)}, v{D+12} offset:{slot*4096+i*2048+h*256+ct*32}")
        self.slot_read(slot)
    def wq_all(self):
        a = self.a
        a(f"s_cmp_ge_u32 s{sA2}, 16")
        a(f"s_cselect_b32 s{rTMP}, s{pWQB}, s{pWQA}"); a(f"s_cselect_b32 s{rTMP+1}, s{pWQB+1}, s{pWQA+1}")
        a(f"s_mov_b32 s{rTMP+2}, {448*8192}"); a(f"s_mov_b32 s{rTMP+3}, 0x20000")
        a(f"s_mul_i32 s{sT1}, s{sW}, 7168"); a(f"s_add_u32 s{sA1}, s{sT1}, {WQA_LDS}")
        a(f"s_mul_i32 s{sT0}, s{sW}, {7 << 17}")
        a(f"s_lshl_b32 s{sT1}, s{sG}, 10"); a(f"s_add_u32 s{sT0}, s{sT0}, s{sT1}")
        a(f"s_and_b32 s{sT1}, s{sA2}, 15"); a(f"s_lshl_b32 s{sT1}, s{sT1}, 6"); a(f"s_add_u32 s{sT0}, s{sT0}, s{sT1}")
        a(f"v_lshrrev_b32 v{D+15}, 2, v{vL}"); a(f"v_lshlrev_b32 v{D+15}, 13, v{D+15}")
        a(f"v_and_b32 v{D+14}, 3, v{vL}"); a(f"v_lshl_add_u32 v{D+15}, v{D+14}, 4, v{D+15}")
        o = None
        for q in range(7):
            a(f"s_add_u32 m0, s{sA1}, {q*1024}")
            if q: a(f"s_add_u32 s{sT0}, s{sT0}, {1 << 17}")
            else: a("s_nop 0")
            a(f"buffer_load_dwordx4 v{D+15}, {srd(rTMP)}, s{sT0} offen {self.wpol} lds")
            o = self.counted()
        return o
    def reset_loc(self, pub):
        a = self.a
        a(f"s_mul_i32 s{sT0}, s{sW}, {LSTRIDE}"); a(f"s_mul_i32 s{sT1}, s{sG}, {GSTRIDE}"); a(f"s_add_u32 s{sT0}, s{sT0}, s{sT1}")
        a(f"s_mul_i32 s{sT1}, s{sJ}, 1664"); a(f"s_add_u32 s{sT0}, s{sT0}, s{sT1}"); a(f"s_add_u32 s{sT0}, s{sT0}, {BASE}")
        a(f"s_sub_u32 s{sT0}, s{sT0}, s{sScrW}")
        i1 = f"buffer_store_dwordx4 {vr(S)}, v{vScr}, {srd(rWS)}, s{sT0} offen"
        i2 = i1 + " offset:1024"
        a(f"s_cmp_lg_u32 s{sMode}, 0"); self.pub(i1)
        a("s_mov_b32 exec_hi, 0xff")
        self.pub(i2); a("s_mov_b32 exec_hi, -1")
    def x3_soff(self, dst, tmp):
        a = self.a
        a(f"s_and_b32 s{dst}, s{sJ}, 30"); a(f"s_lshl_b32 s{dst}, s{dst}, 13"); a(f"s_lshl_b32 s{tmp}, s{sW}, 12")
        a(f"s_add_u32 s{dst}, s{dst}, s{tmp}"); a(f"s_lshl_b32 s{tmp}, s{sG}, 8"); a(f"s_add_u32 s{dst}, s{dst}, s{tmp}")
        a(f"s_and_b32 s{tmp}, s{sJ}, 1"); a(f"s_lshl_b32 s{tmp}, s{tmp}, 7"); a(f"s_add_u32 s{dst}, s{dst}, s{tmp}")
        a(f"s_add_u32 s{dst}, s{dst}, s{sX3}")
    def reset_leader(self):
        a = self.a
        l2 = self.newlab("Ldn")
        i1 = f"buffer_store_dwordx4 {vr(S)}, v{vScr}, {srd(rWS)}, s{sT0} offen"
        a(f"s_cmp_ge_u32 s{sJ}, 4"); a(f"s_cbranch_scc1 {l2}")
        a(f"s_cmp_lg_u32 s{sW}, 2"); a(f"s_cbranch_scc1 {l2}")
        a(f"s_lshl_b32 s{sT1}, s{sS}, 11"); a(f"s_add_u32 s{sT0}, s{sLOC}, s{sT1}"); a(f"s_sub_u32 s{sT0}, s{sT0}, s{sScrW}")
        a(i1 + " sc1"); a(i1 + " offset:1024 sc1")
        a(f"s_sub_u32 s{sT0}, s{sLOC}, s{sScrW}"); a(f"s_add_u32 s{sT0}, s{sT0}, {XCOFF}")
        a("s_mov_b64 exec, 0xff"); a(i1 + " sc1"); a("s_mov_b64 exec, -1")
        self.lab(l2)
    def reset_general(self):
        a = self.a
        l = self.if_wave(0); l2 = self.newlab("Ldn")
        a(f"s_mul_i32 s{sT1}, s{sJ}, 1408"); a(f"s_add_u32 s{sT0}, s{sLOC}, s{sT1}"); a(f"s_add_u32 s{sT0}, s{sT0}, {OOFF}")
        a(f"s_sub_u32 s{sT0}, s{sT0}, s{sScrW}")
        i1 = f"buffer_store_dwordx4 {vr(S)}, v{vScr}, {srd(rWS)}, s{sT0} offen"
        a(i1 + " sc1"); a("s_mov_b64 exec, 0xffffff"); a(i1 + " offset:1024 sc1"); a("s_mov_b64 exec, -1")
        a(f"s_branch {l2}")
        self.lab(l)
        self.reset_x3()
        self.lab(l2)
        l = self.if_j28()
        self.x3_soff(sT0, sT1)
        a(f"buffer_store_dword v{S}, v{vX3w}, {srd(rWS)}, s{sT0} offen sc1")
        self.lab(l)
    def w_prefetch(self, p, kind):
        a = self.a
        self.tmp_srd(p, 448 * 8192)
        a(f"s_mul_i32 s{sT0}, s{sW}, 28"); a(f"v_add_u32 v{D+15}, s{sT0}, v{vL}")
        if kind == "wq":
            a(f"v_lshrrev_b32 v{D+14}, 3, v{D+15}"); a(f"v_and_b32 v{D+15}, 7, v{D+15}")
            a(f"v_lshlrev_b32 v{D+14}, 13, v{D+14}"); a(f"v_lshl_add_u32 v{D+15}, v{D+15}, 7, v{D+14}")
            a(f"s_mul_i32 s{sT0}, s{sJ}, {14*8192}"); a(f"s_lshl_b32 s{sT1}, s{sG}, 10")
        else:
            a(f"v_lshlrev_b32 v{D+15}, 7, v{D+15}")
            a(f"s_mul_i32 s{sT0}, s{sJ}, 14336"); a(f"s_mul_i32 s{sT1}, s{sG}, {512*896}")
        a(f"s_add_u32 s{sT0}, s{sT0}, s{sT1}")
        a("s_mov_b64 exec, 0xfffffff")
        a(f"buffer_load_dword v{vSink}, v{D+15}, {srd(rTMP)}, s{sT0} offen {self.pfpol}")
        a("s_mov_b64 exec, -1")
        return self.counted()
    def reset_x3(self):
        a = self.a
        a(f"s_mul_i32 s{sT0}, s{sW}, {LSTRIDE}"); a(f"s_mul_i32 s{sT1}, s2, 896"); a(f"s_add_u32 s{sT0}, s{sT0}, s{sT1}")
        a(f"s_add_u32 s{sT0}, s{sT0}, {BASE + X3OFF}"); a(f"s_sub_u32 s{sT0}, s{sT0}, s{sScrW}")
        a("s_mov_b32 exec_hi, 0xffffff")
        a(f"buffer_store_dwordx4 {vr(S)}, v{vScr}, {srd(rWS)}, s{sT0} offen sc1")
        a("s_mov_b32 exec_hi, -1")
    def warm_loads(self, t0=D + 14):
        if not self.warm: return
        a = self.a
        l = self.newlab("Lwarm")
        a(f"s_cmp_lg_u32 s{sW}, 3"); a(f"s_cbranch_scc1 {l}")
        a(f"v_mul_u32_u24 v{t0+1}, 79, v{vL}"); a(f"v_lshrrev_b32 v{t0+1}, 10, v{t0+1}")
        a(f"v_mul_u32_u24 v{t0}, 13, v{t0+1}"); a(f"v_sub_u32 v{t0}, v{vL}, v{t0}")
        a(f"s_mov_b32 s{sT0}, {LSTRIDE}"); a(f"v_mul_lo_u32 v{t0+1}, v{t0+1}, s{sT0}")
        a(f"v_lshl_add_u32 v{t0+1}, v{t0}, 7, v{t0+1}")
        a(f"s_mul_i32 s{sT0}, s{sG}, {GSTRIDE}"); a(f"s_mul_i32 s{sT1}, s{sJ}, {13*128}"); a(f"s_add_u32 s{sT0}, s{sT0}, s{sT1}")
        a(f"s_add_u32 s{sT0}, s{sT0}, {BASE}")
        a(f"buffer_load_dword v{vSink}, v{t0+1}, {srd(rWS)}, s{sT0} offen")
        self.lab(l)
    def advance_layer(self):
        a = self.a
        a(f"s_add_u32 s{sLOC}, s{sLOC}, {LSTRIDE}"); a(f"s_add_u32 s{sX3}, s{sX3}, {LSTRIDE}"); a(f"s_add_u32 s{sL}, s{sL}, 1")
    def stamp_layer(self):
        if self.stamps: self.a(f"s_add_u32 s{sSB}, s{sSB}, 12")
    def if_wave(self, w):
        l = self.newlab("Lnw")
        self.a(f"s_cmp_lg_u32 s{sW}, {w}"); self.a(f"s_cbranch_scc1 {l}")
        return l
    def if_qm(self, p):
        l = self.newlab("Lnq")
        self.a(f"s_cmp_lg_u32 s{sQM}, {p}"); self.a(f"s_cbranch_scc1 {l}")
        return l
    def if_j28(self):
        l = self.newlab("Lj28")
        self.a(f"s_cmp_ge_u32 s{sJ}, 28"); self.a(f"s_cbranch_scc1 {l}")
        return l

    def build(self):
        name = KN + "_kernel"
        self.L = header([f"; @launch grid=(256,1,1) block=(256,1,1) lds={LDS_TOTAL}"]) + kernel_begin(name)
        a = self.a
        a("s_cmp_ge_u32 s2, 256"); a("s_cbranch_scc1 L_end")
        a("s_load_dwordx16 s[8:23], s[0:1], 0")
        a("s_load_dwordx8 s[24:31], s[0:1], 64")
        a("s_load_dwordx2 s[32:33], s[0:1], 96")
        a(f"v_lshrrev_b32 v1, 6, v0"); a(f"v_and_b32 v{vL}, 63, v0"); a(f"v_readfirstlane_b32 s{sW}, v1")
        a(f"s_and_b32 s{sG}, s2, 7"); a(f"s_lshr_b32 s{sJ}, s2, 3"); a(f"s_lshr_b32 s{sB}, s2, 5"); a(f"s_and_b32 s{sS}, s{sJ}, 3")
        a(f"s_lshl_b32 s{sRing}, s{sW}, 15"); a(f"s_lshl_b32 s{sScrW}, s{sW}, 10"); a(f"s_add_u32 s{sScrW}, s{sScrW}, {SCR}")
        for m in range(8): a(f"s_mov_b32 s{sM+m}, {m*65536}")
        t0, t1, t2 = T, T + 1, T + 2
        a(f"s_lshl_b32 s{sT0}, s{sS}, 14"); a(f"s_lshl_b32 s{sT1}, s{sW}, 12"); a(f"s_add_u32 s{sT1}, s{sT0}, s{sT1}")
        a(f"v_lshrrev_b32 v{t0}, 5, v{vL}"); a(f"v_and_b32 v{t1}, 31, v{vL}"); a(f"v_xor_b32 v{t1}, v{t1}, v{t0}")
        a(f"v_lshlrev_b32 v{t0}, 9, v{t0}"); a(f"v_lshl_add_u32 v{t0}, v{t1}, 4, v{t0}"); a(f"v_add_u32 v{vKb}, s{sT1}, v{t0}")
        a(f"s_lshl_b32 s{sA0}, s{sB}, 3"); a(f"s_add_u32 s{sA0}, s{sA0}, s{sG}"); a(f"s_lshl_b32 s{sA0}, s{sA0}, 21")
        a(f"s_add_u32 s{sA0}, s{sA0}, 0x180000")
        if self.stamps:
            a(f"v_mov_b32 v{vST}, 0"); a(f"s_mov_b32 s{sSB}, 16")
        a("s_waitcnt lgkmcnt(0)")
        self.stamp("start", 0)
        for r, p in ((rKA, pKA), (rVA, pVA), (rKB, pKB), (rVB, pVB)):
            a(f"s_add_u32 s{r}, s{p}, s{sA0}"); a(f"s_addc_u32 s{r+1}, s{p+1}, 0"); a(f"s_mov_b32 s{r+2}, 0x80000"); a(f"s_mov_b32 s{r+3}, 0x20000")
        kA = {}
        for m in range(self.K0 // 4):
            for i in range(4): kA[(m, i)] = self.k_dma(rKA, m, i)
        self.stamp("k8", 6)
        a(f"s_mov_b32 s{rWS}, s{pWS}"); a(f"s_mov_b32 s{rWS+1}, s{pWS+1}"); a(f"s_mov_b32 s{rWS+2}, {WS_SIZE}"); a(f"s_mov_b32 s{rWS+3}, 0x20000")
        a(f"s_mov_b32 s{sTO}, {self.TO}"); a(f"s_mov_b32 s{sMode}, 0"); a(f"s_mov_b32 s{sL}, 0"); a(f"s_mov_b32 s{sC}, {CSCALE}")
        a(f"s_mul_i32 s{sLOC}, s{sG}, {GSTRIDE}"); a(f"s_add_u32 s{sLOC}, s{sLOC}, {BASE}"); a(f"s_mov_b32 s{sX3}, {BASE + X3OFF}")
        for r, v in ((mPair, 0xFF00FF00), (m1, 0x0C0C0C0C), (m2, 0x30303030), (m3, 0xC0C0C0C0), (mOdd, 0xAAAAAAAA), (mX, 0xFF), (mQ, 0x00FF00FF)):
            a(f"s_mov_b32 s{r}, {v:#x}"); a(f"s_mov_b32 s{r+1}, {v:#x}")
        a(f"s_mov_b32 s{mP}, 0x00300003"); a(f"s_mov_b32 s{mP+1}, 0x30000300")
        a(f"s_mov_b32 s{sA2}, s{sJ}"); a(f"s_lshr_b32 s{sT0}, s{sJ}, 1")
        for v, d in ((3, 22), (14, -22), (11, 8), (15, -8)):
            a(f"s_add_i32 s{sT1}, s{sJ}, {d}"); a(f"s_cmp_eq_u32 s{sT0}, {v}"); a(f"s_cselect_b32 s{sA2}, s{sT1}, s{sA2}")
        a(f"s_and_b32 s{sJQ}, s{sA2}, 15"); a(f"s_lshl_b32 s{sJQ}, s{sJQ}, 1"); a(f"s_add_u32 s{sJQ}, s{sJQ}, s{sW}")
        a(f"s_lshr_b32 s{sQM}, s{sA2}, 4"); a(f"s_cmp_ge_u32 s{sW}, 2"); a(f"s_cselect_b32 s{sQM}, 2, s{sQM}")
        n_, kq_, r_, c_ = D, D + 1, D + 2, D + 3
        a(f"v_and_b32 v{n_}, 15, v{vL}"); a(f"v_lshrrev_b32 v{kq_}, 4, v{vL}"); a(f"v_bfe_u32 v{r_}, v{vL}, 2, 2"); a(f"v_and_b32 v{c_}, 3, v{vL}")
        a(f"v_lshlrev_b32 v{t0}, 4, v{vL}"); a(f"v_add_u32 v{vScr}, s{sScrW}, v{t0}")
        a(f"v_bfe_u32 v{t0}, v{vL}, 2, 1"); a(f"v_mul_u32_u24 v{t0}, 896, v{t0}"); a(f"v_lshl_add_u32 v{t0}, v{c_}, 3, v{t0}")
        a(f"v_lshrrev_b32 v{t1}, 5, v{vL}"); a(f"v_lshl_add_u32 v{vXn}, v{t1}, 2, v{t0}")
        a(f"v_bfe_u32 v{t0}, v{vL}, 1, 1"); a(f"v_lshlrev_b32 v{t0}, 8, v{t0}"); a(f"v_lshl_add_u32 v{t0}, v{t1}, 2, v{t0}")
        a(f"v_bfe_u32 v{t1}, v{vL}, 2, 1"); a(f"v_lshl_add_u32 v{t0}, v{t1}, 4, v{t0}")
        a(f"v_and_b32 v{t1}, 1, v{vL}"); a(f"v_lshl_add_u32 v{vXw}, v{t1}, 3, v{t0}")
        a(f"v_lshrrev_b32 v{t0}, 1, v{kq_}"); a(f"v_lshlrev_b32 v{t0}, 11, v{t0}"); a(f"v_and_b32 v{t1}, 1, v{kq_}")
        a(f"v_lshl_add_u32 v{t0}, v{t1}, 6, v{t0}"); a(f"v_lshl_add_u32 v{vX3w}, v{n_}, 2, v{t0}")
        for k in range(4): a(f"v_mov_b32 v{S+k}, -1")
        self.reset_leader()
        rst = self.optional()
        self.x_soff(sA3)
        self.tmp_srd(pAX, 7168)
        a(f"buffer_load_dword v{vXres}, v{vXn}, {srd(rTMP)}, s{sA3} offen")
        self.counted()
        a(f"s_lshl_b32 s{sT0}, s{sS}, 14"); a(f"s_lshl_b32 s{sT1}, s{sW}, 7"); a(f"s_add_u32 s{sT0}, s{sT0}, s{sT1}")
        a(f"v_and_b32 v{t0}, 7, v{vL}"); a(f"v_and_b32 v{t1}, 1, v{kq_}"); a(f"v_lshlrev_b32 v{t1}, 1, v{t1}"); a(f"v_xor_b32 v{t0}, v{t0}, v{t1}")
        a(f"v_lshrrev_b32 v{t1}, 3, v{vL}"); a(f"v_lshlrev_b32 v{t1}, 9, v{t1}"); a(f"v_lshl_add_u32 v{t0}, v{t0}, 4, v{t1}")
        a(f"v_add_u32 v{vVb0}, s{sT0}, v{t0}"); a(f"v_xor_b32 v{vVb1}, 64, v{vVb0}")
        a(f"v_bfe_u32 v{t0}, v{vL}, 3, 1"); a(f"v_lshlrev_b32 v{t0}, 12, v{t0}"); a(f"v_and_b32 v{t1}, 7, v{vL}"); a(f"v_lshl_add_u32 v{t0}, v{t1}, 9, v{t0}")
        a(f"v_xor_b32 v{t1}, v{kq_}, v{n_}"); a(f"v_lshl_add_u32 v{t0}, v{t1}, 4, v{t0}"); a(f"v_add_u32 v{vKr0}, s{sRing}, v{t0}")
        a(f"v_lshlrev_b32 v{t0}, 10, v{kq_}"); a(f"v_lshl_add_u32 v{t0}, v{r_}, 7, v{t0}"); a(f"v_lshl_add_u32 v{t0}, v{c_}, 3, v{t0}")
        a(f"v_lshrrev_b32 v{t1}, 1, v{r_}"); a(f"v_lshl_add_u32 v{t0}, v{t1}, 5, v{t0}")
        a(f"v_and_b32 v{t1}, 1, v{kq_}"); a(f"v_lshl_add_u32 v{t0}, v{t1}, 6, v{t0}"); a(f"v_add_u32 v{vVr0}, s{sRing}, v{t0}")
        a(f"v_and_b32 v{t2}, 1, v{vL}")
        a(f"v_lshlrev_b32 v{t0}, 9, v{t2}"); a(f"v_lshl_add_u32 v{t0}, v{kq_}, 4, v{t0}"); a(f"v_add_u32 v{vQr}, s{sScrW}, v{t0}")
        a(f"v_lshlrev_b32 v{t0}, 7, v{t2}"); a(f"v_bfe_u32 v{t1}, v{vL}, 1, 2"); a(f"v_lshl_add_u32 v{t0}, v{t1}, 5, v{t0}")
        a(f"v_lshl_add_u32 v{t0}, v{kq_}, 3, v{t0}"); a(f"v_bfe_u32 v{t1}, v{vL}, 3, 1"); a(f"v_lshl_add_u32 v{t0}, v{t1}, 2, v{t0}")
        a(f"v_add_u32 v{vPw}, s{sScrW}, v{t0}")
        a(f"v_lshlrev_b32 v{t0}, 7, v{t2}"); a(f"v_lshl_add_u32 v{t0}, v{kq_}, 10, v{t0}"); a(f"v_add_u32 v{vPr}, {SCR}, v{t0}")
        a(f"v_and_b32 v{t0}, 6, v{vL}"); a(f"v_lshlrev_b32 v{t0}, 1, v{t0}"); a(f"v_lshl_add_u32 v{t0}, v{t2}, 14, v{t0}")
        a(f"v_lshrrev_b32 v{t1}, 5, v{vL}"); a(f"v_lshl_add_u32 v{t0}, v{t1}, 10, v{t0}")
        a(f"v_bfe_u32 v{t1}, v{vL}, 3, 2"); a(f"v_lshl_add_u32 v{vOw}, v{t1}, 8, v{t0}")
        a(f"v_lshlrev_b32 v{t0}, 10, v{n_}"); a(f"v_lshl_add_u32 v{vQw}, v{kq_}, 3, v{t0}")
        a(f"s_lshl_b32 s{sOW}, s{sW}, 12"); a(f"s_add_u32 s{sOW}, s{sOW}, {OOFF}")
        a(f"s_and_b32 s{sT0}, s{sJ}, 1"); a(f"s_lshl_b32 s{sT1}, s{sT0}, 14"); a(f"s_add_u32 s{sOR}, s{sOW}, s{sT1}"); a(f"s_sub_u32 s{sOR}, s{sOR}, s{sScrW}")
        a(f"s_lshl_b32 s{sSR}, s{sT0}, 10"); a(f"s_add_u32 s{sSR}, s{sSR}, {STOFF}")
        a(f"s_lshr_b32 s{sT1}, s{sJ}, 4"); a(f"s_lshl_b32 s{sT1}, s{sT1}, 11"); a(f"s_add_u32 s{sOW}, s{sOW}, s{sT1}")
        a(f"s_and_b32 s{sT1}, s{sJ}, 15"); a(f"s_lshl_b32 s{sT1}, s{sT1}, 4"); a(f"s_add_u32 s{sOW}, s{sOW}, s{sT1}")
        a(f"s_lshr_b32 s{sT1}, s{sJ}, 1"); a(f"s_lshl_b32 s{sXW}, s{sT1}, 10"); a(f"s_cmp_ge_u32 s{sT1}, 7")
        a(f"s_cselect_b32 s{sT1}, {(128 - 7168) & 0xffffffff}, 0"); a(f"s_add_u32 s{sXW}, s{sXW}, s{sT1}")
        a(f"s_lshl_b32 s{sT0}, s{sT0}, 6"); a(f"s_add_u32 s{sXW}, s{sXW}, s{sT0}")
        a(f"s_lshr_b32 s{sT1}, s{sW}, 1"); a(f"s_lshl_b32 s{sT1}, s{sT1}, 9"); a(f"s_add_u32 s{sXW}, s{sXW}, s{sT1}")
        a(f"s_and_b32 s{sT1}, s{sW}, 1"); a(f"s_lshl_b32 s{sT1}, s{sT1}, 5"); a(f"s_add_u32 s{sXW}, s{sXW}, s{sT1}")
        a(f"s_add_u32 s{sXW}, s{sXW}, {XOFF}")
        a(f"s_and_b32 s{sT0}, s{sW}, 1"); a(f"s_lshl_b32 s{sT0}, s{sT0}, 5"); a(f"s_add_u32 s{sT0}, s{sT0}, {WQA_LDS}")
        a(f"v_lshlrev_b32 v{t0}, 9, v{kq_}"); a(f"v_lshl_add_u32 v{t0}, v{r_}, 6, v{t0}"); a(f"v_lshl_add_u32 v{t0}, v{c_}, 3, v{t0}")
        a(f"v_add_u32 v{vWr}, s{sT0}, v{t0}")
        a(f"v_and_b32 v{t0}, 31, v{vL}"); a(f"v_lshlrev_b32 v{t0}, 5, v{t0}"); a(f"v_lshrrev_b32 v{t1}, 5, v{vL}")
        a(f"v_lshl_add_u32 v{vSr}, v{t1}, 4, v{t0}")
        if self.codepf:
            l = self.newlab("Lpf")
            a(f"s_lshl_b32 s{sT0}, s{sJ}, 2"); a(f"s_add_u32 s{sT0}, s{sT0}, s{sW}")
            a(f"s_cmp_ge_u32 s{sT0}, (L_codeend - {name} + 1023) / 1024"); a(f"s_cbranch_scc1 {l}")
            a(f"s_getpc_b64 s[34:35]")
            self.lab("L_pc")
            a(f"s_lshl_b32 s{sT0}, s{sT0}, 10"); a(f"s_sub_u32 s{sT0}, s{sT0}, L_pc - {name}")
            a(f"s_ashr_i32 s{sT1}, s{sT0}, 31")
            a(f"s_add_u32 s34, s34, s{sT0}"); a(f"s_addc_u32 s35, s35, s{sT1}")
            a(f"v_lshlrev_b32 v{t0}, 4, v{vL}")
            a(f"global_load_dword v{vSink}, v{t0}, s[34:35]")
            self.lab(l)

        self.stamp("setup_end", 7)
        self.thr_on = True
        order2 = [2, 3, 4, 5, 6, 7, 0, 1]
        groups = [("K", "A", m) for m in range(8)] + [("V", "A", m) for m in range(8)] + \
                 [("K", "B", m) for m in order2] + [("V", "B", m) for m in order2]
        extra = {i: [] for i in range(32)}
        extra[self.WQ1].append(("WQ", "A", 0, 6))
        for k in range(4):
            extra[15].append(("WO", "A", 0, k))
            extra[self.WQ2].append(("WO", "B", 1, k))
        if "nowq" in self.exp: extra = {i: [e for e in v if e[0] != "WQ"] for i, v in extra.items()}
        if "nowo" in self.exp: extra = {i: [e for e in v if e[0] != "WO"] for i, v in extra.items()}
        prog = []
        for gi, (kd, ab, m) in enumerate(groups):
            prog += [(kd, ab, m, i) for i in range(4) if not (kd == "K" and ab == "A" and (m, i) in kA)]
            prog += extra[gi]
        ops = {("K", "A") + k: v for k, v in kA.items()}
        copies = [([kA[(m, i)] for m in (2 * t, 2 * t + 1) for i in range(4)], (lambda t=t: self.k_copy(0, t)), ("K", "A", t))
                  for t in range(self.K0 // 8)]
        copied = set()
        st = {"phase": 0, "mark": 0, "pv2": False, "pv2_first": True, "final": False, "smark": 0}
        G = self.gaps

        def need(tags): return all(t in copied for t in tags)
        KA_all = [("K", "A", t) for t in range(4)]
        KB_all = [("K", "B", t) for t in range(4)]
        VA_all = [("V", "A", m) for m in range(8)]

        def pv2_step(m):
            self.v_addr(T + 1)
            self.v_read(m, S, T + 1)
            for dt in range(4):
                a(f"s_waitcnt lgkmcnt({6-2*dt})")
                c = "0" if st["pv2_first"] else vr(D + 4 * dt)
                a(f"{MFMA} {vr(D+4*dt)}, {vr(QP+4*m)}, {vr(S+4*dt)}, {c}")
            st["pv2_first"] = False

        def drain_to(n):
            if len(self.stream) > n: self.wait_for(self.stream[-n - 1])
        def burst_done(): return len(self.stream) - st["smark"] >= self.Thi - self.Tlo or st["final"]
        def polled():
            st["smark"] = len(self.stream); self.T = self.Thi
        def chain():
            ph, pos = st["phase"], self.nops
            if "nochain" in self.exp:
                self.T = self.Tbase
                return False
            def nxt(): st["phase"] += 1; st["mark"] = self.nops; self.log.append((ph, pos))
            def gap(g):
                if st["final"]: return True
                self.T = self.Tlo
                return pos >= st["mark"] + g
            if ph == 0 and pos >= self.K0 + 3:
                l = self.newlab("Lnl")
                a(f"s_cmp_ge_u32 s{sJ}, 4"); a(f"s_cbranch_scc1 {l}"); a(f"s_cmp_lg_u32 s{sW}, 2"); a(f"s_cbranch_scc1 {l}")
                a(f"s_waitcnt vmcnt({self.after(rst)})")
                a(f"s_lshl_b32 s{sT0}, s{sG}, 2"); a(f"s_add_u32 s{sT0}, s{sT0}, s{sS}"); a(f"s_lshl_b32 s{sT0}, s{sT0}, 2")
                a(f"v_mov_b32 v{T+4}, s{sT0}"); a(f"v_mov_b32 v{T+5}, 1")
                a("s_mov_b64 exec, 1")
                a(f"global_store_dword v{T+4}, v{T+5}, {sp(pDBG)} sc1")
                a("s_mov_b64 exec, -1")
                self.stamp("arrive", 9)
                self.lab(l)
                st["phase"] = 0.5; self.log.append((ph, pos)); return True
            if ph == 0.5 and pos >= self.P0:
                self.reset_general()
                st["rstx"] = self.optional()
                st["phase"] = 1; self.log.append((ph, pos)); return True
            if ph == 1 and pos >= self.P1:
                a(f"v_and_b32 v{T+6}, 3, v{vL}"); a(f"s_lshl_b32 s{sT0}, s{sG}, 2"); a(f"v_add_lshl_u32 v{T+6}, v{T+6}, s{sT0}, 2")
                a(f"global_load_dword v{T+7}, v{T+6}, {sp(pDBG)} sc1")
                st["op"] = self.counted()
                nxt(); return True
            if ph == 2:
                if "wqmark" not in st or len(self.stream) - st["wqmark"] < self.Thi - self.Tlo: return False
                self.wait_for(ops[("WQ", "A", 0, 6)])
                self.wait_for(st["op"]); self.wait_for(st["rstx"])
                self.stamp("pre_gate", 10)
                self.lab("GATE_chk")
                a(f"v_cmp_eq_u32 vcc, 0, v{T+7}")
                a("s_cbranch_vccz GATE_ok")
                a(f"s_cmp_eq_u32 s{sTO}, 0"); a("s_cbranch_scc1 GATE_ok"); a(f"s_sub_u32 s{sTO}, s{sTO}, 1")
                a("s_sleep 4")
                a(f"global_load_dword v{T+7}, v{T+6}, {sp(pDBG)} sc1"); a("s_waitcnt vmcnt(0)"); a("s_branch GATE_chk")
                self.lab("GATE_ok")
                self.stamp("pre_bar0", 8)
                a("s_barrier")
                l = self.if_wave(3)
                a(f"s_getreg_b32 s{sT0}, hwreg(HW_REG_XCC_ID, 0, 4)")
                a(f"v_mov_b32 v{T+4}, s{sT0}"); a(f"v_mov_b32 v{T+5}, 0")
                a(f"s_lshl_b32 s{sT0}, s{sJ}, 2"); a(f"s_add_u32 s{sT0}, s{sT0}, s{sLOC}"); a(f"s_add_u32 s{sT0}, s{sT0}, {XCOFF}")
                a("s_mov_b64 exec, 1")
                a(f"buffer_store_dword v{T+4}, v{T+5}, {srd(rWS)}, s{sT0} offen sc1")
                a("s_mov_b64 exec, -1")
                self.lab(l)
                l = self.newlab("Lnq")
                a(f"s_cmp_eq_u32 s{sQM}, 2"); a(f"s_cbranch_scc1 {l}")
                self.call("CSUM")
                l2 = self.if_qm(0)
                self.qp_preload()
                self.call("QP_go")
                self.lab(l2)
                for k in range(4): a(f"v_mov_b32 v{S+k}, -1")
                self.lab(l)
                self.stamp("bar0", 1)
                self.T = self.Tbase
                nxt(); return True
            if ph == 3 and pos >= self.P2:
                drain_to(self.Tlo)
                a(f"s_lshl_b32 s{sA0}, s{sB}, 10"); a(f"s_add_u32 s{sA0}, s{sA0}, s{sLOC}"); a(f"s_sub_u32 s{sA0}, s{sA0}, s{sScrW}")
                a(f"buffer_load_dwordx4 {vr(S+4)}, v{vScr}, {srd(rWS)}, s{sA0} offen sc1")
                self.counted()
                a(f"v_and_b32 v{T+6}, 31, v{vL}"); a(f"v_lshlrev_b32 v{T+6}, 2, v{T+6}"); a(f"s_add_u32 s{sA2}, s{sLOC}, {XCOFF}")
                a(f"buffer_load_dword v{T+7}, v{T+6}, {srd(rWS)}, s{sA2} offen sc1")
                st["op"] = self.counted(); polled()
                nxt(); return True
            if ph == 4 and burst_done() and need(KA_all):
                self.wait_for(st["op"])
                self.lab("XC_chk")
                a(f"v_cmp_eq_u32 vcc, -1, v{T+7}")
                a("s_cbranch_vccz XC_ok")
                a(f"s_cmp_eq_u32 s{sTO}, 0"); a("s_cbranch_scc1 XC_ok"); a(f"s_sub_u32 s{sTO}, s{sTO}, 1")
                a(f"buffer_load_dword v{T+7}, v{T+6}, {srd(rWS)}, s{sA2} offen sc1"); a("s_waitcnt vmcnt(0)"); a("s_branch XC_chk")
                self.lab("XC_ok")
                a(f"v_readfirstlane_b32 s{sT0}, v{T+7}")
                a("s_nop 1")
                a(f"v_cmp_ne_u32 vcc, s{sT0}, v{T+7}")
                a(f"s_mov_b32 s{sMode}, 0")
                a("s_cbranch_vccnz XC_slow")
                a(f"s_mov_b32 s{sMode}, {0 if self.force_slow else 1}")
                self.lab("XC_slow")
                self.stamp("gate", 2)
                l = self.newlab("Lw0")
                a(f"s_cmp_eq_u32 s{sW}, 0"); a(f"s_cbranch_scc1 {l}")
                self.reset_loc(True)
                self.lab(l)
                st["rst2"] = self.optional()
                a("s_nop 1")
                for k in range(4): a(f"v_mov_b32 v{S+k}, v{S+4+k}")
                self.lg0()
                self.check_and_call(self.att_regs, T + 0, "ATT_poll", "ATT_go")
                l = self.newlab("Lna")
                a(f"s_cmp_lg_u32 s{sJ}, 31"); a(f"s_cbranch_scc1 {l}"); a(f"s_cmp_lg_u32 s{sW}, 0"); a(f"s_cbranch_scc1 {l}")
                a(f"s_lshl_b32 s{sT0}, s{sG}, 2"); a(f"v_mov_b32 v{T+6}, s{sT0}"); a(f"v_mov_b32 v{T+7}, 1")
                a("s_mov_b64 exec, 1")
                a(f"global_store_dword v{T+6}, v{T+7}, {sp(pDBG)} offset:128 sc1")
                a("s_mov_b64 exec, -1")
                self.lab(l)
                self.T = self.Tbase
                nxt(); return True
            if ph == 5 and ("V", "A", 7, 3) in ops:
                polled()
                nxt(); return True
            if ph == 6 and burst_done() and not need(VA_all):
                self.wait_for(ops[("V", "A", 7, 3)])
                return True
            if ph == 6 and need(VA_all):
                assert st["rst2"].done
                self.lg0()
                self.stamp("pre_pv1", 11)
                self.call("PV")
                a(f"v_and_b32 v{T+6}, 7, v{vL}"); a(f"v_lshlrev_b32 v{T+6}, 2, v{T+6}")
                a(f"global_load_dword v{T+7}, v{T+6}, {sp(pDBG)} offset:128 sc1"); self.counted()
                a(f"s_mov_b32 s{sPH}, {WO_I}"); a(f"s_mov_b32 s{sAge}, {G[0]}"); a(f"s_mov_b32 s{sKBok}, 0")
                l = self.newlab("Llt28")
                a(f"s_cmp_lt_u32 s{sJ}, 28"); a(f"s_cbranch_scc1 {l}")
                self.to_qp(G[0] + G[1] + G[2] + 3 * self.A)
                self.lab(l)
                st["dyn"] = True
                self.T = self.Tbase
                nxt(); return True
            return False
        LASTPH = 6

        def service():
            prog_made = True
            while prog_made:
                prog_made = False
                for c in list(copies):
                    nd, fn, tag = c
                    if tag[:2] == ("V", "B") and not st["pv2"]: continue
                    if all(o.done for o in nd):
                        fn(); copied.add(tag); copies.remove(c); prog_made = True
                if chain(): prog_made = True

        for it in prog:
            kind, ab, m, i = it
            if kind == "K":
                ops[it] = self.k_dma(rKA if ab == "A" else rKB, m, i)
                if i == 3 and (m & 1) and not (ab == "A" and m // 2 < self.K0 // 8):
                    t = m // 2
                    copies.append(([ops[("K", ab, mm, ii)] for mm in (2 * t, 2 * t + 1) for ii in range(4)],
                                   (lambda b=(0 if ab == "A" else 128), t=t: self.k_copy(b, t)), ("K", ab, t)))
            elif kind == "V":
                ops[it] = self.v_dma(rVA if ab == "A" else rVB, m, i)
                if i == 3:
                    fn = (lambda m=m: self.v_copy(m)) if ab == "A" else (lambda m=m: pv2_step(m))
                    copies.append(([ops[("V", ab, m, ii)] for ii in range(4)], fn, ("V", ab, m)))
            elif kind == "WO":
                ops[it] = self.wo_dma(pWOA if ab == "A" else pWOB, m, i)
                if i == 3:
                    copies.append(([ops[("WO", ab, m, ii)] for ii in range(4)],
                                   (lambda W=(WOA if ab == "A" else WOB), m=m: self.wo_copy(W, m)), ("WO", ab)))
            elif kind == "WQ":
                drain_to(self.Tlo)
                l = self.if_qm(0)
                self.x_first()
                self.lab(l)
                ops[it] = self.wq_all(); st["wqmark"] = len(self.stream); self.T = self.Thi
            elif kind == "PF":
                ops[it] = self.w_prefetch({("A", "wo"): pWOA, ("B", "wo"): pWOB, ("B", "wq"): pWQB}[(ab, m)], m)
            service()
            if st.get("dyn"):
                if ("K", "B", 3) in copied and not st.get("kb1"): a(f"s_mov_b32 s{sKBok}, 1"); st["kb1"] = True
                if need(KB_all) and not st.get("kb2"): a(f"s_mov_b32 s{sKBok}, 2"); st["kb2"] = True
                if need([("WO", "A")]) and kind in "KV" and i in (1, 3):
                    a(f"s_call_b64 {sp(sRET2)}, HND"); st["nh"] = st.get("nh", 0) + 1
                    if st["nh"] == 1: self.log.append(("first_hnd", self.nops))
            if self.posst and (kind, i) in (("WO", 3), ("WQ", 6)):
                self.stamp(f"{kind}{ab}_issued", {"WOA": 56, "WOB": 57, "WQA": 58, "WQB": 59}[kind + ab])
            if self.posst and i == 3 and kind in "KV":
                st["nst"] = st.get("nst", 0) + 1
                self.stamp(f"s{len(self.stream):03d}_{kind}{ab}{m}_ph{st['phase']}", 16 + st["nst"])
        self.log.append(("issue_end", self.nops))
        self.stamp("issue_end", 3)
        if "nochain" in self.exp:
            a("s_waitcnt vmcnt(0)"); self.stamp("stream_end", 4); a("s_branch L_fin")
            self.live = []; copies.clear(); st["phase"] = 99; copied.update(KB_all + [("WO", "B")])
        assert st["phase"] > LASTPH and need(KB_all) and need([("WO", "B")])
        self.lg0()
        self.finish_chain()
        self.stamp("chain_done", 12)
        self.pv_reads()
        for x in self.pv_shadow(): self.emit_shadow_item(x)
        self.warm_loads(T + 1)
        st["pv2"] = True
        service()
        while copies:
            self.wait_for(self.live[0])
            service()
        self.stamp("stream_end", 4)
        self.call("EPI")
        def wo_h3(prefetch=False, final=False):
            l = self.if_j28()
            self.call("WO_poll")
            if final:
                a(f"s_cmp_lg_u32 s{sG}, 0"); a(f"s_cbranch_scc1 {l}")
            if not prefetch: self.call("H3_poll")
            else: self.h3_issue()
            self.lab(l)
            if prefetch:
                self.v_addr(T + 1)
                for m in range(8): self.v_read(m, VAT + 16 * m, T + 1)
                l = self.if_j28()
                a("s_waitcnt vmcnt(0)")
                self.check_and_call(self.h3_regs, T + 0, "H3_poll", "H3_go")
                self.lab(l)
                a("s_waitcnt lgkmcnt(0)")
        def next_layer(w):
            self.advance_layer()
            self.stamp_layer()
            l = self.if_qm(w); self.call("QP_first"); self.lab(l)
            self.call("ATT_poll")
            self.call("PV")
        wo_h3()
        next_layer(0)
        wo_h3(prefetch=True)
        next_layer(1)
        wo_h3(final=True)
        self.lab("L_fin")
        if self.stamps:
            self.stamp("end", 5)
            a(f"s_lshl_b32 s{sT0}, s2, 2"); a(f"s_add_u32 s{sT0}, s{sT0}, s{sW}"); a(f"s_lshl_b32 s{sT0}, s{sT0}, 8")
            a(f"s_add_u32 s{sT0}, s{sT0}, {STAMP_OFF}"); a(f"s_add_u32 s34, s{pWS}, s{sT0}"); a(f"s_addc_u32 s35, s{pWS+1}, 0")
            a(f"v_lshlrev_b32 v{T}, 2, v{vL}")
            a(f"v_writelane_b32 v{vST}, s{sTO}, 15")
            a(f"v_writelane_b32 v{vST}, s{sMode}, 14")
            a(f"global_store_dword v{T}, v{vST}, s[34:35]")
        self.lab("L_end")
        a("s_endpgm")
        self.r_handler(); self.r_att(); self.r_pv(); self.r_wo(); self.r_h3(); self.r_qp(); self.r_cs()
        for l1, ins, l2 in self.slow:
            self.lab(l1); a(ins); a(f"s_branch {l2}")
        self.lab("L_codeend")
        a("s_endpgm")
        a(".fill 256, 4, 0xBF800000")
        self.L += kernel_desc(name, 512, 102, 256)
        return "\n".join(self.L) + "\n"


if __name__ == "__main__":
    import argparse, json
    ap = argparse.ArgumentParser()
    ap.add_argument("-o", default="main.s")
    ap.add_argument("--stamps", action="store_true")
    ap.add_argument("--slow", action="store_true")
    ap.add_argument("-T", type=int, default=10)
    ap.add_argument("--hold", type=int, default=3)
    ap.add_argument("--wpol", default="nt")
    ap.add_argument("--P1", type=int, default=30)
    ap.add_argument("--P2", type=int, default=58)
    ap.add_argument("--pfpol", default="nt")
    ap.add_argument("--gaps", default="2,3,2,2")
    ap.add_argument("--nowarm", action="store_true")
    ap.add_argument("--nocodepf", action="store_true")
    ap.add_argument("--noreset", action="store_true")
    ap.add_argument("--rstpol", default="sc1")
    ap.add_argument("--Thi", type=int, default=13)
    ap.add_argument("--Tlo", type=int, default=5)
    ap.add_argument("--K0", type=int, default=12)
    ap.add_argument("--dbgx", type=int, default=0)
    ap.add_argument("--posst", action="store_true")
    ap.add_argument("--P0", type=int, default=18)
    ap.add_argument("--WQ1", type=int, default=4)
    ap.add_argument("--WQ2", type=int, default=17)
    ap.add_argument("--exp", default="")
    x = ap.parse_args()
    g = Gen(T_=x.T, wpol=x.wpol, stamps=x.stamps, force_slow=x.slow, P1=x.P1, gaps=tuple(int(v) for v in x.gaps.split(",")),
            warm=not x.nowarm, codepf=not x.nocodepf, noreset=x.noreset, rstpol=x.rstpol, Thi=x.Thi, Tlo=x.Tlo, K0=x.K0, dbgx=x.dbgx, posst=x.posst, P2=x.P2, pfpol=x.pfpol, P0=x.P0, WQ1=x.WQ1, WQ2=x.WQ2, hold=x.hold, exp=x.exp)
    s = g.build()
    open(x.o, "w").write(s)
    print("chain log:", g.log)
    if x.stamps: json.dump(g.stamp_names, open(x.o + ".stamps.json", "w"))
```

```python
import sys
from gen_common import *

WQ_LDS = 131072
SCR = WQ_LDS + 28672
LDS_TOTAL = 163840
BASE = 0x100000
GSTRIDE = 53376
QOFF, XCOFF, OOFF, STOFF, XOFF = 0, 8192, 8320, 41088, 43136
X3OFF = 8 * GSTRIDE
LSTRIDE = X3OFF + 229376
XCBASE = BASE + 4 * LSTRIDE
WS_SIZE = XCBASE + 8 * 4096
STAMP_OFF = 0x1000000

sRET2 = 0
sW, sG, sJ, sB, sS = 3, 4, 5, 6, 7
pAX, pKA, pVA, pWQA, pWOA, pKB, pVB, pWQB, pWOB, pOUT, pDBG, pWS = 8, 10, 12, 14, 16, 20, 22, 24, 26, 28, 30, 32
sJQ, sQM = 18, 19
rPF = 20
rKA, rVA, rKB, rVB, rWS, rTMP = 36, 40, 44, 48, 52, 56
sPH, sAge, sKBok, sWOok = 36, 37, 38, 39
sRET = 60
sRing, sScrW = 62, 63
sM = 64
sT0, sT1, sTO, sL = 72, 73, 74, 75
oQR, oST, oOW, oOR, oSR, oX3W, oX3R, oXW, oXR, oQW = range(76, 86)
OFFS = list(range(76, 86))
mP, mX, mQ = 86, 88, 90
rPS = 92
sC, sXN, sSB, sSI = 96, 97, 98, 99
sStream, sWarm = 100, 101
sSENT1, sSENT2, sA0, sA1 = 10, 11, 12, 13
WO_I, WO_C, H3_I, H3_C, QP_I, QP_C, AT_I, AT_C, DONE, Q1_C, Q1_I = range(11)

vL, vKb, vVb0, vVb1, vKr0, vVr0, vScr, vQr, vPw, vPr, vOw, vQw, vX3w, vXw, vXn, vWr, vXres, vIdx, vSr, vST = range(20)
vSink = vST + 0
T = 20
CS = 28
S = 32
D = 48
QP = 64
WOC, WON = 96, 112
VAT = 128

CSCALE = 0x3DB8AA3B
ONES = 0x3F803F80


def srd(r): return f"s[{r}:{r+3}]"
def sp(r): return f"s[{r}:{r+1}]"
def vr(r, n=4): return f"v[{r}:{r+n-1}]"
def ar(r, n=4): return f"a[{r}:{r+n-1}]"
DPP = "row_mask:0xf bank_mask:0xf"
MFMA = "v_mfma_f32_16x16x32_bf16"
SMF = "v_smfmac_f32_16x16x64_bf16"
ODD = "0xaaaaaaaa"


class Op:
    def __init__(self, pos, counted): self.pos, self.counted, self.done = pos, counted, False


class Gen:
    def __init__(self, **k):
        d = dict(T=10, Thi=13, Tlo=5, K0=12, wpol="nt", stamps=False, posst=False, slow=False, P0=18, P1=30, P2=58,
                 gaps=(2, 3, 2, 2), hold=3, WQ1=4, WO2=16, warm=True, codepf=True, iwarm=False, TO=300000, exp="", Ar=2, Tr=2, bal=False, ppol='sc1', qpol='sc1', nat=False, PVB=8, WOA=-1, wqsplit=False, WQB=10, XP=3, rpol='sc1 nt', stop=0, pipe=False)
        d.update(k)
        self.__dict__.update(d)
        self.Tbase = self.T
        self.A = (self.Thi - self.Tlo + 1) // 2
        self.L = []
        self.nlab = 0
        self.stamp_names = {}
        self.nops = 0
        self.live = []
        self.lg_epoch = 0
        self.slot_epoch = [-1] * 8
        self.slot_pending = [False] * 8
        self.log = []
        self.stream = []
        self.thr_on = False
        self.sink = CS + 3 if False else (T + 7 if False else None)

    def a(self, s): self.L.append("    " + s)
    def lab(self, s): self.L.append(s + ":")
    def newlab(self, p="L"):
        self.nlab += 1
        return f"{p}_{self.nlab}"

    def stamp(self, name, idx, layered=False):
        if not self.stamps: return
        if self.posst and layered: return
        a = self.a
        a("s_memrealtime s[34:35]")
        if layered:
            a(f"s_add_u32 s{sSI}, s{sSB}, {idx}")
            for L in range(4): self.stamp_names[16 + L * 12 + idx] = f"L{L+1}.{name}"
        else:
            a(f"s_mov_b32 s{sSI}, {idx}")
            self.stamp_names[idx] = name
        a(f"s_lshl_b64 exec, 1, s{sSI}")
        a("s_waitcnt lgkmcnt(0)")
        a(f"v_mov_b32 v{vST}, s34")
        a("s_mov_b64 exec, -1")

    def counted(self):
        o = Op(self.nops, True); self.nops += 1; self.live.append(o); return o
    def optional(self):
        o = Op(self.nops, False); self.live.append(o); return o
    def after(self, o): return self.nops - 1 - o.pos if o.counted else self.nops - o.pos
    def wait_vm(self, k):
        assert k <= 63
        self.a(f"s_waitcnt vmcnt({k})")
        for o in self.live:
            if self.after(o) >= k: o.done = True
        self.live = [o for o in self.live if not o.done]
    def wait_for(self, o):
        if not o.done: self.wait_vm(self.after(o))
    def throttle(self):
        if self.thr_on and len(self.stream) >= self.T: self.wait_for(self.stream[-self.T])
    def streamop(self):
        o = self.counted(); self.stream.append(o); return o
    def lg0(self):
        self.a("s_waitcnt lgkmcnt(0)")
        self.lg_epoch += 1
    def slot_free(self, m):
        assert not self.slot_pending[m], m
        self.slot_pending[m] = True
        if self.slot_epoch[m] == self.lg_epoch: self.lg0()
    def slot_read(self, m):
        self.slot_epoch[m] = self.lg_epoch
        self.slot_pending[m] = False

    def pub(self, op, data, addr, off, imm=""):
        self.a(f"{op} {data}, v{addr}, {srd(rPF)}, s{off} offen {imm}")
        self.a(f"{op} {data}, v{addr}, {srd(rPS)}, s{off} offen {imm} {self.ppol}")

    def budget(self, go):
        a = self.a
        a(f"s_cmp_lg_u32 s{sWarm}, 0"); a("s_cbranch_scc1 RET")
        a(f"s_cmp_eq_u32 s{sTO}, 0"); a(f"s_cbranch_scc1 {go}")
        a(f"s_sub_u32 s{sTO}, s{sTO}, 1")
    def call(self, target): self.a(f"s_call_b64 {sp(sRET)}, {target}")
    def ret_if_stream(self):
        self.a(f"s_cmp_lg_u32 s{sStream}, 0"); self.a("s_cbranch_scc1 RET")

    def check(self, regs, acc, waits=None, sent=f"s{sSENT2}"):
        a = self.a
        first = True
        for n, (r, c) in enumerate(regs):
            if waits is not None: a(f"s_waitcnt vmcnt({waits[n]})")
            rs = list(range(r, r + c))
            if first:
                a(f"v_max3_u32 v{acc}, v{rs[0]}, v{rs[1]}, v{rs[2]}"); rs = rs[3:]
                first = False
            while len(rs) >= 2:
                a(f"v_max3_u32 v{acc}, v{acc}, v{rs[0]}, v{rs[1]}"); rs = rs[2:]
            if rs: a(f"v_max_u32 v{acc}, v{acc}, v{rs[0]}")
        a(f"v_cmp_eq_u32 vcc, {sent}, v{acc}")

    def pipelined(self, name, nsets, issue, regs, go, acc):
        a = self.a
        nl = len(regs(0))
        self.lab(f"{name}_poll")
        for k in range(nsets): issue(k)
        self.lab(f"{name}_loop")
        for k in range(nsets):
            w0 = nl * nsets - 1
            self.check(regs(k), acc, waits=[w0 - n for n in range(nl)])
            a(f"s_cbranch_vccz {name}_h{k}")
            if k == nsets - 1: self.budget(f"{name}_h{k}")
            issue(k)
        a(f"s_branch {name}_loop")
        for k in list(range(1, nsets)) + [0]:
            self.lab(f"{name}_h{k}")
            go(k)
            if k: a(f"s_branch {name}_go2")
        self.lab(f"{name}_go2")

    wo_st, wo_o = [(QP + 16, 4)], [(QP, 4), (QP + 4, 4), (QP + 8, 4), (QP + 12, 4)]
    def wo_issue_o(self):
        for n in range(4):
            self.a(f"buffer_load_dwordx4 {vr(QP+4*n)}, v{vScr}, {srd(rWS)}, s{oOR} offen offset:{1024*n} sc1")
    def wo_issue(self):
        self.a(f"buffer_load_dwordx4 {vr(QP+16)}, v{vSr}, {srd(rWS)}, s{oSR} offen sc1")
        self.wo_issue_o()
    def wo_scales(self):
        a = self.a
        Lj, M, Mb, e, bp = QP + 16, QP + 20, QP + 21, QP + 22, T + 1
        a(f"v_permlane32_swap_b32 v{Lj+3}, v{M}")
        a(f"v_add_f32 v{Lj}, v{Lj}, v{Lj+1}"); a(f"v_add_f32 v{Lj+2}, v{Lj+2}, v{Lj+3}")
        a(f"v_max_f32_dpp v{Mb}, v{M}, v{M} quad_perm:[1,0,3,2] {DPP}")
        a(f"v_add_f32 v{Lj}, v{Lj}, v{Lj+2}"); a(f"v_and_b32 v{bp}, 48, v{vL}")
        a(f"v_max_f32_dpp v{Mb}, v{Mb}, v{Mb} quad_perm:[2,3,0,1] {DPP}")
        a(f"v_sub_f32 v{e}, v{M}, v{Mb}"); a(f"v_exp_f32 v{e}, v{e}")
        a(f"s_mul_i32 s{sT0}, s{sW}, 1020")
        a(f"v_mul_f32 v{Lj}, v{Lj}, v{e}")
        a(f"v_subrev_u32 v{T+2}, s{sT0}, v{vScr}")
        a("s_nop 0")
        a(f"v_add_f32_dpp v{Lj}, v{Lj}, v{Lj} quad_perm:[1,0,3,2] {DPP}")
        a("s_nop 1")
        a(f"v_add_f32_dpp v{Lj}, v{Lj}, v{Lj} quad_perm:[2,3,0,1] {DPP}")
        a(f"v_rcp_f32 v{Lj}, v{Lj}"); a("s_nop 0"); a(f"v_mul_f32 v{e}, v{e}, v{Lj}")
        for rt in range(2):
            for r in range(4):
                a(f"ds_bpermute_b32 v{QP+24+4*rt+r}, v{bp}, v{e} offset:{(16*rt+r)*4}")
    def r_wo(self):
        a = self.a
        self.lab("WO_poll")
        self.wo_issue()
        self.check(self.wo_st, T + 0, waits=[4], sent=f"s{sSENT1}")
        a("s_cbranch_vccnz WO_r1")
        self.lab("WO_sc")
        self.wo_scales()
        self.lab("WO_o")
        self.check(self.wo_o, T + 0, waits=[3, 2, 1, 0])
        a("s_cbranch_vccnz WO_r2")
        self.lab("WO_go2")
        self.stamp("wo_go", 0, True)
        for rt in range(2):
            for i in range(2):
                for ct in range(2):
                    d = D + 8 * rt + 4 * ct
                    a(f"{MFMA} {vr(d)}, {vr(QP+8*rt+4*i)}, {vr(WOC+8*i+4*ct)}, {'0' if i == 0 else vr(d)}")
        a("s_waitcnt lgkmcnt(0)"); a("s_nop 1")
        for rt in range(2):
            c = QP + 24 + 4 * rt
            d0, d1 = D + 8 * rt, D + 8 * rt + 4
            a(f"v_pk_mul_f32 {vr(d0,2)}, {vr(d0,2)}, {vr(c,2)}")
            if rt == 0: a("s_nop 0")
            a(f"v_pk_mul_f32 {vr(d1,2)}, {vr(d1,2)}, {vr(c,2)}")
            a(f"v_pk_fma_f32 {vr(d0,2)}, {vr(d0+2,2)}, {vr(c+2,2)}, {vr(d0,2)}")
            a(f"v_pk_fma_f32 {vr(d1,2)}, {vr(d1+2,2)}, {vr(c+2,2)}, {vr(d1,2)}")
            a(f"v_add_f32 v{d0}, v{d0}, v{d0+1}"); a(f"v_add_f32 v{d1}, v{d1}, v{d1+1}")
            a(f"ds_write_b32 v{T+2}, v{d0} offset:{(2*rt)*1024}")
            a(f"ds_write_b32 v{T+2}, v{d1} offset:{(2*rt+1)*1024}")
        a("s_waitcnt lgkmcnt(0)")
        a("s_barrier")
        a(f"ds_read_b128 {vr(S)}, v{vScr}")
        a("s_waitcnt lgkmcnt(0)")
        a(f"v_pk_add_f32 {vr(S,2)}, {vr(S,2)}, {vr(S+2,2)}"); a(f"v_add_f32 v{S}, v{S}, v{S+1}")
        a(f"v_min_u32 v{S}, -2, v{S}")
        a(f"buffer_store_dword v{S}, v{vX3w}, {srd(rWS)}, s{oX3W} offen sc1")
        self.stamp("x3_pub", 1, True)
        for k in range(16): a(f"v_swap_b32 v{WOC+k}, v{WON+k}")
        self.ret_if_stream()
    def r_wo_stubs(self):
        a = self.a
        self.lab("WO_r1"); self.budget("WO_sc"); a("s_branch WO_poll")
        self.lab("WO_r2"); self.budget("WO_go2"); self.wo_issue_o(); a("s_branch WO_o")

    def h3_regs(self, k): return [(QP + 8 * k, 4), (QP + 8 * k + 4, 4)]
    def h3_issue(self, k=0):
        self.a(f"buffer_load_dwordx4 {vr(QP+8*k)}, v{vScr}, {srd(rWS)}, s{oX3R} offen sc1")
        self.a(f"buffer_load_dwordx4 {vr(QP+8*k+4)}, v{vScr}, {srd(rWS)}, s{oX3R} offen offset:1024 sc1")
    def r_h3(self):
        a = self.a
        A = S
        def head(k):
            a(f"v_pk_add_f32 {vr(A,2)}, {vr(QP+8*k,2)}, {vr(QP+8*k+4,2)}")
            a(f"v_pk_add_f32 {vr(A+2,2)}, {vr(QP+8*k+2,2)}, {vr(QP+8*k+6,2)}")
        self.pipelined("H3", 3 if self.pipe else 1, self.h3_issue, self.h3_regs, head, T + 0)
        self.stamp("h3_go", 2, True)
        a(f"v_lshlrev_b32 v{T+4}, 16, v{vXres}")
        a(f"v_and_b32 v{T+5}, 0xffff0000, v{vXres}")
        a(f"v_permlane32_swap_b32 v{A}, v{A+2}")
        a(f"v_permlane32_swap_b32 v{A+1}, v{A+3}")
        a(f"v_pk_add_f32 {vr(A,2)}, {vr(A,2)}, {vr(A+2,2)}")
        a(f"s_cmp_eq_u32 s{sL}, 3"); a("s_nop 0")
        a(f"v_add_f32_dpp v{A}, v{A}, v{A} row_ror:8 {DPP}")
        a(f"v_add_f32_dpp v{A+1}, v{A+1}, v{A+1} row_ror:8 {DPP}")
        a(f"v_mov_b64 {vr(A+2,2)}, {vr(A,2)}")
        a("s_nop 1")
        a(f"v_permlane16_swap_b32 v{A}, v{A+2}")
        a(f"v_permlane16_swap_b32 v{A+1}, v{A+3}")
        a(f"v_pk_add_f32 {vr(A,2)}, {vr(A,2)}, {vr(A+2,2)}")
        a(f"v_cvt_pk_bf16_f32 v{A+1}, v{A}, v{A+1}")
        a(f"v_lshlrev_b32 v{A}, 16, v{A+1}")
        a(f"v_and_b32 v{A+1}, 0xffff0000, v{A+1}")
        a(f"v_pk_add_f32 {vr(A,2)}, {vr(A,2)}, {vr(T+4,2)}")
        a(f"v_cvt_pk_bf16_f32 v{vXres}, v{A}, v{A+1}")
        a(f"s_mov_b64 exec, {sp(mX)}")
        a(f"v_min_u32 v{A}, -2, v{vXres}")
        a("s_cbranch_scc1 H3_final")
        self.pub("buffer_store_dword", f"v{A}", vXw, oXW)
        a("s_mov_b64 exec, -1")
        self.stamp("x_pub", 3, True)
    def r_h3_final(self):
        a = self.a
        self.lab("H3_final")
        a(f"buffer_store_dword v{vXres}, v{vXn}, {srd(rTMP)}, s{sXN} offen")
        a("s_mov_b64 exec, -1")
        self.stamp("x_pub", 3, True)
        a("s_branch L_fin")

    def advance(self):
        for o in OFFS: self.a(f"s_add_u32 s{o}, s{o}, {LSTRIDE}")
        self.a(f"s_add_u32 s{sL}, s{sL}, 1")
        if self.stamps: self.a(f"s_add_u32 s{sSB}, s{sSB}, 12")

    qp_regs = [(QP + 4 * i, 4) for i in range(7)]
    WSLOT = [S, S + 4, S + 8, S + 12, D + 8, D + 12, QP + 28]
    WORDER = [k for i in range(7) for k in (i, 7 + i)]
    def w_read(self, k, dst):
        self.a(f"ds_read_b64_tr_b16 {vr(dst,2)}, v{vWr} offset:{k*2048}")
        self.a(f"ds_read_b64_tr_b16 {vr(dst+2,2)}, v{vWr} offset:{k*2048+256}")
    def qp_preload(self):
        for n in range(7): self.w_read(self.WORDER[n], self.WSLOT[n])
        for k in range(2): self.a(f"v_mov_b64 {vr(T+2*k,2)}, 0")
        self.a(f"s_mov_b32 s{sT0}, {ONES}")
    def qp_issue(self):
        a = self.a
        a(f"s_add_u32 s{sA1}, s{oXR}, 4096")
        for i in range(7):
            a(f"buffer_load_dwordx4 {vr(QP+4*i)}, v{vScr}, {srd(rWS)}, s{oXR if i < 4 else sA1} offen offset:{1024*(i%4)} sc1")
    def r_qp(self):
        a = self.a
        self.lab("QP_first")
        self.qp_issue()
        self.qp_preload()
        self.lab("QP_chk")
        self.check(self.qp_regs, T + 4, waits=[6, 5, 4, 3, 2, 1, 0])
        a("s_cbranch_vccnz QP_r")
        self.lab("QP_go")
        self.stamp("qp_go", 4, True)
        a("s_waitcnt lgkmcnt(0)")
        dots = []
        for i in range(7):
            for r in range(4):
                x = QP + 4 * i + r
                dots.append(f"v_dot2c_f32_bf16 v{T+(r&1)}, s{sT0}, v{x}")
                dots.append(f"v_dot2c_f32_bf16 v{T+2+(r&1)}, v{x}, v{x}")
        for n in range(14):
            i, half = n // 2, n % 2
            d = D + 4 * half
            if n >= 7: a(f"s_waitcnt lgkmcnt({2*(13-n)})")
            a(f"{MFMA} {vr(d)}, {vr(self.WSLOT[n%7])}, {vr(QP+4*i)}, {'0' if i == 0 else vr(d)}")
            if n < 7: self.w_read(self.WORDER[n + 7], self.WSLOT[n])
            for _ in range(4): a(dots.pop(0))
        s1, s2, t = T + 0, T + 2, T + 1
        a("s_nop 2")
        a(f"v_add_f32 v{s1}, v{T+0}, v{T+1}"); a(f"v_add_f32 v{s2}, v{T+2}, v{T+3}")
        a(f"v_add_f32_dpp v{D+0}, v{D+4}, v{D+0} row_ror:8 {DPP}")
        a(f"v_add_f32_dpp v{D+1}, v{D+5}, v{D+1} row_ror:8 {DPP}")
        a(f"v_permlane32_swap_b32 v{s1}, v{s2}")
        a(f"v_add_f32 v{s1}, v{s1}, v{s2}")
        a(f"v_mov_b32 v{t}, v{s1}")
        a(f"v_add_f32_dpp v{D+2}, v{D+6}, v{D+2} row_ror:8 {DPP}")
        a(f"v_add_f32_dpp v{D+3}, v{D+7}, v{D+3} row_ror:8 {DPP}")
        a(f"v_permlane16_swap_b32 v{s1}, v{t}")
        a(f"v_add_f32 v{s1}, v{s1}, v{t}")
        a("s_nop 1")
        a(f"v_add_f32_dpp v{s1}, v{s1}, v{s1} row_ror:8 {DPP}")
        a(f"v_mul_f32 v{s1}, 0x3b124925, v{s1}")
        a(f"v_mov_b32 v{t}, v{s1}")
        a("s_nop 1")
        a(f"v_permlane32_swap_b32 v{s1}, v{t}")
        a(f"v_fma_f32 v{t}, -v{s1}, v{s1}, v{t}")
        a(f"v_max_f32 v{t}, 0, v{t}")
        a(f"v_add_f32 v{t}, 0x3727c5ac, v{t}")
        a(f"v_pk_fma_f32 {vr(D,2)}, {vr(T,2)}, {vr(CS,2)}, {vr(D,2)} op_sel_hi:[0,1,1] neg_lo:[1,0,0] neg_hi:[1,0,0]")
        a(f"v_pk_fma_f32 {vr(D+2,2)}, {vr(T,2)}, {vr(CS+2,2)}, {vr(D+2,2)} op_sel_hi:[0,1,1] neg_lo:[1,0,0] neg_hi:[1,0,0]")
        a(f"v_rsq_f32 v{t}, v{t}")
        a("s_nop 0")
        a(f"v_pk_mul_f32 {vr(D+2,2)}, {vr(D+2,2)}, {vr(T,2)} op_sel:[0,1]")
        a(f"v_pk_mul_f32 {vr(D,2)}, {vr(D,2)}, {vr(T,2)} op_sel:[0,1]")
        a(f"v_cvt_pk_bf16_f32 v{D+5}, v{D+2}, v{D+3}")
        a(f"v_cvt_pk_bf16_f32 v{D+4}, v{D+0}, v{D+1}")
        a("s_nop 0")
        a(f"v_mov_b32_dpp v{D+4}, v{D+5} row_ror:8 row_mask:0xf bank_mask:0xc")
        a(f"v_min_u32 v{D+4}, -2, v{D+4}")
        self.pub("buffer_store_dword", f"v{D+4}", vQw, oQW)
        self.stamp("q_pub", 5, True)
        self.ret_if_stream()
    def r_qp_stubs(self):
        self.lab("QP_r"); self.budget("QP_go"); self.qp_issue(); self.a("s_branch QP_chk")

    def att_regs(self, k): return [(S + 4 * k, 4)]
    def att_issue(self, k=0):
        self.a(f"buffer_load_dwordx4 {vr(S+4*k)}, v{vScr}, {srd(rWS)}, s{oQR} offen sc1")
    def r_att(self):
        a = self.a
        self.pipelined("ATT", 3 if self.pipe else 1, self.att_issue, self.att_regs, lambda k: a(f"ds_write_b128 v{vScr}, {vr(S+4*k)}"), T + 0)
        for i in range(4): a(f"ds_read_b128 {vr(QP+4*i)}, v{vQr} offset:{128*i}")
        self.stamp("att_go", 6, True)
        a(f"s_bitcmp1_b32 s{sL}, 0")
        for k in range(8): a(f"v_mov_b64 {vr(D+2*k,2)}, 0")
        a("s_cbranch_scc1 ATT_qkB")
        def sel(t):
            d = D + 4 * t
            return [f"v_add_f32_dpp v{T+h}, v{d+h}, v{d+2+h} quad_perm:[0,1,2,3] row_mask:{1<<t:#x} bank_mask:0xf" for h in range(2)]
        def qk(base):
            fill = {4: [f"v_lshrrev_b32 v{T+5}, 5, v{vL}"], 5: [f"v_lshlrev_b32 v{T+5}, 2, v{T+5}"],
                    6: [f"v_add_u32 v{T+5}, s{sScrW}, v{T+5}"], 11: [sel(0)[0]], 12: [sel(0)[1]]}
            for t in range(4):
                for i in range(4):
                    if t == 0: a(f"s_waitcnt lgkmcnt({3-i})")
                    a(f"{SMF} {vr(D+4*t)}, {vr(QP+4*i)}, {ar(base+32*t+8*i,8)}, v{vIdx}")
                    for x in fill.get(4 * t + i, []): a(x)
        qk(0)
        a("s_branch ATT_sm")
        self.lab("ATT_qkB")
        qk(128)
        self.lab("ATT_sm")
        z = [f"v_mov_b64 {vr(QP+16+2*k,2)}, 0" for k in range(8)]
        def Z(n):
            for _ in range(n): a(z.pop(0) if z else "s_nop 0")
        for x in sel(1): a(x)
        Z(1)
        for x in sel(2): a(x)
        Z(3)
        for x in sel(3): a(x)
        m, t = T + 2, T + 3
        a(f"v_mov_b64 {vr(m,2)}, {vr(T,2)}")
        Z(2)
        a(f"v_permlane32_swap_b32 v{m}, v{t}")
        a(f"v_max_f32 v{m}, v{m}, v{t}")
        a(f"v_mov_b32 v{t}, v{m}")
        Z(2)
        a(f"v_permlane16_swap_b32 v{m}, v{t}")
        a(f"v_max_f32 v{m}, v{m}, v{t}")
        for r in (8, 4, 2, 1):
            a("s_nop 1"); a(f"v_max_f32_dpp v{m}, v{m}, v{m} row_ror:{r} {DPP}")
        a(f"v_mul_f32 v{m}, s{sC}, v{m}")
        a(f"v_mov_b32 v{t}, v{m}")
        a(f"v_mov_b32 v{T+4}, v{m}")
        a(f"ds_write_b32 v{T+5}, v{m} offset:256")
        a(f"v_permlane32_swap_b32 v{m}, v{t}")
        a(f"v_fma_f32 v{T+0}, v{T+0}, s{sC}, -v{m}")
        a(f"v_fma_f32 v{T+1}, v{T+1}, s{sC}, -v{t}")
        a(f"v_exp_f32 v{T+0}, v{T+0}")
        a(f"v_exp_f32 v{T+1}, v{T+1}")
        a(f"s_cmp_lg_u32 s{sStream}, 0")
        a(f"v_cvt_pk_bf16_f32 v{T+2}, v{T+0}, v{T+1}")
        a(f"ds_write_b16 v{vPw}, v{T+2}")
        a(f"ds_write_b16_d16_hi v{vPw}, v{T+2} offset:128")
        a(f"v_permlane32_swap_b32 v{T+0}, v{T+1}")
        a(f"v_add_f32 v{T+0}, v{T+0}, v{T+1}")
        a(f"v_mov_b32 v{T+1}, v{T+0}")
        a(f"v_and_b32 v{T+5}, 0xffffff6f, v{vPr}")
        a(f"v_and_b32 v{T+3}, 0xfffff000, v{vPr}")
        a(f"v_permlane16_swap_b32 v{T+0}, v{T+1}")
        a(f"v_add_f32 v{T+0}, v{T+0}, v{T+1}")
        a("s_waitcnt lgkmcnt(0)")
        if self.stamps and not self.posst:
            self.stamp("att_end", 7, True); a(f"s_cmp_lg_u32 s{sStream}, 0")
        a("s_cbranch_scc1 RET")

    def pv_reads(self):
        a = self.a
        a("s_barrier")
        a(f"s_mov_b64 exec, {sp(mP)}")
        for mp in range(4): a(f"ds_read_b128 {vr(QP+16+4*mp)}, v{vPr} offset:{32*mp}")
        a("s_mov_b64 exec, -1")
        a(f"ds_read_b64 {vr(T+6,2)}, v{T+5} offset:256")
        for w in range(4): a(f"ds_read_b64 {vr(QP+2*w,2)}, v{T+3} offset:{1024*w+256}")
    def pv_shadow(self):
        l, M0, M1, t = T + 0, QP + 8, QP + 9, T + 2
        o = []
        for r in (8, 4, 2, 1):
            o += [f"v_add_f32_dpp v{l}, v{l}, v{l} row_ror:{r} {DPP}", "N", "N"]
        o = o[:-2]
        o += ["W",
              f"v_max3_f32 v{M0}, v{QP}, v{QP+2}, v{QP+4}", f"v_max3_f32 v{M1}, v{QP+1}, v{QP+3}, v{QP+5}",
              f"v_max_f32 v{M0}, v{M0}, v{QP+6}", f"v_max_f32 v{M1}, v{M1}, v{QP+7}",
              f"v_pk_add_f32 {vr(T+6,2)}, {vr(T+6,2)}, {vr(M0,2)} neg_lo:[0,1] neg_hi:[0,1]",
              f"v_exp_f32 v{T+6}, v{T+6}", f"v_exp_f32 v{T+7}, v{T+7}",
              f"v_mov_b32_dpp v{M0}, v{M1} quad_perm:[0,1,2,3] row_mask:0xc bank_mask:0xf",
              f"v_sub_f32 v{t}, v{T+4}, v{M0}",
              f"v_exp_f32 v{t}, v{t}",
              f"v_lshrrev_b32 v{t+1}, 5, v{vL}",
              f"v_mul_f32 v{l}, v{l}, v{t}",
              f"v_lshlrev_b32 v{t+1}, 10, v{t+1}",
              f"v_and_b32 v{t}, 1, v{vL}",
              f"v_mov_b32_dpp v{l}, v{M0} quad_perm:[0,1,2,3] row_mask:0xf bank_mask:0xf ODDSEL",
              f"v_lshl_add_u32 v{t}, v{t}, 4, v{t+1}",
              f"v_min_u32 v{l}, -2, v{l}",
              "STATS"]
        return o
    def emit_shadow_item(self, x):
        a = self.a
        if x == "N": a("s_nop 0")
        elif x == "W": a("s_waitcnt lgkmcnt(0)")
        elif x.endswith("ODDSEL"):
            a(f"v_cndmask_b32 v{T+0}, v{T+0}, v{QP+8}, vcc")
        elif x == "STATS":
            a("s_mov_b32 exec_lo, 3"); a("s_mov_b32 exec_hi, 3")
            self.pub("buffer_store_dword", f"v{T+0}", T + 2, oST)
            a("s_mov_b64 exec, -1")
        else: a(x)
    def odd_vcc(self):
        self.a(f"s_mov_b32 vcc_lo, {ODD}"); self.a(f"s_mov_b32 vcc_hi, {ODD}")
    def r_pv(self):
        a = self.a
        self.lab("PV")
        self.pv_reads()
        for k in range(8): a(f"v_mov_b64 {vr(D+2*k,2)}, 0")
        self.odd_vcc()
        sh = self.pv_shadow()
        for mp in range(4):
            a(f"s_waitcnt lgkmcnt({8-mp})")
            for dt in range(4):
                a(f"{SMF} {vr(D+4*dt)}, {vr(QP+16+4*mp)}, {vr(VAT+32*mp+8*dt,8)}, v{vIdx}")
                if sh and sh[0] == "N": sh.pop(0)
                n = 0
                while sh and n < (2 if mp >= 1 else 1):
                    x = sh.pop(0); self.emit_shadow_item(x); n += 1
                    if x == "STATS": break
        for x in sh: self.emit_shadow_item(x)
        self.lab("EPI")
        a("s_nop 4")
        self.stamp("pv_mfma_end", 8, True)
        for dt in range(4): a(f"v_pk_add_f32 {vr(D+4*dt,2)}, {vr(D+4*dt,2)}, {vr(D+4*dt+2,2)}")
        for dt in (0, 2, 1, 3): a(f"v_pk_mul_f32 {vr(D+4*dt,2)}, {vr(D+4*dt,2)}, {vr(T+6,2)}")
        a(f"v_permlane32_swap_b32 v{D+0}, v{D+8}")
        a(f"v_permlane32_swap_b32 v{D+1}, v{D+9}")
        a(f"v_permlane32_swap_b32 v{D+4}, v{D+12}")
        a(f"v_permlane32_swap_b32 v{D+5}, v{D+13}")
        a(f"v_pk_add_f32 {vr(D,2)}, {vr(D,2)}, {vr(D+8,2)}")
        a(f"v_pk_add_f32 {vr(D+4,2)}, {vr(D+4,2)}, {vr(D+12,2)}")
        a("s_nop 1")
        a(f"v_permlane16_swap_b32 v{D+0}, v{D+4}")
        a(f"v_permlane16_swap_b32 v{D+1}, v{D+5}")
        a(f"v_pk_add_f32 {vr(D,2)}, {vr(D,2)}, {vr(D+4,2)}")
        a(f"v_cndmask_b32 v{T+0}, v{D+1}, v{D+0}, vcc")
        a("s_nop 1")
        a(f"v_mov_b32_dpp v{T+1}, v{T+0} quad_perm:[1,0,3,2] {DPP}")
        a(f"v_cndmask_b32 v{T+2}, v{D+0}, v{T+1}, vcc")
        a(f"v_cndmask_b32 v{T+3}, v{T+1}, v{D+1}, vcc")
        a(f"v_cvt_pk_bf16_f32 v{T+0}, v{T+2}, v{T+3}")
        a(f"v_min_u32 v{T+0}, -2, v{T+0}")
        self.pub("buffer_store_dword", f"v{T+0}", vOw, oOW)
        self.stamp("o_pub", 9, True)
        self.ret_if_stream()

    def v_addr(self, tmp):
        for k in range(1, 4): self.a(f"v_xor_b32 v{tmp+k-1}, {k<<5}, v{vVr0}")
    def v_read(self, mp, dt, dst, tmp):
        ad = vVr0 if dt == 0 else tmp + dt - 1
        for hi in range(2):
            for h in range(2):
                self.a(f"ds_read_b64_tr_b16 {vr(dst+4*hi+2*h,2)}, v{ad} offset:{mp*8192+hi*2048+h*512}")
    def r_vcopy(self):
        for mp in range(4):
            self.lab(f"VC_{mp}")
            self.v_addr(T + 1)
            for dt in range(4): self.v_read(mp, dt, VAT + 32 * mp + 8 * dt, T + 1)
            if mp < 3: self.ret_if_stream()
        self.a(f"s_setpc_b64 {sp(sRET)}")
    def r_pv2(self, waits):
        a = self.a
        self.lab("PV2")
        a(f"s_cmp_lg_u32 s{sWarm}, 0"); a("s_cbranch_scc1 PV2_a")
        self.pv_reads()
        self.odd_vcc()
        for x in self.pv_shadow(): self.emit_shadow_item(x)
        self.lab("PV2_a")
        for k in range(8): a(f"v_mov_b64 {vr(D+2*k,2)}, 0")
        self.v_addr(T + 1)
        BUF = [S, S + 8, QP, QP + 8]
        for n, (mp, w) in enumerate(waits):
            if w is not None:
                l = self.newlab("Lnw")
                a(f"s_cbranch_scc1 {l}"); a(f"s_waitcnt vmcnt({w})"); self.lab(l)
                if n == len(waits) - 1: self.stamp("stream_end", 4); (self.stamps and a(f"s_cmp_lg_u32 s{sWarm}, 0"))
            for dt in range(4):
                if n > 0 and dt == 0: a("s_nop 0")
                self.v_read(mp, dt, BUF[dt], T + 1)
            for dt in range(4):
                a(f"s_waitcnt lgkmcnt({12-4*dt})")
                a(f"{SMF} {vr(D+4*dt)}, {vr(QP+16+4*mp)}, {vr(BUF[dt],8)}, v{vIdx}")
        a("s_cbranch_scc0 EPI")
        a("s_nop 7")
        a(f"s_setpc_b64 {sp(sRET)}")

    def r_cs(self):
        a = self.a
        self.lab("CSUM")
        for k in range(4): a(f"v_mov_b32 v{T+k}, {ONES}")
        for k in range(4): self.w_read(k, S + 4 * k)
        for k in range(14):
            a(f"s_waitcnt lgkmcnt({min(6, 2*(13-k))})")
            a(f"{MFMA} {vr(CS)}, {vr(S+4*(k%4))}, {vr(T)}, {'0' if k == 0 else vr(CS)}")
            if k + 4 < 14: self.w_read(k + 4, S + 4 * (k % 4))
        a("s_nop 7")
        a(f"s_setpc_b64 {sp(sRET)}")

    def r_loop(self):
        a = self.a
        self.lab("LOOP")
        a(f"s_cmp_ge_u32 s{sJ}, 28"); a("s_cbranch_scc1 L_skipwo")
        self.r_wo()
        a(f"s_cmp_eq_u32 s{sL}, 1"); a("s_cbranch_scc1 H3_poll")
        a(f"s_cmp_eq_u32 s{sL}, 2"); a("s_cbranch_scc1 L_vpf")
        a(f"s_cmp_lg_u32 s{sG}, 0"); a("s_cbranch_scc1 L_fin")
        self.r_h3()
        self.lab("ADV")
        self.advance()
        self.ret_if_stream()
        a(f"s_and_b32 s{sT0}, s{sL}, 1"); a(f"s_cmp_lg_u32 s{sT0}, s{sQM}"); a("s_cbranch_scc1 ATT_poll")
        self.r_qp()
        self.r_att()
        self.r_pv()
        a("s_branch LOOP")
        self.lab("RET")
        a(f"s_setpc_b64 {sp(sRET)}")
        self.lab("L_vpf")
        self.call("VC_0")
        self.tmp_srd(pOUT, 7168)
        a("s_branch H3_poll")
        self.lab("L_skipwo")
        a(f"s_cmp_eq_u32 s{sL}, 3"); a("s_cbranch_scc1 L_fin")
        a(f"s_cmp_eq_u32 s{sL}, 1"); a("s_cbranch_scc1 ADV")
        self.call("VC_0")
        a("s_branch ADV")
        self.r_h3_final(); self.r_wo_stubs(); self.r_qp_stubs()

    def to_qp(self, delay):
        a = self.a
        a(f"s_cmp_eq_u32 s{sQM}, 1")
        a(f"s_cselect_b32 s{sPH}, {QP_I}, {AT_I}")
        a(f"s_cselect_b32 s{sAge}, {delay}, {delay + self.gaps[3] + self.A}")
    def q1_issue(self):
        a = self.a
        a(f"v_lshrrev_b32 v{T+5}, 1, v{vL}"); a(f"v_lshlrev_b32 v{T+5}, 8, v{T+5}"); a(f"v_and_b32 v{T+6}, 1, v{vL}")
        a(f"v_lshl_add_u32 v{T+5}, v{T+6}, 4, v{T+5}")
        a(f"s_mul_i32 s{sA1}, s{sG}, {GSTRIDE}"); a(f"s_lshl_b32 s{sT1}, s{sB}, 5"); a(f"s_add_u32 s{sA1}, s{sA1}, s{sT1}"); a(f"s_add_u32 s{sA1}, s{sA1}, {BASE}")
        a(f"buffer_load_dwordx4 {vr(S)}, v{T+5}, {srd(rWS)}, s{sA1} offen {self.qpol}")
        a(f"v_and_b32 v{T+6}, 31, v{vL}"); a(f"v_lshlrev_b32 v{T+6}, 7, v{T+6}")
        a(f"s_lshl_b32 s{sA1}, s{sG}, 12"); a(f"s_add_u32 s{sA1}, s{sA1}, {XCBASE}")
        a(f"buffer_load_dword v{T+7}, v{T+6}, {srd(rWS)}, s{sA1} offen {self.qpol}")
    def r_q1(self):
        a = self.a
        self.lab("Q1_poll")
        self.q1_issue()
        a("s_waitcnt vmcnt(0)")
        self.check([(S, 4), (T + 7, 1)], T + 0)
        a("s_cbranch_vccz Q1_go")
        a(f"s_cmp_eq_u32 s{sTO}, 0"); a("s_cbranch_scc1 Q1_go"); a(f"s_sub_u32 s{sTO}, s{sTO}, 1"); a("s_branch Q1_poll")
        self.lab("Q1_go")
        a(f"v_readfirstlane_b32 s{sT0}, v{T+7}")
        a("s_nop 1")
        a(f"v_cmp_ne_u32 vcc, s{sT0}, v{T+7}")
        a("s_cbranch_vccnz XC_slow")
        if not self.slow:
            a(f"s_mov_b32 s{rPF+2}, {WS_SIZE}"); a(f"s_mov_b32 s{rPS+2}, 0")
        self.lab("XC_slow")
        self.stamp("gate", 2)
        l = self.newlab("Lw0")
        a(f"s_cmp_eq_u32 s{sW}, 0"); a(f"s_cbranch_scc1 {l}"); a(f"s_cmp_ge_u32 s{sJ}, 28"); a(f"s_cbranch_scc1 {l}")
        self.reset_loc()
        self.lab(l)
        l = self.newlab("Lna")
        a(f"s_cmp_lg_u32 s{sJ}, 31"); a(f"s_cbranch_scc1 {l}"); a(f"s_cmp_lg_u32 s{sW}, 0"); a(f"s_cbranch_scc1 {l}")
        a(f"s_lshl_b32 s{sT0}, s{sG}, 2"); a(f"v_mov_b32 v{T+6}, s{sT0}"); a(f"v_mov_b32 v{T+7}, 1")
        a("s_mov_b64 exec, 1")
        a(f"global_store_dword v{T+6}, v{T+7}, {sp(pDBG)} offset:128 sc1")
        a("s_mov_b64 exec, -1")
        self.lab(l)
        a("s_waitcnt lgkmcnt(0)")
        self.call("ATT_h0")
        a(f"s_mov_b32 s{sPH}, {DONE}")
        a(f"s_setpc_b64 {sp(sRET2)}")
    def r_handler(self):
        a = self.a
        G, A, Ar = self.gaps, self.A, self.Ar
        ret = f"s_setpc_b64 {sp(sRET2)}"
        self.lab("HND")
        a(f"s_cmp_eq_u32 s{sAge}, 0"); a("s_cbranch_scc1 HND_act")
        a(f"s_sub_u32 s{sAge}, s{sAge}, 1")
        a(f"s_bitcmp1_b32 s{sPH}, 0"); a("s_cbranch_scc1 HND_ret")
        a(f"s_cmp_gt_u32 s{sAge}, {self.hold}"); a("s_cbranch_scc1 HND_ret")
        a(f"s_waitcnt vmcnt({self.Tlo - 2})"); a(ret)
        self.lab("HND_act")
        for stt, nm in ((DONE, "HND_ret"), (Q1_I, "H_Q1I"), (Q1_C, "H_Q1C"), (WO_C, "H_WOC"), (H3_I, "H_H3I"), (H3_C, "H_H3C"), (QP_I, "H_QPI"), (QP_C, "H_QPC"), (AT_I, "H_ATI0"), (AT_C, "H_ATC")):
            a(f"s_cmp_eq_u32 s{sPH}, {stt}"); a(f"s_cbranch_scc1 {nm}")
        def issue(lab, fn, nxt_):
            self.lab(lab); a(f"s_waitcnt vmcnt({self.Tlo})"); a(f"s_mov_b32 s{sAge}, {A-1}"); a(f"s_mov_b32 s{sA0}, 0"); a(f"s_branch {lab}x")
            self.lab(lab + "r"); a(f"s_waitcnt vmcnt({self.Tr})"); a(f"s_mov_b32 s{sAge}, {Ar-1}"); a(f"s_mov_b32 s{sA0}, 1")
            self.lab(lab + "x"); fn(); a(f"s_mov_b32 s{sPH}, {nxt_}"); a(ret)
        def landed(lab):
            self.lab(lab)
            l = self.newlab("Lw")
            a(f"s_waitcnt vmcnt({2*A})")
            a(f"s_cmp_eq_u32 s{sA0}, 0"); a(f"s_cbranch_scc1 {l}"); a(f"s_waitcnt vmcnt({2*Ar})"); self.lab(l)
        issue("H_WOI", self.wo_issue, WO_C)
        landed("H_WOC")
        self.check(self.wo_st + self.wo_o, T + 0); a("s_cbranch_vccnz H_WOIr")
        a(f"s_cmp_eq_u32 s{sWOok}, 0"); a("s_cbranch_scc1 HND_ret")
        a("s_waitcnt lgkmcnt(0)")
        self.gate2("G2")
        self.wo_scales()
        self.call("WO_go2")
        a(f"s_mov_b32 s{sPH}, {H3_I}"); a(f"s_mov_b32 s{sAge}, {G[1]}"); a(ret)
        issue("H_H3I", self.h3_issue, H3_C)
        landed("H_H3C")
        self.check(self.h3_regs(0), T + 0); a("s_cbranch_vccnz H_H3Ir")
        self.call("H3_h0")
        self.to_qp(G[2])
        a(ret)
        issue("H_QPI", self.qp_issue, QP_C)
        landed("H_QPC")
        self.check(self.qp_regs, T + 4); a("s_cbranch_vccnz H_QPIr")
        self.qp_preload()
        self.call("QP_go")
        a(f"s_mov_b32 s{sPH}, {AT_I}"); a(f"s_mov_b32 s{sAge}, {G[3]}"); a(ret)
        self.lab("H_ATI0")
        a(f"s_cmp_eq_u32 s{sKBok}, 0"); a("s_cbranch_scc1 HND_ret")
        issue("H_ATI", self.att_issue, AT_C)
        landed("H_ATC")
        self.check(self.att_regs(0), T + 0); a("s_cbranch_vccnz H_ATIr")
        a(f"s_cmp_lt_u32 s{sKBok}, 2"); a("s_cbranch_scc1 HND_ret")
        a("s_waitcnt lgkmcnt(0)")
        self.call("ATT_h0")
        a(f"s_mov_b32 s{sPH}, {DONE}")
        self.lab("HND_ret")
        a(ret)
        An = (self.Tbase + 1) // 2
        self.lab("H_Q1C")
        a(f"s_waitcnt vmcnt({2*An})")
        self.check([(S, 4), (T + 7, 1)], T + 0); a("s_cbranch_vccz Q1_go")
        self.lab("H_Q1I")
        self.q1_issue(); a(f"s_mov_b32 s{sPH}, {Q1_C}"); a(f"s_mov_b32 s{sAge}, {An-1}"); a(ret)
        self.r_q1()
    def gate2(self, nm):
        a = self.a
        self.lab(f"{nm}_chk")
        a(f"v_cmp_eq_u32 vcc, 0, v{T+7}")
        a(f"s_cbranch_vccz {nm}_ok")
        a(f"s_cmp_eq_u32 s{sTO}, 0"); a(f"s_cbranch_scc1 {nm}_ok"); a(f"s_sub_u32 s{sTO}, s{sTO}, 1")
        a("s_sleep 4")
        a(f"global_load_dword v{T+7}, v{T+6}, {sp(pDBG)} offset:128 sc1"); a("s_waitcnt vmcnt(0)"); a(f"s_branch {nm}_chk")
        self.lab(f"{nm}_ok")
    def finish_chain(self):
        a = self.a
        l1, l2, l3, l4 = (self.newlab("Lfin") for _ in range(4))
        a(f"s_cmp_gt_u32 s{sPH}, {WO_C}"); a(f"s_cbranch_scc1 {l1}")
        a("s_waitcnt vmcnt(0)")
        self.gate2("F2")
        self.call("WO_poll")
        self.lab(l1)
        a(f"s_cmp_gt_u32 s{sPH}, {H3_C}"); a(f"s_cbranch_scc1 {l2}")
        self.call("H3_poll")
        self.to_qp(0)
        self.lab(l2)
        a(f"s_cmp_gt_u32 s{sPH}, {QP_C}"); a(f"s_cbranch_scc1 {l3}")
        self.call("QP_first")
        self.lab(l3)
        a(f"s_cmp_eq_u32 s{sPH}, {DONE}"); a(f"s_cbranch_scc1 {l4}")
        self.call("ATT_poll")
        a("s_waitcnt vmcnt(0)")
        self.lab(l4)

    def k_dma(self, r, m, i):
        a = self.a
        if i == 0:
            self.slot_free(m)
            a(f"s_add_u32 m0, s{sRing}, {m*4096}")
        x = (8 * (m & 1) + 2 * i) << 4
        if x: a(f"v_xor_b32 v{D+15}, {x}, v{vKb}")
        elif i == 0: a("s_nop 0")
        self.throttle()
        a(f"buffer_load_dwordx4 v{D+15 if x else vKb}, {srd(r)}, s{sM+m} offen offset:{i*1024} nt lds")
        return self.streamop()
    def k_copy(self, base, t):
        a = self.a
        for k in range(1, 4): a(f"v_xor_b32 v{D+11+k}, {k<<6}, v{vKr0}")
        for i in range(8):
            ad = vKr0 if i % 4 == 0 else D + 11 + i % 4
            a(f"ds_read_b128 {ar(base+32*t+4*i)}, v{ad} offset:{t*8192+(i//4)*256}")
        self.slot_read(2 * t); self.slot_read(2 * t + 1)
    def v_dma(self, r, m, w):
        a = self.a
        if w == 0:
            self.slot_free(m)
            a(f"s_add_u32 m0, s{sRing}, {m*4096}")
            a("s_nop 0")
        else:
            a(f"s_add_u32 s{sT0}, s{sM+m}, {3072*w}")
        self.throttle()
        a(f"buffer_load_dwordx4 v{vVb0+(m&1)}, {srd(r)}, s{sM+m if w == 0 else sT0} offen offset:{w*1024} nt lds")
        return self.streamop()
    def v_copy(self, mp):
        self.call(f"VC_{mp}"); self.slot_read(2 * mp); self.slot_read(2 * mp + 1)
    def tmp_srd(self, p, size):
        a = self.a
        a(f"s_mov_b32 s{rTMP}, s{p}"); a(f"s_mov_b32 s{rTMP+1}, s{p+1}"); a(f"s_mov_b32 s{rTMP+2}, {size}"); a(f"s_mov_b32 s{rTMP+3}, 0x20000")
    def wo_dma(self, p, slot):
        a = self.a
        self.slot_free(slot)
        l = self.if_j28()
        self.tmp_srd(p, 4096 * 896)
        a(f"s_lshl_b32 s{sT0}, s{sG}, 1"); a(f"s_and_b32 s{sT1}, s{sJ}, 1"); a(f"s_add_u32 s{sT0}, s{sT0}, s{sT1}")
        a(f"s_lshl_b32 s{sT0}, s{sT0}, 2"); a(f"s_add_u32 s{sT0}, s{sT0}, s{sW}"); a(f"s_mul_i32 s{sT0}, s{sT0}, {64*896}")
        a(f"s_lshr_b32 s{sT1}, s{sJ}, 1"); a(f"s_lshl_b32 s{sT1}, s{sT1}, 6"); a(f"s_add_u32 s{sT0}, s{sT0}, s{sT1}")
        a(f"v_lshrrev_b32 v{D+15}, 2, v{vL}"); a(f"v_mul_u32_u24 v{D+15}, 896, v{D+15}")
        a(f"v_and_b32 v{D+14}, 3, v{vL}"); a(f"v_lshl_add_u32 v{D+15}, v{D+14}, 4, v{D+15}")
        for kk in range(4):
            a(f"s_add_u32 m0, s{sRing}, {slot*4096+kk*1024}")
            if kk: a(f"s_add_u32 s{sT0}, s{sT0}, {16*896}")
            else: a("s_nop 0")
            a(f"buffer_load_dwordx4 v{D+15}, {srd(rTMP)}, s{sT0} offen {self.wpol} lds")
        self.lab(l)
        return self.optional()
    def wo_copy(self, W, slot):
        a = self.a
        a(f"v_lshrrev_b32 v{D+12}, 4, v{vL}"); a(f"v_lshlrev_b32 v{D+12}, 9, v{D+12}")
        a(f"v_bfe_u32 v{D+13}, v{vL}, 2, 2"); a(f"v_lshl_add_u32 v{D+12}, v{D+13}, 6, v{D+12}")
        a(f"v_and_b32 v{D+13}, 3, v{vL}"); a(f"v_lshl_add_u32 v{D+12}, v{D+13}, 3, v{D+12}")
        a(f"v_add_u32 v{D+12}, s{sRing}, v{D+12}")
        for i in range(2):
            for ct in range(2):
                for h in range(2):
                    a(f"ds_read_b64_tr_b16 {vr(W+8*i+4*ct+2*h,2)}, v{D+12} offset:{slot*4096+i*2048+h*256+ct*32}")
        self.slot_read(slot)
    def wq_all(self, only=None):
        a = self.a
        skip = None
        if only is not False and only is not None:
            skip = self.newlab("Lwq")
            a(f"s_cmp_ge_u32 s{sA0}, 16"); a(f"s_cbranch_scc{1 - only} {skip}")
        a(f"s_cmp_ge_u32 s{sA0}, 16")
        a(f"s_cselect_b32 s{rTMP}, s{pWQB}, s{pWQA}"); a(f"s_cselect_b32 s{rTMP+1}, s{pWQB+1}, s{pWQA+1}")
        a(f"s_mov_b32 s{rTMP+2}, {448*8192}"); a(f"s_mov_b32 s{rTMP+3}, 0x20000")
        nq = 7
        if self.bal:
            a(f"s_mul_i32 s{sT1}, s{sW}, 4"); a(f"s_cmp_eq_u32 s{sW}, 3"); a(f"s_cselect_b32 s{sT1}, 18, s{sT1}")
            nq = 10
        else:
            a(f"s_mul_i32 s{sT1}, s{sW}, 7")
        a(f"s_lshl_b32 s{sT0}, s{sT1}, 17"); a(f"s_lshl_b32 s{sT1}, s{sT1}, 10"); a(f"s_add_u32 s{sA1}, s{sT1}, {WQ_LDS}")
        a(f"s_lshl_b32 s{sT1}, s{sG}, 10"); a(f"s_add_u32 s{sT0}, s{sT0}, s{sT1}")
        a(f"s_and_b32 s{sT1}, s{sA0}, 15"); a(f"s_lshl_b32 s{sT1}, s{sT1}, 6"); a(f"s_add_u32 s{sT0}, s{sT0}, s{sT1}")
        a(f"v_lshrrev_b32 v{D+15}, 2, v{vL}"); a(f"v_lshlrev_b32 v{D+15}, 13, v{D+15}")
        a(f"v_and_b32 v{D+14}, 3, v{vL}"); a(f"v_lshl_add_u32 v{D+15}, v{D+14}, 4, v{D+15}")
        o = None
        short = None
        for q in range(nq):
            if self.bal and q == 4:
                short = self.newlab("Lwqs")
                a(f"s_cmp_lt_u32 s{sW}, 2"); a(f"s_cbranch_scc1 {short}")
            a(f"s_add_u32 m0, s{sA1}, {q*1024}")
            if q: a(f"s_add_u32 s{sT0}, s{sT0}, {1 << 17}")
            else: a("s_nop 0")
            a(f"buffer_load_dwordx4 v{D+15}, {srd(rTMP)}, s{sT0} offen {self.wpol} lds")
            if skip is None and short is None: o = self.counted()
        if short is not None: self.lab(short)
        if skip is not None: self.lab(skip)
        if skip is not None or short is not None: o = self.optional()
        return o
    def role(self):
        self.a(f"s_mov_b32 s{sA0}, s{sJ}"); self.a(f"s_lshr_b32 s{sT0}, s{sJ}, 1")
        for v, d in ((3, 22), (14, -22), (11, 8), (15, -8)):
            self.a(f"s_add_i32 s{sT1}, s{sJ}, {d}"); self.a(f"s_cmp_eq_u32 s{sT0}, {v}"); self.a(f"s_cselect_b32 s{sA0}, s{sT1}, s{sA0}")
        self.a(f"s_and_b32 s{sJQ}, s{sA0}, 15"); self.a(f"s_lshl_b32 s{sJQ}, s{sJQ}, 1"); self.a(f"s_add_u32 s{sJQ}, s{sJQ}, s{sW}")
        self.a(f"s_lshr_b32 s{sQM}, s{sA0}, 4"); self.a(f"s_cmp_ge_u32 s{sW}, 2"); self.a(f"s_cselect_b32 s{sQM}, 2, s{sQM}")
    def x_first(self):
        a = self.a
        t0, t1 = D + 14, D + 15
        a(f"v_and_b32 v{t0}, 7, v{vL}"); a(f"v_mul_u32_u24 v{t0}, 896, v{t0}"); a(f"v_bfe_u32 v{t1}, v{vL}, 3, 1"); a(f"v_mul_u32_u24 v{t1}, 448, v{t1}")
        a(f"v_add_u32 v{t0}, v{t0}, v{t1}"); a(f"v_and_b32 v{t1}, 48, v{vL}"); a(f"v_add_u32 v{t0}, v{t0}, v{t1}")
        self.tmp_srd(pAX, 7168)
        for i in range(7):
            a(f"buffer_load_dwordx4 {vr(QP+4*i)}, v{t0}, {srd(rTMP)}, 0 offen offset:{64*i}")
    def loc0(self, dst):
        a = self.a
        a(f"s_mul_i32 s{dst}, s{sG}, {GSTRIDE}"); a(f"s_add_u32 s{dst}, s{dst}, {BASE}"); a(f"s_sub_u32 s{dst}, s{dst}, s{sScrW}")
    SENT = S + 12
    def reset_leader(self):
        a = self.a
        l2 = self.newlab("Ldn")
        i1 = f"buffer_store_dwordx4 {vr(self.SENT)}, v{vScr}, {srd(rWS)}, s{sT0} offen"
        a(f"s_cmp_lg_u32 s{sB}, 4"); a(f"s_cbranch_scc1 {l2}")
        a(f"s_cmp_lg_u32 s{sW}, 2"); a(f"s_cbranch_scc1 {l2}")
        self.loc0(sA1)
        a(f"s_lshl_b32 s{sT1}, s{sS}, 11"); a(f"s_add_u32 s{sT0}, s{sA1}, s{sT1}")
        a(i1 + " sc1"); a(i1 + " offset:1024 sc1")
        a(f"s_lshl_b32 s{sT0}, s{sG}, 2"); a(f"s_add_u32 s{sT0}, s{sT0}, s{sS}"); a(f"s_lshl_b32 s{sT0}, s{sT0}, 10")
        a(f"s_add_u32 s{sT0}, s{sT0}, {XCBASE}"); a(f"s_sub_u32 s{sT0}, s{sT0}, s{sScrW}")
        a(i1 + " sc1")
        self.lab(l2)
    def reset_general(self):
        a = self.a
        l = self.if_wave(0); l2 = self.newlab("Ldn")
        self.loc0(sT0)
        a(f"s_mul_i32 s{sT1}, s{sJ}, 1408"); a(f"s_add_u32 s{sT0}, s{sT0}, s{sT1}"); a(f"s_add_u32 s{sT0}, s{sT0}, {OOFF}")
        i1 = f"buffer_store_dwordx4 {vr(self.SENT)}, v{vScr}, {srd(rWS)}, s{sT0} offen"
        a(i1 + " " + self.rpol); a("s_mov_b64 exec, 0xffffff"); a(i1 + " offset:1024 " + self.rpol); a("s_mov_b64 exec, -1")
        a(f"s_branch {l2}")
        self.lab(l)
        a(f"s_mul_i32 s{sT0}, s{sW}, {LSTRIDE}"); a(f"s_mul_i32 s{sT1}, s2, 896"); a(f"s_add_u32 s{sT0}, s{sT0}, s{sT1}")
        a(f"s_add_u32 s{sT0}, s{sT0}, {BASE + X3OFF}"); a(f"s_sub_u32 s{sT0}, s{sT0}, s{sScrW}")
        if "nox3" in self.exp: a(f"s_branch {l2}")
        a("s_mov_b32 exec_hi, 0xffffff"); a(i1 + " " + self.rpol); a("s_mov_b32 exec_hi, -1")
        self.lab(l2)
        if "noown" in self.exp: return
        l = self.if_j28()
        a(f"buffer_store_dword v{self.SENT}, v{vX3w}, {srd(rWS)}, s{oX3W} offen {self.rpol}")
        self.lab(l)
    def reset_loc(self):
        a = self.a
        self.loc0(sT0)
        a(f"s_mul_i32 s{sT1}, s{sW}, {LSTRIDE}"); a(f"s_add_u32 s{sT0}, s{sT0}, s{sT1}")
        a(f"s_mul_i32 s{sT1}, s{sJ}, 1808"); a(f"s_add_u32 s{sT0}, s{sT0}, s{sT1}")
        self.pub("buffer_store_dwordx4", vr(self.SENT), vScr, sT0)
        a("s_mov_b32 exec_hi, 0x1ffff"); self.pub("buffer_store_dwordx4", vr(self.SENT), vScr, sT0, "offset:1024"); a("s_mov_b32 exec_hi, -1")
    def warm_loads(self, t0, sink):
        if not self.warm: return
        a = self.a
        l = self.if_wave(3)
        a(f"v_mul_u32_u24 v{t0+1}, 79, v{vL}"); a(f"v_lshrrev_b32 v{t0+1}, 10, v{t0+1}")
        a(f"v_mul_u32_u24 v{t0}, 13, v{t0+1}"); a(f"v_sub_u32 v{t0}, v{vL}, v{t0}")
        a(f"s_mov_b32 s{sT0}, {LSTRIDE}"); a(f"v_mul_lo_u32 v{t0+1}, v{t0+1}, s{sT0}")
        a(f"v_lshl_add_u32 v{t0+1}, v{t0}, 7, v{t0+1}")
        a(f"s_mul_i32 s{sT0}, s{sG}, {GSTRIDE}"); a(f"s_mul_i32 s{sT1}, s{sJ}, {13*128}"); a(f"s_add_u32 s{sT0}, s{sT0}, s{sT1}")
        a(f"s_add_u32 s{sT0}, s{sT0}, {BASE}")
        a(f"buffer_load_dword v{sink}, v{t0+1}, {srd(rWS)}, s{sT0} offen")
        self.lab(l)
    def if_wave(self, w):
        l = self.newlab("Lnw")
        self.a(f"s_cmp_lg_u32 s{sW}, {w}"); self.a(f"s_cbranch_scc1 {l}")
        return l
    def if_qm(self, p):
        l = self.newlab("Lnq")
        self.a(f"s_cmp_lg_u32 s{sQM}, {p}"); self.a(f"s_cbranch_scc1 {l}")
        return l
    def if_j28(self):
        l = self.newlab("Lj28")
        self.a(f"s_cmp_ge_u32 s{sJ}, 28"); self.a(f"s_cbranch_scc1 {l}")
        return l

    def build(self):
        name = KN + "_kernel"
        self.L = header([f"; @launch grid=(256,1,1) block=(256,1,1) lds={LDS_TOTAL}"]) + kernel_begin(name)
        a = self.a
        a("s_cmp_ge_u32 s2, 256"); a("s_cbranch_scc1 L_end")
        a("s_load_dwordx16 s[8:23], s[0:1], 0")
        a("s_load_dwordx8 s[24:31], s[0:1], 64")
        a("s_load_dwordx2 s[32:33], s[0:1], 96")
        a(f"v_lshrrev_b32 v1, 6, v0"); a(f"v_and_b32 v{vL}, 63, v0"); a(f"v_readfirstlane_b32 s{sW}, v1")
        a(f"s_and_b32 s{sG}, s2, 7"); a(f"s_lshr_b32 s{sJ}, s2, 3"); a(f"s_lshr_b32 s{sB}, s2, 5"); a(f"s_and_b32 s{sS}, s{sJ}, 3")
        a(f"s_lshl_b32 s{sRing}, s{sW}, 15"); a(f"s_lshl_b32 s{sScrW}, s{sW}, 10"); a(f"s_add_u32 s{sScrW}, s{sScrW}, {SCR}")
        for m in range(8): a(f"s_mov_b32 s{sM+m}, {m*65536}")
        t0, t1, t2 = T, T + 1, T + 2
        a(f"s_lshl_b32 s{sT0}, s{sS}, 14"); a(f"s_lshl_b32 s{sT1}, s{sW}, 12"); a(f"s_add_u32 s{sT1}, s{sT0}, s{sT1}")
        a(f"v_lshrrev_b32 v{t0}, 5, v{vL}"); a(f"v_and_b32 v{t1}, 31, v{vL}"); a(f"v_xor_b32 v{t1}, v{t1}, v{t0}")
        a(f"v_lshlrev_b32 v{t0}, 9, v{t0}"); a(f"v_lshl_add_u32 v{t0}, v{t1}, 4, v{t0}"); a(f"v_add_u32 v{vKb}, s{sT1}, v{t0}")
        a(f"s_lshl_b32 s{sT0}, s{sB}, 3"); a(f"s_add_u32 s{sT0}, s{sT0}, s{sG}"); a(f"s_lshl_b32 s{sT0}, s{sT0}, 21")
        a(f"s_add_u32 s{sT0}, s{sT0}, 0x180000")
        if self.stamps:
            a(f"v_mov_b32 v{vST}, 0"); a(f"s_mov_b32 s{sSB}, 16")
            a("s_memtime s[100:101]")
        a("s_waitcnt lgkmcnt(0)")
        if self.stamps: a(f"v_writelane_b32 v{vST}, s100, 13")
        self.stamp("start", 0)
        for r, p in ((rKA, pKA), (rVA, pVA), (rKB, pKB), (rVB, pVB)):
            a(f"s_add_u32 s{r}, s{p}, s{sT0}"); a(f"s_addc_u32 s{r+1}, s{p+1}, 0"); a(f"s_mov_b32 s{r+2}, 0x80000"); a(f"s_mov_b32 s{r+3}, 0x20000")
        kA = {}
        if self.WQ1 < 0:
            self.role()
            wq0 = self.wq_all(self.wqsplit and 0)
        for m in range(self.K0 // 4):
            for i in range(4): kA[(m, i)] = self.k_dma(rKA, m, i)
        self.stamp("k0", 6)
        for r, size in ((rWS, 0), (rPF, 0), (rPS, 0)):
            a(f"s_mov_b32 s{r}, s{pWS}"); a(f"s_mov_b32 s{r+1}, s{pWS+1}"); a(f"s_mov_b32 s{r+2}, {size}"); a(f"s_mov_b32 s{r+3}, 0x20000")
        a(f"s_mov_b32 s{sTO}, {self.TO}"); a(f"s_mov_b32 s{sL}, 0"); a(f"s_mov_b32 s{sC}, {CSCALE}")
        a(f"s_mov_b32 s{sStream}, 1"); a(f"s_mov_b32 s{sWarm}, 1"); a(f"s_mov_b32 s{sSENT1}, -1"); a(f"s_mov_b32 s{sSENT2}, 0")
        for r, v in ((mX, 0xFF),):
            a(f"s_mov_b32 s{r}, {v:#x}"); a(f"s_mov_b32 s{r+1}, {v:#x}")
        a(f"s_mov_b32 s{mP}, 0x00f0000f"); a(f"s_mov_b32 s{mP+1}, 0xf0000f00")
        if self.WQ1 >= 0: self.role()
        n_, kq_, r_, c_, o_ = D, D + 1, D + 2, D + 3, D + 4
        a(f"v_and_b32 v{n_}, 15, v{vL}"); a(f"v_lshrrev_b32 v{kq_}, 4, v{vL}"); a(f"v_bfe_u32 v{r_}, v{vL}, 2, 2"); a(f"v_and_b32 v{c_}, 3, v{vL}")
        a(f"v_and_b32 v{o_}, 1, v{vL}")
        a(f"v_lshlrev_b32 v{t0}, 4, v{vL}"); a(f"v_add_u32 v{vScr}, s{sScrW}, v{t0}")
        a(f"v_bfe_u32 v{t0}, v{vL}, 2, 1"); a(f"v_mul_u32_u24 v{t0}, 896, v{t0}"); a(f"v_lshl_add_u32 v{t0}, v{c_}, 3, v{t0}")
        a(f"v_lshrrev_b32 v{t1}, 5, v{vL}"); a(f"v_lshl_add_u32 v{vXn}, v{t1}, 2, v{t0}")
        a(f"v_bfe_u32 v{t0}, v{vL}, 1, 1"); a(f"v_lshlrev_b32 v{t0}, 8, v{t0}"); a(f"v_lshl_add_u32 v{t0}, v{t1}, 2, v{t0}")
        a(f"v_bfe_u32 v{t1}, v{vL}, 2, 1"); a(f"v_lshl_add_u32 v{t0}, v{t1}, 4, v{t0}"); a(f"v_lshl_add_u32 v{vXw}, v{o_}, 3, v{t0}")
        a(f"v_lshrrev_b32 v{t0}, 1, v{kq_}"); a(f"v_lshlrev_b32 v{t0}, 11, v{t0}"); a(f"v_and_b32 v{t1}, 1, v{kq_}")
        a(f"v_lshl_add_u32 v{t0}, v{t1}, 6, v{t0}"); a(f"v_lshl_add_u32 v{vX3w}, v{n_}, 2, v{t0}")
        a(f"s_lshl_b32 s{sT0}, s{sS}, 14"); a(f"s_lshl_b32 s{sT1}, s{sW}, 7"); a(f"s_add_u32 s{sT0}, s{sT0}, s{sT1}")
        a(f"v_and_b32 v{t0}, 7, v{vL}"); a(f"v_lshlrev_b32 v{t1}, 1, v{t1}"); a(f"v_xor_b32 v{t0}, v{t0}, v{t1}")
        a(f"v_lshrrev_b32 v{t1}, 3, v{vL}"); a(f"v_lshlrev_b32 v{t1}, 9, v{t1}"); a(f"v_lshl_add_u32 v{t0}, v{t0}, 4, v{t1}")
        a(f"v_add_u32 v{vVb0}, s{sT0}, v{t0}"); a(f"v_xor_b32 v{vVb1}, 64, v{vVb0}")
        a(f"v_bfe_u32 v{t0}, v{vL}, 3, 1"); a(f"v_lshlrev_b32 v{t0}, 12, v{t0}"); a(f"v_and_b32 v{t1}, 7, v{vL}"); a(f"v_lshl_add_u32 v{t0}, v{t1}, 9, v{t0}")
        a(f"v_xor_b32 v{t1}, v{kq_}, v{n_}"); a(f"v_lshl_add_u32 v{t0}, v{t1}, 4, v{t0}"); a(f"v_add_u32 v{vKr0}, s{sRing}, v{t0}")
        a(f"v_and_b32 v{t1}, 1, v{kq_}"); a(f"v_mul_u32_u24 v{t0}, 4160, v{t1}"); a(f"v_lshrrev_b32 v{t1}, 1, v{kq_}"); a(f"v_lshl_add_u32 v{t0}, v{t1}, 10, v{t0}")
        a(f"v_lshl_add_u32 v{t0}, v{r_}, 7, v{t0}"); a(f"v_lshl_add_u32 v{t0}, v{c_}, 3, v{t0}")
        a(f"v_lshrrev_b32 v{t1}, 1, v{r_}"); a(f"v_lshl_add_u32 v{t0}, v{t1}, 5, v{t0}"); a(f"v_add_u32 v{vVr0}, s{sRing}, v{t0}")
        a(f"v_bfe_u32 v{t2}, v{vL}, 1, 1")
        a(f"v_mul_u32_u24 v{vIdx}, 0xaaaa, v{t2}"); a(f"v_add_u32 v{vIdx}, 0x4444, v{vIdx}")
        a(f"v_lshlrev_b32 v{t0}, 9, v{o_}"); a(f"v_lshl_add_u32 v{t0}, v{kq_}, 5, v{t0}"); a(f"v_lshl_add_u32 v{t0}, v{t2}, 4, v{t0}")
        a(f"v_add_u32 v{vQr}, s{sScrW}, v{t0}")
        a(f"v_lshlrev_b32 v{t0}, 7, v{o_}"); a(f"v_lshl_add_u32 v{t0}, v{kq_}, 10, v{t0}"); a(f"v_lshl_add_u32 v{t0}, v{t2}, 4, v{t0}")
        a(f"v_add_u32 v{vPr}, {SCR}, v{t0}")
        a(f"v_lshlrev_b32 v{t0}, 5, v{kq_}"); a(f"v_lshl_add_u32 v{t0}, v{t2}, 4, v{t0}"); a(f"v_lshl_add_u32 v{t0}, v{r_}, 2, v{t0}")
        a(f"v_lshl_add_u32 v{t0}, v{o_}, 1, v{t0}"); a(f"v_add_u32 v{vPw}, s{sScrW}, v{t0}")
        a(f"v_and_b32 v{t0}, 6, v{vL}"); a(f"v_lshlrev_b32 v{t0}, 1, v{t0}"); a(f"v_lshl_add_u32 v{t0}, v{o_}, 14, v{t0}")
        a(f"v_lshrrev_b32 v{t1}, 5, v{vL}"); a(f"v_lshl_add_u32 v{t0}, v{t1}, 10, v{t0}")
        a(f"v_bfe_u32 v{t2}, v{vL}, 3, 2"); a(f"v_lshl_add_u32 v{vOw}, v{t2}, 8, v{t0}")
        a(f"v_and_b32 v{t0}, 31, v{vL}"); a(f"v_lshlrev_b32 v{t0}, 5, v{t0}"); a(f"v_lshl_add_u32 v{vSr}, v{t1}, 4, v{t0}")
        a(f"v_and_b32 v{t0}, 7, v{vL}"); a(f"v_lshlrev_b32 v{t0}, 5, v{t0}"); a(f"v_lshl_add_u32 v{t0}, v{kq_}, 2, v{t0}")
        a(f"v_bfe_u32 v{t2}, v{vL}, 3, 1"); a(f"v_lshl_add_u32 v{vQw}, v{t2}, 4, v{t0}")
        a(f"s_and_b32 s{sT0}, s{sW}, 1"); a(f"s_lshl_b32 s{sT0}, s{sT0}, 5"); a(f"s_add_u32 s{sT0}, s{sT0}, {WQ_LDS}")
        a(f"v_lshlrev_b32 v{t0}, 9, v{kq_}"); a(f"v_lshl_add_u32 v{t0}, v{r_}, 6, v{t0}"); a(f"v_lshl_add_u32 v{t0}, v{c_}, 3, v{t0}")
        a(f"v_add_u32 v{vWr}, s{sT0}, v{t0}")
        a(f"s_mul_i32 s{sA1}, s{sG}, {GSTRIDE}"); a(f"s_add_u32 s{sA1}, s{sA1}, {BASE}")
        a(f"s_sub_u32 s{oXR}, s{sA1}, s{sScrW}")
        a(f"s_lshl_b32 s{sT0}, s{sB}, 10"); a(f"s_add_u32 s{oQR}, s{oXR}, s{sT0}")
        a(f"s_lshl_b32 s{sT0}, s{sJQ}, 8"); a(f"s_add_u32 s{oQW}, s{sA1}, s{sT0}")
        a(f"s_lshl_b32 s{sT0}, s{sJ}, 5"); a(f"s_lshl_b32 s{sT1}, s{sW}, 2"); a(f"s_add_u32 s{sT0}, s{sT0}, s{sT1}")
        a(f"s_add_u32 s{oSR}, s{sA1}, {STOFF}"); a(f"s_add_u32 s{oST}, s{oSR}, s{sT0}")
        a(f"s_and_b32 s{sT1}, s{sJ}, 1"); a(f"s_lshl_b32 s{sT0}, s{sT1}, 10"); a(f"s_add_u32 s{oSR}, s{oSR}, s{sT0}")
        a(f"s_lshl_b32 s{sT0}, s{sW}, 12"); a(f"s_add_u32 s{sT0}, s{sT0}, {OOFF}")
        a(f"s_add_u32 s{oOW}, s{sA1}, s{sT0}"); a(f"s_add_u32 s{oOR}, s{oXR}, s{sT0}")
        a(f"s_lshl_b32 s{sT0}, s{sT1}, 14"); a(f"s_add_u32 s{oOR}, s{oOR}, s{sT0}")
        a(f"s_lshr_b32 s{sT0}, s{sJ}, 4"); a(f"s_lshl_b32 s{sT0}, s{sT0}, 11"); a(f"s_add_u32 s{oOW}, s{oOW}, s{sT0}")
        a(f"s_and_b32 s{sT0}, s{sJ}, 15"); a(f"s_lshl_b32 s{sT0}, s{sT0}, 4"); a(f"s_add_u32 s{oOW}, s{oOW}, s{sT0}")
        a(f"s_and_b32 s{oX3W}, s{sJ}, 30"); a(f"s_lshl_b32 s{oX3W}, s{oX3W}, 13"); a(f"s_lshl_b32 s{sT0}, s{sW}, 12"); a(f"s_add_u32 s{oX3W}, s{oX3W}, s{sT0}")
        a(f"s_lshl_b32 s{sT0}, s{sG}, 8"); a(f"s_add_u32 s{oX3W}, s{oX3W}, s{sT0}"); a(f"s_lshl_b32 s{sT0}, s{sT1}, 7"); a(f"s_add_u32 s{oX3W}, s{oX3W}, s{sT0}")
        a(f"s_add_u32 s{oX3W}, s{oX3W}, {BASE + X3OFF}")
        a(f"s_lshl_b32 s{oX3R}, s{sJ}, 13"); a(f"s_lshl_b32 s{sT0}, s{sW}, 11"); a(f"s_add_u32 s{oX3R}, s{oX3R}, s{sT0}")
        a(f"s_add_u32 s{oX3R}, s{oX3R}, {BASE + X3OFF}"); a(f"s_sub_u32 s{oX3R}, s{oX3R}, s{sScrW}")
        a(f"s_lshr_b32 s{sXN}, s{sJ}, 1"); a(f"s_lshl_b32 s{oXW}, s{sXN}, 10"); a(f"s_cmp_ge_u32 s{sXN}, 7")
        a(f"s_cselect_b32 s{sT0}, {(128 - 7168) & 0xffffffff}, 0"); a(f"s_add_u32 s{oXW}, s{oXW}, s{sT0}"); a(f"s_lshl_b32 s{sXN}, s{sXN}, 6")
        a(f"s_lshl_b32 s{sT1}, s{sT1}, 1"); a(f"s_and_b32 s{sT0}, s{sW}, 1"); a(f"s_add_u32 s{sT1}, s{sT1}, s{sT0}")
        a(f"s_lshl_b32 s{sT0}, s{sT1}, 5"); a(f"s_add_u32 s{oXW}, s{oXW}, s{sT0}"); a(f"s_mul_i32 s{sT0}, s{sT1}, 1792"); a(f"s_add_u32 s{sXN}, s{sXN}, s{sT0}")
        a(f"s_lshr_b32 s{sT1}, s{sW}, 1"); a(f"s_lshl_b32 s{sT0}, s{sT1}, 9"); a(f"s_add_u32 s{oXW}, s{oXW}, s{sT0}")
        a(f"s_lshl_b32 s{sT0}, s{sT1}, 5"); a(f"s_add_u32 s{sXN}, s{sXN}, s{sT0}")
        a(f"s_add_u32 s{oXW}, s{oXW}, s{sA1}"); a(f"s_add_u32 s{oXW}, s{oXW}, {XOFF}")
        a(f"s_add_u32 s{oXR}, s{oXR}, {(XOFF - LSTRIDE) & 0xffffffff}")
        if self.codepf:
            l = self.newlab("Lpf")
            a(f"s_lshl_b32 s{sT0}, s{sJ}, 2"); a(f"s_add_u32 s{sT0}, s{sT0}, s{sW}")
            a(f"s_cmp_ge_u32 s{sT0}, (L_codeend - {name} + 1023) / 1024"); a(f"s_cbranch_scc1 {l}")
            a(f"s_getpc_b64 s[34:35]")
            self.lab("L_pc")
            a(f"s_lshl_b32 s{sT0}, s{sT0}, 10"); a(f"s_sub_u32 s{sT0}, s{sT0}, L_pc - {name}")
            a(f"s_ashr_i32 s{sT1}, s{sT0}, 31")
            a(f"s_add_u32 s34, s34, s{sT0}"); a(f"s_addc_u32 s35, s35, s{sT1}")
            a(f"v_lshlrev_b32 v{t0}, 4, v{vL}")
            a(f"global_load_dword v{CS}, v{t0}, s[34:35]")
            self.lab(l)
        a(f"s_mov_b32 s{rWS+2}, {WS_SIZE}")
        for k in range(4): a(f"v_mov_b32 v{self.SENT+k}, -1")
        self.reset_leader()
        if self.P0 == 0: self.reset_general()
        rst = self.optional()
        a(f"s_mov_b32 s{sWarm}, 0"); a(f"s_mov_b32 s{sSENT2}, -1"); a(f"s_mov_b32 s{(rPF if 'plainq' in self.exp else rPS)+2}, {WS_SIZE}")
        self.tmp_srd(pAX, 7168)
        a(f"buffer_load_dword v{vXres}, v{vXn}, {srd(rTMP)}, s{sXN} offen")
        self.counted()
        self.stamp("setup_end", 7)

        self.thr_on = True
        order2 = [2, 3, 4, 5, 6, 7, 0, 1]
        groups = [("K", "A", m) for m in range(8)] + [("V", "A", m) for m in range(8)] + \
                 [("K", "B", m) for m in order2] + [("V", "B", m) for m in order2]
        extra = {i: [] for i in range(32)}
        if "nowq" not in self.exp and self.WQ1 >= 0: extra[self.WQ1].append(("WQ", "A", 0, 0))
        if self.WQ1 < 0: extra[self.XP].append(("X", "A", 0, 0))
        if self.wqsplit: extra[self.WQB].append(("WQ", "B", 0, 0))
        if "nowo" not in self.exp:
            if self.WOA >= 0:
                extra[self.WOA].append(("WO", "A", 0, 0))
                extra[self.WO2].append(("WO", "B", 1, 0))
        prog = []
        for gi, (kd, ab, m) in enumerate(groups):
            prog += [(kd, ab, m, i) for i in range(4) if not (kd == "K" and ab == "A" and (m, i) in kA)]
            prog += extra[gi]
        ops = {("K", "A") + k: v for k, v in kA.items()}
        copies = [([kA[(m, i)] for m in (2 * t, 2 * t + 1) for i in range(4)], (lambda t=t: self.k_copy(0, t)), ("K", "A", t))
                  for t in range(self.K0 // 8)]
        copied = set()
        st = {"phase": 0, "smark": 0}
        G = self.gaps
        def need(tags): return all(t in copied for t in tags)
        KA_all = [("K", "A", t) for t in range(4)]
        KB_all = [("K", "B", t) for t in range(4)]
        VA_all = [("V", "A", mp) for mp in range(4)]
        def drain_to(n):
            if len(self.stream) > n: self.wait_for(self.stream[-n - 1])
        def burst_done(): return len(self.stream) - st["smark"] >= self.Thi - self.Tlo
        def polled():
            st["smark"] = len(self.stream); self.T = self.Thi

        def chain():
            ph, pos = st["phase"], self.nops
            if "nochain" in self.exp and ph >= self.stop:
                if "wqmark" in st and len(self.stream) - st["wqmark"] >= self.Thi - self.Tlo: self.T = self.Tbase
                return False
            def nxt(): st["phase"] += 1; self.log.append((ph, pos))
            if ph == 0 and pos >= self.K0 + 3:
                l = self.newlab("Lnl")
                a(f"s_cmp_lg_u32 s{sB}, 4"); a(f"s_cbranch_scc1 {l}"); a(f"s_cmp_lg_u32 s{sW}, 2"); a(f"s_cbranch_scc1 {l}")
                a(f"s_waitcnt vmcnt({self.after(rst)})")
                a(f"s_lshl_b32 s{sT0}, s{sG}, 2"); a(f"s_add_u32 s{sT0}, s{sT0}, s{sS}"); a(f"s_lshl_b32 s{sT0}, s{sT0}, 2")
                a(f"v_mov_b32 v{T+4}, s{sT0}"); a(f"v_mov_b32 v{T+5}, 1")
                a("s_mov_b64 exec, 1")
                a(f"global_store_dword v{T+4}, v{T+5}, {sp(pDBG)} sc1")
                a("s_mov_b64 exec, -1")
                self.stamp("arrive", 9)
                self.lab(l)
                nxt(); return True
            if ph == 1 and pos >= self.P0:
                if "noreset" not in self.exp and self.P0: self.reset_general()
                st["rstx"] = self.optional()
                nxt(); return True
            if ph == 2 and pos >= self.P1:
                a(f"v_and_b32 v{T+6}, 3, v{vL}"); a(f"s_lshl_b32 s{sT0}, s{sG}, 2"); a(f"v_add_lshl_u32 v{T+6}, v{T+6}, s{sT0}, 2")
                a(f"global_load_dword v{T+7}, v{T+6}, {sp(pDBG)} sc1")
                st["op"] = self.counted()
                nxt(); return True
            if ph == 3:
                if "wqmark" not in st: return False
                if self.nat:
                    if not (ops[("WQ", "A", 0, 0)].done and st["op"].done): return False
                elif len(self.stream) - st["wqmark"] < self.Thi - self.Tlo: return False
                self.wait_for(ops[("WQ", "A", 0, 0)])
                self.wait_for(st["op"]); self.wait_for(st["rstx"])
                self.stamp("pre_gate", 10)
                self.lab("GATE_chk")
                a(f"v_cmp_eq_u32 vcc, 0, v{T+7}")
                a("s_cbranch_vccz GATE_ok")
                a(f"s_cmp_eq_u32 s{sTO}, 0"); a("s_cbranch_scc1 GATE_ok"); a(f"s_sub_u32 s{sTO}, s{sTO}, 1")
                a("s_sleep 4")
                a(f"global_load_dword v{T+7}, v{T+6}, {sp(pDBG)} sc1"); a("s_waitcnt vmcnt(0)"); a("s_branch GATE_chk")
                self.lab("GATE_ok")
                self.stamp("pre_bar0", 8)
                if "nobar" not in self.exp: a("s_barrier")
                l = self.if_wave(3)
                a(f"s_getreg_b32 s{sT0}, hwreg(HW_REG_XCC_ID, 0, 4)")
                a(f"v_mov_b32 v{T+4}, s{sT0}"); a(f"v_lshlrev_b32 v{T+5}, 2, v{vL}")
                a(f"s_lshl_b32 s{sT0}, s{sG}, 5"); a(f"s_add_u32 s{sT0}, s{sT0}, s{sJ}"); a(f"s_lshl_b32 s{sT0}, s{sT0}, 7")
                a(f"s_add_u32 s{sT0}, s{sT0}, {XCBASE}")
                a("s_mov_b32 exec_hi, 0")
                a(f"buffer_store_dword v{T+4}, v{T+5}, {srd(rWS)}, s{sT0} offen {'' if 'plainx' in self.exp else self.ppol}")
                a("s_mov_b32 exec_hi, -1")
                self.lab(l)
                l = self.newlab("Lnq"); l3 = self.newlab("Ldn")
                if self.wqsplit: a(f"s_cmp_lg_u32 s{sQM}, 0")
                else: a(f"s_cmp_eq_u32 s{sQM}, 2")
                a(f"s_cbranch_scc1 {l}")
                if "noqp" in self.exp: a(f"s_branch {l}")
                self.call("CSUM")
                l2 = self.if_qm(0)
                self.qp_preload()
                self.call("QP_go")
                self.lab(l2)
                a(f"s_branch {l3}")
                self.lab(l)
                if self.iwarm:
                    a(f"s_mov_b32 s{sWarm}, 1"); a(f"s_mov_b32 s{rWS+2}, 0"); a(f"s_mov_b32 s{sSENT2}, 0")
                    l4 = self.if_wave(2); l5 = self.newlab("Ldn")
                    self.call("PV2"); self.call("WO_poll"); a(f"s_branch {l5}")
                    self.lab(l4)
                    self.call("QP_first"); self.call("H3_poll"); self.call("ATT_poll")
                    self.lab(l5)
                    a(f"s_mov_b32 s{sWarm}, 0"); a(f"s_mov_b32 s{rWS+2}, {WS_SIZE}"); a(f"s_mov_b32 s{sSENT2}, -1")
                    a("s_waitcnt vmcnt(0) lgkmcnt(0)")
                self.lab(l3)
                for k in range(4): a(f"v_mov_b32 v{self.SENT+k}, -1")
                a(f"v_and_b32 v{T}, 7, v{vL}"); a(f"v_mul_u32_u24 v{T}, 992, v{T}"); a(f"v_add_u32 v{vQw}, v{vQw}, v{T}")
                a(f"s_mul_i32 s{sT0}, s{sJQ}, 224"); a(f"s_sub_u32 s{oQW}, s{oQW}, s{sT0}")
                self.stamp("bar0", 1)
                self.T = self.Tbase
                nxt(); return True
            if ph == 4 and pos >= self.P2 and need(KA_all):
                a(f"s_mov_b32 s{sPH}, {Q1_I}"); a(f"s_mov_b32 s{sAge}, 0")
                st["dyn1"] = True
                st["phase"] = 6; self.log.append((ph, pos)); return True
            if ph == 6 and ("V", "A", 7, 3) in ops:
                polled()
                self.T = self.Tbase; st["smark"] -= self.Thi - self.Tlo - self.PVB
                nxt(); return True
            if ph == 7 and burst_done() and not need(VA_all):
                self.wait_for(ops[("V", "A", 7, 3)])
                return True
            if ph == 7 and need(VA_all):
                st["dyn1"] = False
                l = self.newlab("Lq1")
                a(f"s_cmp_eq_u32 s{sPH}, {DONE}"); a(f"s_cbranch_scc1 {l}")
                a(f"s_call_b64 {sp(sRET2)}, Q1_poll")
                self.lab(l)
                self.lg0()
                self.stamp("pre_pv1", 11)
                a(f"v_and_b32 v{T+5}, 0xffffff6f, v{vPr}"); a(f"v_and_b32 v{T+3}, 0xfffff000, v{vPr}")
                if self.wqsplit: assert ops[("WQ", "B", 0, 0)].done
                self.call("PV")
                if self.wqsplit:
                    l = self.if_qm(1); self.call("CSUM"); self.lab(l)
                a(f"v_and_b32 v{T+6}, 7, v{vL}"); a(f"v_lshlrev_b32 v{T+6}, 2, v{T+6}")
                a(f"global_load_dword v{T+7}, v{T+6}, {sp(pDBG)} offset:128 sc1"); self.counted()
                a(f"s_mov_b32 s{sPH}, {WO_I}"); a(f"s_mov_b32 s{sAge}, {G[0]}"); a(f"s_mov_b32 s{sKBok}, 0"); a(f"s_mov_b32 s{sWOok}, 0")
                l = self.newlab("Llt28")
                a(f"s_cmp_lt_u32 s{sJ}, 28"); a(f"s_cbranch_scc1 {l}")
                self.call("ADV")
                self.to_qp(G[0] + G[1] + G[2] + 3 * self.A)
                self.lab(l)
                st["dyn"] = True
                self.T = self.Tbase
                nxt(); return True
            return False
        LASTPH = 7

        def service():
            made = True
            while made:
                made = False
                for c in list(copies):
                    nd, fn, tag = c
                    if all(o.done for o in nd):
                        fn(); copied.add(tag); copies.remove(c); made = True
                if chain(): made = True

        pi = 0
        while pi < len(prog):
            it = prog[pi]; pi += 1
            kind, ab, m, i = it
            if kind == "K":
                ops[it] = self.k_dma(rKA if ab == "A" else rKB, m, i)
                if i == 3 and (m & 1) and not (ab == "A" and m // 2 < self.K0 // 8):
                    t = m // 2
                    copies.append(([ops[("K", ab, mm, ii)] for mm in (2 * t, 2 * t + 1) for ii in range(4)],
                                   (lambda b=(0 if ab == "A" else 128), t=t: self.k_copy(b, t)), ("K", ab, t)))
            elif kind == "V":
                ops[it] = self.v_dma(rVA if ab == "A" else rVB, m, i)
                if i == 3 and (m & 1) and ab == "A":
                    copies.append(([ops[("V", ab, mm, ii)] for mm in (m - 1, m) for ii in range(4)], (lambda mp=m // 2: self.v_copy(mp)), ("V", ab, m // 2)))
            elif kind == "WO":
                ops[it] = self.wo_dma(pWOA if ab == "A" else pWOB, m)
                copies.append(([ops[it]], (lambda ab=ab, m=m: self.wo_copy_sel(ab, m)), ("WO", ab)))
            elif kind == "WQ":
                if "nodrain" not in self.exp and not self.nat: drain_to(self.Tlo)
                if "nox" not in self.exp and ab == "A":
                    l = self.if_qm(0); self.x_first(); self.lab(l)
                ops[it] = self.wq_all(self.wqsplit and (0 if ab == "A" else 1))
                if ab == "A":
                    st["wqmark"] = len(self.stream)
                    if not self.nat: self.T = self.Thi
            elif kind == "X":
                l = self.if_qm(0); self.x_first(); self.lab(l)
                ops[("WQ", "A", 0, 0)] = self.optional(); st["wqmark"] = len(self.stream); self.T = self.Thi
            service()
            if st.get("dyn") and self.WOA < 0 and not st.get("woq") and kind in "KV" and i == 3:
                prog[pi:pi] = [("WO", "A", 0, 0), ("WO", "B", 1, 0)]; st["woq"] = True
            if st.get("dyn1") and kind in "KV" and i in (1, 3):
                a(f"s_call_b64 {sp(sRET2)}, HND")
            if st.get("dyn"):
                if ("K", "B", 3) in copied and not st.get("kb1"): a(f"s_mov_b32 s{sKBok}, 1"); st["kb1"] = True
                if need(KB_all) and not st.get("kb2"): a(f"s_mov_b32 s{sKBok}, 2"); st["kb2"] = True
                if need([("WO", "A"), ("WO", "B")]) and not st.get("wok"):
                    a(f"s_mov_b32 s{sWOok}, 1"); st["wok"] = True; self.log.append(("wo_ok", self.nops))
                if kind in "KV" and i in (1, 3):
                    if not st.get("nh"): self.log.append(("first_hnd", self.nops))
                    a(f"s_call_b64 {sp(sRET2)}, HND"); st["nh"] = True
            if self.posst and i == 3 and kind in "KV":
                st["nst"] = st.get("nst", 0) + 1
                self.stamp(f"s{len(self.stream):03d}_{kind}{ab}{m}_ph{st['phase']}", 16 + st["nst"])
        self.log.append(("issue_end", self.nops))
        self.stamp("issue_end", 3)
        if "nochain" in self.exp:
            a("s_waitcnt vmcnt(0)"); self.stamp("stream_end", 4); a("s_branch L_fin")
            pv2w = [(1, None), (2, None), (3, None), (0, 0)]
        else:
            assert st["phase"] > LASTPH and need(KB_all) and not copies
            self.lg0()
            self.finish_chain()
            self.stamp("chain_done", 12)
            self.warm_loads(T + 6, vKb)
            a(f"s_mov_b32 s{sStream}, 0")
            pv2w = []
            for mp in (1, 2, 3, 0):
                o = ops[("V", "B", 2 * mp + 1, 3)]
                pv2w.append((mp, None if o.done else self.after(o)))
            a("s_branch PV2")
        self.lab("L_fin")
        if self.stamps:
            self.stamp("end", 5)
            a("s_memtime s[34:35]"); a("s_waitcnt lgkmcnt(0)"); a(f"v_writelane_b32 v{vST}, s34, 14")
            a(f"s_lshl_b32 s{sT0}, s2, 2"); a(f"s_add_u32 s{sT0}, s{sT0}, s{sW}"); a(f"s_lshl_b32 s{sT0}, s{sT0}, 8")
            a(f"s_add_u32 s{sT0}, s{sT0}, {STAMP_OFF}"); a(f"s_add_u32 s34, s{pWS}, s{sT0}"); a(f"s_addc_u32 s35, s{pWS+1}, 0")
            a(f"v_lshlrev_b32 v{T}, 2, v{vL}")
            a(f"v_writelane_b32 v{vST}, s{sTO}, 15")
            a(f"global_store_dword v{T}, v{vST}, s[34:35]")
        self.lab("L_end")
        a("s_endpgm")
        self.r_handler(); self.r_pv2(pv2w); self.r_loop(); self.r_vcopy(); self.r_cs()
        self.lab("L_codeend")
        a("s_endpgm")
        a(".fill 256, 4, 0xBF800000")
        self.L += kernel_desc(name, 512, 102, 256)
        return "\n".join(self.L) + "\n"

    def wo_copy_sel(self, ab, slot):
        self.wo_copy(WOC if ab == "A" else WON, slot)


if __name__ == "__main__":
    import argparse, json
    ap = argparse.ArgumentParser()
    ap.add_argument("-o", default="main.s")
    ap.add_argument("kv", nargs="*")
    x = ap.parse_args()
    kw = {}
    for kv in x.kv:
        k, v = kv.split("=") if "=" in kv else (kv, "1")
        if k == "gaps": kw[k] = tuple(int(t) for t in v.split(","))
        elif k in ("exp", "wpol", "rpol", "ppol", "qpol"): kw[k] = v.replace("+", " ")
        else: kw[k] = int(v)
    if kw.get("posst"): kw["stamps"] = 1
    g = Gen(**kw)
    s = g.build()
    open(x.o, "w").write(s)
    print("chain log:", g.log)
    if g.stamps: json.dump(g.stamp_names, open(x.o + ".stamps.json", "w"))
```

```python
import sys
from gen_common import *

WQ_LDS = 131072
SCR = WQ_LDS + 28672
LDS_TOTAL = 163840
BASE = 0x100000
GSTRIDE = 53376
QOFF, OOFF, STOFF, XOFF, SXOFF = 0, 8320, 41088, 43136, 50304
X3OFF = 8 * GSTRIDE
LSTRIDE = X3OFF + 229376
XCBASE = BASE + 4 * LSTRIDE
WS_SIZE = XCBASE + 8 * 4096
STAMP_OFF = 0x1000000

sRET2 = 0
sW, sG, sJ, sB, sS = 3, 4, 5, 6, 7
pAX, pKA, pVA, pWQA, pWOA, pKB, pVB, pWQB, pWOB, pOUT, pDBG, pWS = 8, 10, 12, 14, 16, 20, 22, 24, 26, 28, 30, 32
sJQ, sQM = 18, 19
rPF = 20
rKA, rVA, rKB, rVB, rWS, rTMP = 36, 40, 44, 48, 52, 56
sPH, sAge, sKBok, sWOok = 36, 37, 38, 39
sRET = 60
sRing, sScrW = 62, 63
sM = 64
sT0, sT1, sTO, sL = 72, 73, 74, 75
oQR, oST, oOW, oOR, oSR, oX3W, oX3R, oXW, oXR, oQW = range(76, 86)
oSXW, oSXR = 90, 91
OFFS = list(range(76, 86)) + [90, 91]
mP, mX = 86, 88
rPS = 92
sC, sXN, sSB, sSI = 96, 97, 98, 99
sStream, sWarm = 100, 101
sSENT1, sSENT2, sA0, sA1 = 10, 11, 12, 13
WO_I, WO_C, H3_I, H3_C, QP_I, QP_C, AT_I, AT_C, DONE, Q1_C, Q1_I = range(11)

vL, vKb, vVb0, vVb1, vKr0, vVr0, vScr, vQr, vPw, vPr, vOw, vQw, vX3w, vXw, vXn, vWr, vXres, vIdx, vSr, vST = range(20)
vSink = vST + 0
T = 20
CS = 28
S = 32
D = 48
QP = 64
WOC, WON = 96, 112
VAT = 128

CSCALE = 0x3DB8AA3B
ONES = 0x3F803F80


def srd(r): return f"s[{r}:{r+3}]"
def sp(r): return f"s[{r}:{r+1}]"
def vr(r, n=4): return f"v[{r}:{r+n-1}]"
def ar(r, n=4): return f"a[{r}:{r+n-1}]"
DPP = "row_mask:0xf bank_mask:0xf"
MFMA = "v_mfma_f32_16x16x32_bf16"
SMF = "v_smfmac_f32_16x16x64_bf16"
ODD = "0xaaaaaaaa"


class Op:
    def __init__(self, pos, counted): self.pos, self.counted, self.done = pos, counted, False


class Gen:
    def __init__(self, **k):
        d = dict(T=8, Thi=16, Tlo=8, K0=12, wpol="nt", stamps=False, posst=False, slow=False, P0=18, P1=30, P2=58,
                 gaps=(1, 2, 1, 1), hold=0, WQ1=4, WO2=-1, warm=True, codepf=True, iwarm=False, TO=300000, exp="", Ar=2, stag=0, wos=0, qpblk=0, nohnd=0, stagB=0, T2=14, G2=24, fpol='', woslot=0, wqs=0, womid=True, h3d=6, Tr=4, bal=False, ppol='sc1', qpol='sc1', nat=False, PVB=8, WOA=-1, wqsplit=False, WQB=10, XP=3, rpol='sc1 nt', stop=0, pipe=False)
        d.update(k)
        self.__dict__.update(d)
        self.Tbase = self.T
        self.A = (self.Thi - self.Tlo + 1) // 2
        self.L = []
        self.nlab = 0
        self.stamp_names = {}
        self.nops = 0
        self.live = []
        self.lg_epoch = 0
        self.slot_epoch = [-1] * 8
        self.slot_pending = [False] * 8
        self.log = []
        self.stream = []
        self.thr_on = False
        self.tailstubs = []
        self.sink = CS + 3 if False else (T + 7 if False else None)

    def a(self, s): self.L.append("    " + s)
    def lab(self, s): self.L.append(s + ":")
    def newlab(self, p="L"):
        self.nlab += 1
        return f"{p}_{self.nlab}"

    def stamp(self, name, idx, layered=False):
        if not self.stamps: return
        if self.posst and layered: return
        a = self.a
        a("s_memrealtime s[34:35]")
        if layered:
            a(f"s_add_u32 s{sSI}, s{sSB}, {idx}")
            for L in range(4): self.stamp_names[16 + L * 12 + idx] = f"L{L+1}.{name}"
        else:
            a(f"s_mov_b32 s{sSI}, {idx}")
            self.stamp_names[idx] = name
        a(f"s_lshl_b64 exec, 1, s{sSI}")
        a("s_waitcnt lgkmcnt(0)")
        a(f"v_mov_b32 v{vST}, s34")
        a("s_mov_b64 exec, -1")

    def counted(self):
        o = Op(self.nops, True); self.nops += 1; self.live.append(o); return o
    def optional(self):
        o = Op(self.nops, False); self.live.append(o); return o
    def after(self, o): return self.nops - 1 - o.pos if o.counted else self.nops - o.pos
    def wait_vm(self, k):
        assert k <= 63
        self.a(f"s_waitcnt vmcnt({k})")
        for o in self.live:
            if self.after(o) >= k: o.done = True
        self.live = [o for o in self.live if not o.done]
    def wait_for(self, o):
        if not o.done: self.wait_vm(self.after(o))
    def throttle(self):
        if self.thr_on and len(self.stream) >= self.T: self.wait_for(self.stream[-self.T])
    def streamop(self):
        o = self.counted(); self.stream.append(o); return o
    def lg0(self):
        self.a("s_waitcnt lgkmcnt(0)")
        self.lg_epoch += 1
    def slot_free(self, m):
        assert not self.slot_pending[m], m
        self.slot_pending[m] = True
        if self.slot_epoch[m] == self.lg_epoch: self.lg0()
    def slot_read(self, m):
        self.slot_epoch[m] = self.lg_epoch
        self.slot_pending[m] = False

    def pub(self, op, data, addr, off, imm=""):
        self.a(f"{op} {data}, v{addr}, {srd(rPF)}, s{off} offen {imm} {self.fpol}")
        if "nodual" in self.exp and off != oQW: return
        self.a(f"{op} {data}, v{addr}, {srd(rPS)}, s{off} offen {imm} {self.ppol}")

    def budget(self, go):
        a = self.a
        l = self.newlab("Lbud")
        a(f"s_sub_u32 s{sTO}, s{sTO}, 1"); a(f"s_cbranch_scc1 {l}")
        self.tailstubs.append((l, go))
    def call(self, target): self.a(f"s_call_b64 {sp(sRET)}, {target}")
    def ret_if_stream(self):
        self.a(f"s_cmp_lg_u32 s{sStream}, 0"); self.a("s_cbranch_scc1 RET")

    def check(self, regs, acc, waits=None, sent=f"s{sSENT2}"):
        a = self.a
        first = True
        for n, (r, c) in enumerate(regs):
            if waits is not None: a(f"s_waitcnt vmcnt({waits[n]})")
            rs = list(range(r, r + c))
            if first:
                a(f"v_max3_u32 v{acc}, v{rs[0]}, v{rs[1]}, v{rs[2]}"); rs = rs[3:]
                first = False
            while len(rs) >= 2:
                a(f"v_max3_u32 v{acc}, v{acc}, v{rs[0]}, v{rs[1]}"); rs = rs[2:]
            if rs: a(f"v_max_u32 v{acc}, v{acc}, v{rs[0]}")
        a(f"v_cmp_eq_u32 vcc, {sent}, v{acc}")

    def pipelined(self, name, nsets, issue, regs, go, acc):
        a = self.a
        nl = len(regs(0))
        self.lab(f"{name}_poll")
        for k in range(nsets): issue(k)
        self.lab(f"{name}_loop")
        for k in range(nsets):
            w0 = nl * nsets - 1
            self.check(regs(k), acc, waits=[w0 - n for n in range(nl)])
            a(f"s_cbranch_vccz {name}_h{k}")
            if k == nsets - 1: self.budget(f"{name}_h{k}")
            issue(k)
        a(f"s_branch {name}_loop")
        for k in list(range(1, nsets)) + [0]:
            self.lab(f"{name}_h{k}")
            go(k)
            if k: a(f"s_branch {name}_go2")
        self.lab(f"{name}_go2")

    wo_st, wo_o = [(QP + 16, 4)], [(QP, 4), (QP + 4, 4), (QP + 8, 4), (QP + 12, 4)]
    def wo_issue_o(self):
        for n in range(4):
            self.a(f"buffer_load_dwordx4 {vr(QP+4*n)}, v{vScr}, {srd(rWS)}, s{oOR} offen offset:{1024*n} sc1")
    def wo_issue(self):
        self.a(f"buffer_load_dwordx4 {vr(QP+16)}, v{vSr}, {srd(rWS)}, s{oSR} offen sc1")
        self.wo_issue_o()
    def wo_scales(self, mid=None):
        a = self.a
        Lj, M, Mb, e, bp = QP + 16, QP + 20, QP + 21, QP + 22, T + 1
        a(f"v_permlane32_swap_b32 v{Lj+3}, v{M}")
        a(f"v_add_f32 v{Lj}, v{Lj}, v{Lj+1}"); a(f"v_add_f32 v{Lj+2}, v{Lj+2}, v{Lj+3}")
        a(f"v_max_f32_dpp v{Mb}, v{M}, v{M} quad_perm:[1,0,3,2] {DPP}")
        a(f"v_add_f32 v{Lj}, v{Lj}, v{Lj+2}"); a(f"v_and_b32 v{bp}, 48, v{vL}")
        a(f"v_max_f32_dpp v{Mb}, v{Mb}, v{Mb} quad_perm:[2,3,0,1] {DPP}")
        a(f"v_sub_f32 v{e}, v{M}, v{Mb}"); a(f"v_exp_f32 v{e}, v{e}")
        if mid: mid()
        a(f"s_mul_i32 s{sT0}, s{sW}, 1020")
        a(f"v_mul_f32 v{Lj}, v{Lj}, v{e}")
        a(f"v_subrev_u32 v{T+2}, s{sT0}, v{vScr}")
        a("s_nop 0")
        a(f"v_add_f32_dpp v{Lj}, v{Lj}, v{Lj} quad_perm:[1,0,3,2] {DPP}")
        a("s_nop 1")
        a(f"v_add_f32_dpp v{Lj}, v{Lj}, v{Lj} quad_perm:[2,3,0,1] {DPP}")
        a(f"v_rcp_f32 v{Lj}, v{Lj}"); a("s_nop 0"); a(f"v_mul_f32 v{e}, v{e}, v{Lj}")
        for rt in range(2):
            for r in range(4):
                a(f"ds_bpermute_b32 v{QP+24+4*rt+r}, v{bp}, v{e} offset:{(16*rt+r)*4}")
    def r_wo(self):
        a = self.a
        self.lab("WO_poll")
        if self.womid:
            a(f"buffer_load_dwordx4 {vr(QP+16)}, v{vSr}, {srd(rWS)}, s{oSR} offen sc1")
        else: self.wo_issue()
        self.lab("WO_w")
        self.check(self.wo_st, T + 0, waits=[0 if self.womid else 4], sent=f"s{sSENT1}")
        a("s_cbranch_vccnz WO_r1")
        self.lab("WO_sc")
        self.wo_scales(self.wo_issue_o if self.womid else None)
        self.lab("WO_o")
        self.check(self.wo_o, T + 0, waits=[3, 2, 1, 0])
        a("s_cbranch_vccnz WO_r2")
        self.lab("WO_go2")
        self.stamp("wo_go", 0, True)
        for rt in range(2):
            for i in range(2):
                for ct in range(2):
                    d = D + 8 * rt + 4 * ct
                    a(f"{MFMA} {vr(d)}, {vr(QP+8*rt+4*i)}, {vr(WOC+8*i+4*ct)}, {'0' if i == 0 else vr(d)}")
        a("s_waitcnt lgkmcnt(0)"); a("s_nop 1")
        for rt in range(2):
            c = QP + 24 + 4 * rt
            d0, d1 = D + 8 * rt, D + 8 * rt + 4
            a(f"v_pk_mul_f32 {vr(d0,2)}, {vr(d0,2)}, {vr(c,2)}")
            if rt == 0: a("s_nop 0")
            a(f"v_pk_mul_f32 {vr(d1,2)}, {vr(d1,2)}, {vr(c,2)}")
            a(f"v_pk_fma_f32 {vr(d0,2)}, {vr(d0+2,2)}, {vr(c+2,2)}, {vr(d0,2)}")
            a(f"v_pk_fma_f32 {vr(d1,2)}, {vr(d1+2,2)}, {vr(c+2,2)}, {vr(d1,2)}")
            a(f"v_add_f32 v{d0}, v{d0}, v{d0+1}"); a(f"v_add_f32 v{d1}, v{d1}, v{d1+1}")
            a(f"ds_write_b32 v{T+2}, v{d0} offset:{(2*rt)*1024}")
            a(f"ds_write_b32 v{T+2}, v{d1} offset:{(2*rt+1)*1024}")
        a("s_waitcnt lgkmcnt(0)")
        a("s_barrier")
        a(f"ds_read_b128 {vr(S)}, v{vScr}")
        a("s_waitcnt lgkmcnt(0)")
        a(f"v_pk_add_f32 {vr(S,2)}, {vr(S,2)}, {vr(S+2,2)}"); a(f"v_add_f32 v{S}, v{S}, v{S+1}")
        a(f"v_min_u32 v{S}, -2, v{S}")
        a(f"buffer_store_dword v{S}, v{vX3w}, {srd(rWS)}, s{oX3W} offen sc1")
        self.stamp("x3_pub", 1, True)
        self.ret_if_stream()
    def r_wo_stubs(self):
        a = self.a
        self.lab("WO_r1"); self.budget("WO_sc"); a("s_branch WO_poll")
        self.lab("WO_r2"); self.budget("WO_go2"); self.wo_issue_o(); a("s_branch WO_o")

    def h3_regs(self, k): return [(QP + 8 * k, 4), (QP + 8 * k + 4, 4)]
    def h3_issue(self, k=0):
        self.a(f"buffer_load_dwordx4 {vr(QP+8*k)}, v{vScr}, {srd(rWS)}, s{oX3R} offen sc1")
        self.a(f"buffer_load_dwordx4 {vr(QP+8*k+4)}, v{vScr}, {srd(rWS)}, s{oX3R} offen offset:1024 sc1")
    def r_h3(self):
        a = self.a
        A = S
        def head(k):
            a(f"v_pk_add_f32 {vr(A,2)}, {vr(QP+8*k,2)}, {vr(QP+8*k+4,2)}")
            a(f"v_pk_add_f32 {vr(A+2,2)}, {vr(QP+8*k+2,2)}, {vr(QP+8*k+6,2)}")
        self.pipelined("H3", 3 if self.pipe else 1, self.h3_issue, self.h3_regs, head, T + 0)
        self.stamp("h3_go", 2, True)
        a(f"v_lshlrev_b32 v{T+4}, 16, v{vXres}")
        a(f"v_and_b32 v{T+5}, 0xffff0000, v{vXres}")
        a(f"v_permlane32_swap_b32 v{A}, v{A+2}")
        a(f"v_permlane32_swap_b32 v{A+1}, v{A+3}")
        a(f"v_pk_add_f32 {vr(A,2)}, {vr(A,2)}, {vr(A+2,2)}")
        a(f"s_cmp_eq_u32 s{sL}, 3"); a("s_nop 0")
        a(f"v_add_f32_dpp v{A}, v{A}, v{A} row_ror:8 {DPP}")
        a(f"v_add_f32_dpp v{A+1}, v{A+1}, v{A+1} row_ror:8 {DPP}")
        a(f"v_mov_b64 {vr(A+2,2)}, {vr(A,2)}")
        a("s_nop 1")
        a(f"v_permlane16_swap_b32 v{A}, v{A+2}")
        a(f"v_permlane16_swap_b32 v{A+1}, v{A+3}")
        a(f"v_pk_add_f32 {vr(A,2)}, {vr(A,2)}, {vr(A+2,2)}")
        a(f"v_cvt_pk_bf16_f32 v{A+1}, v{A}, v{A+1}")
        a(f"v_lshlrev_b32 v{A}, 16, v{A+1}")
        a(f"v_and_b32 v{A+1}, 0xffff0000, v{A+1}")
        a(f"v_pk_add_f32 {vr(A,2)}, {vr(A,2)}, {vr(T+4,2)}")
        a(f"v_cvt_pk_bf16_f32 v{vXres}, v{A}, v{A+1}")
        a(f"s_mov_b64 exec, {sp(mX)}")
        a(f"v_min_u32 v{A}, -2, v{vXres}")
        a("s_cbranch_scc1 H3_final")
        self.pub("buffer_store_dword", f"v{A}", vXw, oXW)
        a("s_mov_b64 exec, -1")
        self.stamp("x_pub", 3, True)
        a(f"v_lshlrev_b32 v{A+2}, 16, v{vXres}"); a(f"v_and_b32 v{A+3}, 0xffff0000, v{vXres}")
        a(f"v_add_f32 v{A}, v{A+2}, v{A+3}"); a(f"v_mul_f32 v{A+1}, v{A+2}, v{A+2}"); a(f"v_fmac_f32 v{A+1}, v{A+3}, v{A+3}")
        a(f"v_lshrrev_b32 v{A+2}, 5, v{vL}"); a(f"v_bfe_u32 v{A+3}, v{vL}, 2, 1")
        a(f"v_permlane32_swap_b32 v{A}, v{A+1}")
        a(f"v_add_f32 v{A}, v{A}, v{A+1}")
        a(f"v_lshlrev_b32 v{A+2}, 10, v{A+2}"); a(f"v_lshl_add_u32 v{A+2}, v{A+3}, 7, v{A+2}")
        a(f"v_add_f32_dpp v{A}, v{A}, v{A} quad_perm:[1,0,3,2] {DPP}")
        a("s_mov_b32 vcc_lo, 0x11"); a("s_mov_b32 vcc_hi, 0x11")
        a(f"v_add_f32_dpp v{A}, v{A}, v{A} quad_perm:[2,3,0,1] {DPP}")
        a("s_mov_b64 exec, vcc")
        a(f"v_min_u32 v{A}, -2, v{A}")
        self.pub("buffer_store_dword", f"v{A}", A + 2, oSXW)
        a("s_mov_b64 exec, -1")
    def r_h3_final(self):
        a = self.a
        self.lab("H3_final")
        a(f"buffer_store_dword v{vXres}, v{vXn}, {srd(rTMP)}, s{sXN} offen")
        a("s_mov_b64 exec, -1")
        self.stamp("x_pub", 3, True)
        a("s_branch L_fin")

    def advance(self):
        for o in OFFS: self.a(f"s_add_u32 s{o}, s{o}, {LSTRIDE}")
        self.a(f"s_add_u32 s{sL}, s{sL}, 1")
        if self.stamps: self.a(f"s_add_u32 s{sSB}, s{sSB}, 12")

    qp_regs = [(QP + 4 * i, 4) for i in range(7)] + [(T, 4), (T + 4, 4)]
    WSLOT = [S, S + 4, S + 8, S + 12, D + 8, D + 12, QP + 28]
    WORDER = [k for i in range(7) for k in (i, 7 + i)]
    def w_read(self, k, dst):
        self.a(f"ds_read_b64_tr_b16 {vr(dst,2)}, v{vWr} offset:{k*2048}")
        self.a(f"ds_read_b64_tr_b16 {vr(dst+2,2)}, v{vWr} offset:{k*2048+256}")
    def qp_preload(self):
        for n in range(7): self.w_read(self.WORDER[n], self.WSLOT[n])
    def qp_prep(self):
        a = self.a
        a(f"v_and_b32 v{D+1}, 7, v{vL}"); a(f"v_lshlrev_b32 v{D+1}, 7, v{D+1}"); a(f"v_lshrrev_b32 v{D+2}, 3, v{vL}")
        a(f"v_lshl_add_u32 v{D+1}, v{D+2}, 4, v{D+1}")
        for k in range(4): a(f"v_mov_b64 {vr(T+2*k,2)}, 0")
    def qp_issue(self):
        a = self.a
        a(f"s_add_u32 s{sA1}, s{oXR}, 4096")
        for i in range(7):
            a(f"buffer_load_dwordx4 {vr(QP+4*i)}, v{vScr}, {srd(rWS)}, s{oXR if i < 4 else sA1} offen offset:{1024*(i%4)} sc1")
        a("s_mov_b32 exec_hi, 0xffffff")
        a(f"buffer_load_dwordx4 {vr(T)}, v{D+1}, {srd(rWS)}, s{oSXR} offen sc1")
        a(f"buffer_load_dwordx4 {vr(T+4)}, v{D+1}, {srd(rWS)}, s{oSXR} offen offset:1024 sc1")
        a("s_mov_b32 exec_hi, -1")
    def x_stats(self):
        a = self.a
        for k in range(4): a(f"v_mov_b64 {vr(T+2*k,2)}, 0")
        a(f"s_mov_b32 s{sT0}, {ONES}")
        for x in range(QP, QP + 28):
            a(f"v_dot2c_f32_bf16 v{T+(x&1)}, s{sT0}, v{x}"); a(f"v_dot2c_f32_bf16 v{T+4+(x&1)}, v{x}, v{x}")
        a("s_nop 2")
    def r_qp(self):
        a = self.a
        self.lab("QP_first")
        self.qp_prep()
        self.qp_issue()
        self.qp_preload()
        self.lab("QP_chk")
        self.check(self.qp_regs, D, waits=[8, 7, 6, 5, 4, 3, 2, 1, 0])
        a("s_cbranch_vccnz QP_r")
        self.lab("QP_go")
        self.stamp("qp_go", 4, True)
        a("s_waitcnt lgkmcnt(0)")
        s1, s2, t = T + 0, T + 4, T + 1
        sh = [f"v_pk_add_f32 {vr(T,2)}, {vr(T,2)}, {vr(T+2,2)}", f"v_pk_add_f32 {vr(T+4,2)}, {vr(T+4,2)}, {vr(T+6,2)}",
              f"v_add_f32 v{s1}, v{T}, v{T+1}", f"v_add_f32 v{s2}, v{T+4}, v{T+5}", "N", "N",
              f"v_permlane32_swap_b32 v{s1}, v{s2}", f"v_add_f32 v{s1}, v{s1}, v{s2}", f"v_mov_b32 v{t}, v{s1}", "N", "N",
              f"v_permlane16_swap_b32 v{s1}, v{t}", f"v_add_f32 v{s1}, v{s1}, v{t}", "N", "N",
              f"v_add_f32_dpp v{s1}, v{s1}, v{s1} row_ror:8 {DPP}",
              f"v_mul_f32 v{s1}, 0x3b124925, v{s1}",
              f"v_mov_b32 v{t}, v{s1}", "N", "N",
              f"v_permlane32_swap_b32 v{s1}, v{t}",
              f"v_fma_f32 v{t}, -v{s1}, v{s1}, v{t}", f"v_max_f32 v{t}, 0, v{t}", f"v_add_f32 v{t}, 0x3727c5ac, v{t}",
              f"v_rsq_f32 v{t}, v{t}", "N",
              f"v_mul_f32 v{s1}, v{s1}, v{t}",
              f"v_pk_mul_f32 {vr(T+4,2)}, {vr(CS,2)}, {vr(T,2)} op_sel_hi:[1,0]", f"v_pk_mul_f32 {vr(T+6,2)}, {vr(CS+2,2)}, {vr(T,2)} op_sel_hi:[1,0]"]
        for n in range(14):
            i, half = n // 2, n % 2
            d = D + 4 * half
            st = 0
            if n >= 7: a(f"s_waitcnt lgkmcnt({2*(13-n)})"); st += 1
            a(f"{MFMA} {vr(d)}, {vr(self.WSLOT[n%7])}, {vr(QP+4*i)}, {'0' if i == 0 else vr(d)}"); st += 1
            if n < 7: self.w_read(self.WORDER[n + 7], self.WSLOT[n]); st += 2
            while sh and sh[0] == "N" and st: sh.pop(0); st -= 1
            k = 0
            while sh and k < (1 if n < 7 else 2):
                x = sh.pop(0); self.emit_shadow_item(x); k += 1
        nrem = len(sh) + k
        for x in sh: self.emit_shadow_item(x)
        if nrem < 8: a(f"s_nop {7 - nrem}")
        for r in range(4): a(f"v_add_f32_dpp v{D+r}, v{D+4+r}, v{D+r} row_ror:8 {DPP}")
        a(f"v_pk_fma_f32 {vr(D+2,2)}, {vr(D+2,2)}, {vr(T,2)}, {vr(T+6,2)} op_sel:[0,1,0] neg_lo:[0,0,1] neg_hi:[0,0,1]")
        a(f"v_pk_fma_f32 {vr(D,2)}, {vr(D,2)}, {vr(T,2)}, {vr(T+4,2)} op_sel:[0,1,0] neg_lo:[0,0,1] neg_hi:[0,0,1]")
        a(f"v_cvt_pk_bf16_f32 v{D+5}, v{D+2}, v{D+3}")
        a(f"v_cvt_pk_bf16_f32 v{D+4}, v{D+0}, v{D+1}")
        a("s_nop 0")
        a(f"v_mov_b32_dpp v{D+4}, v{D+5} row_ror:8 row_mask:0xf bank_mask:0xc")
        a(f"v_min_u32 v{D+4}, -2, v{D+4}")
        self.pub("buffer_store_dword", f"v{D+4}", vQw, oQW)
        self.stamp("q_pub", 5, True)
        self.ret_if_stream()
    def r_qp_stubs(self):
        self.lab("QP_r"); self.budget("QP_go"); self.qp_issue(); self.a("s_branch QP_chk")

    def att_regs(self, k): return [(S + 4 * k, 4)]
    def att_issue(self, k=0):
        self.a(f"buffer_load_dwordx4 {vr(S+4*k)}, v{vScr}, {srd(rWS)}, s{oQR} offen sc1")
    def r_att(self):
        a = self.a
        self.pipelined("ATT", 3 if self.pipe else 1, self.att_issue, self.att_regs, lambda k: a(f"ds_write_b128 v{vScr}, {vr(S+4*k)}"), T + 0)
        for i in range(4): a(f"ds_read_b128 {vr(QP+4*i)}, v{vQr} offset:{128*i}")
        self.stamp("att_go", 6, True)
        a(f"s_bitcmp1_b32 s{sL}, 0")
        for k in range(8): a(f"v_mov_b64 {vr(D+2*k,2)}, 0")
        a("s_cbranch_scc1 ATT_qkB")
        def sel(t):
            d = D + 4 * t
            return [f"v_add_f32_dpp v{T+h}, v{d+h}, v{d+2+h} quad_perm:[0,1,2,3] row_mask:{1<<t:#x} bank_mask:0xf" for h in range(2)]
        def qk(base):
            fill = {4: [f"v_lshrrev_b32 v{T+5}, 5, v{vL}"], 5: [f"v_lshlrev_b32 v{T+5}, 2, v{T+5}"],
                    6: [f"v_add_u32 v{T+5}, s{sScrW}, v{T+5}"], 11: [sel(0)[0]], 12: [sel(0)[1]]}
            for t in range(4):
                for i in range(4):
                    if t == 0: a(f"s_waitcnt lgkmcnt({3-i})")
                    a(f"{SMF} {vr(D+4*t)}, {vr(QP+4*i)}, {ar(base+32*t+8*i,8)}, v{vIdx}")
                    for x in fill.get(4 * t + i, []): a(x)
        qk(0)
        a("s_branch ATT_sm")
        self.lab("ATT_qkB")
        qk(128)
        self.lab("ATT_sm")
        z = [f"v_mov_b64 {vr(QP+16+2*k,2)}, 0" for k in range(8)]
        def Z(n):
            for _ in range(n): a(z.pop(0) if z else "s_nop 0")
        for x in sel(1): a(x)
        Z(1)
        for x in sel(2): a(x)
        Z(3)
        for x in sel(3): a(x)
        m, t = T + 2, T + 3
        a(f"v_mov_b64 {vr(m,2)}, {vr(T,2)}")
        Z(2)
        a(f"v_permlane32_swap_b32 v{m}, v{t}")
        a(f"v_max_f32 v{m}, v{m}, v{t}")
        a(f"v_mov_b32 v{t}, v{m}")
        Z(2)
        a(f"v_permlane16_swap_b32 v{m}, v{t}")
        a(f"v_max_f32 v{m}, v{m}, v{t}")
        for r in (8, 4, 2, 1):
            a("s_nop 1"); a(f"v_max_f32_dpp v{m}, v{m}, v{m} row_ror:{r} {DPP}")
        a(f"v_mul_f32 v{m}, s{sC}, v{m}")
        a(f"v_mov_b32 v{t}, v{m}")
        a(f"v_mov_b32 v{T+4}, v{m}")
        a(f"ds_write_b32 v{T+5}, v{m} offset:256")
        a(f"v_permlane32_swap_b32 v{m}, v{t}")
        a(f"v_fma_f32 v{T+0}, v{T+0}, s{sC}, -v{m}")
        a(f"v_fma_f32 v{T+1}, v{T+1}, s{sC}, -v{t}")
        a(f"v_exp_f32 v{T+0}, v{T+0}")
        a(f"v_exp_f32 v{T+1}, v{T+1}")
        a(f"s_cmp_lg_u32 s{sStream}, 0")
        a(f"v_cvt_pk_bf16_f32 v{T+2}, v{T+0}, v{T+1}")
        a(f"ds_write_b16 v{vPw}, v{T+2}")
        a(f"ds_write_b16_d16_hi v{vPw}, v{T+2} offset:128")
        a(f"v_permlane32_swap_b32 v{T+0}, v{T+1}")
        a(f"v_add_f32 v{T+0}, v{T+0}, v{T+1}")
        a(f"v_mov_b32 v{T+1}, v{T+0}")
        a(f"v_and_b32 v{T+5}, 0xffffff6f, v{vPr}")
        a(f"v_and_b32 v{T+3}, 0xfffff000, v{vPr}")
        a(f"v_permlane16_swap_b32 v{T+0}, v{T+1}")
        a(f"v_add_f32 v{T+0}, v{T+0}, v{T+1}")
        a("s_waitcnt lgkmcnt(0)")
        if self.stamps and not self.posst:
            self.stamp("att_end", 7, True); a(f"s_cmp_lg_u32 s{sStream}, 0")
        a("s_cbranch_scc1 RET")

    def pv_reads(self):
        a = self.a
        a("s_barrier")
        a(f"s_mov_b64 exec, {sp(mP)}")
        for mp in range(4): a(f"ds_read_b128 {vr(QP+16+4*mp)}, v{vPr} offset:{32*mp}")
        a("s_mov_b64 exec, -1")
        a(f"ds_read_b64 {vr(T+6,2)}, v{T+5} offset:256")
        for w in range(4): a(f"ds_read_b64 {vr(QP+2*w,2)}, v{T+3} offset:{1024*w+256}")
    def pv_shadow(self):
        l, M0, M1, t = T + 0, QP + 8, QP + 9, T + 2
        o = []
        for r in (8, 4, 2, 1):
            o += [f"v_add_f32_dpp v{l}, v{l}, v{l} row_ror:{r} {DPP}", "N", "N"]
        o = o[:-2]
        o += ["W",
              f"v_max3_f32 v{M0}, v{QP}, v{QP+2}, v{QP+4}", f"v_max3_f32 v{M1}, v{QP+1}, v{QP+3}, v{QP+5}",
              f"v_max_f32 v{M0}, v{M0}, v{QP+6}", f"v_max_f32 v{M1}, v{M1}, v{QP+7}",
              f"v_pk_add_f32 {vr(T+6,2)}, {vr(T+6,2)}, {vr(M0,2)} neg_lo:[0,1] neg_hi:[0,1]",
              f"v_exp_f32 v{T+6}, v{T+6}", f"v_exp_f32 v{T+7}, v{T+7}",
              f"v_mov_b32_dpp v{M0}, v{M1} quad_perm:[0,1,2,3] row_mask:0xc bank_mask:0xf",
              f"v_sub_f32 v{t}, v{T+4}, v{M0}",
              f"v_exp_f32 v{t}, v{t}",
              f"v_lshrrev_b32 v{t+1}, 5, v{vL}",
              f"v_mul_f32 v{l}, v{l}, v{t}",
              f"v_lshlrev_b32 v{t+1}, 10, v{t+1}",
              f"v_and_b32 v{t}, 1, v{vL}",
              f"v_mov_b32_dpp v{l}, v{M0} quad_perm:[0,1,2,3] row_mask:0xf bank_mask:0xf ODDSEL",
              f"v_lshl_add_u32 v{t}, v{t}, 4, v{t+1}",
              f"v_min_u32 v{l}, -2, v{l}",
              "STATS"]
        return o
    def emit_shadow_item(self, x):
        a = self.a
        if x == "N": a("s_nop 0")
        elif x == "W": a("s_waitcnt lgkmcnt(0)")
        elif x.endswith("ODDSEL"):
            a(f"v_cndmask_b32 v{T+0}, v{T+0}, v{QP+8}, vcc")
        elif x == "STATS":
            a("s_mov_b32 exec_lo, 3"); a("s_mov_b32 exec_hi, 3")
            self.pub("buffer_store_dword", f"v{T+0}", T + 2, oST)
            a("s_mov_b64 exec, -1")
        else: a(x)
    def odd_vcc(self):
        self.a(f"s_mov_b32 vcc_lo, {ODD}"); self.a(f"s_mov_b32 vcc_hi, {ODD}")
    def r_pv(self):
        a = self.a
        self.lab("PV")
        self.pv_reads()
        sh = self.pv_shadow()
        z = [f"v_mov_b64 {vr(D+2*k,2)}, 0" for k in range(8)]
        while sh[0] != "W":
            x = sh.pop(0)
            a(z.pop(0) if x == "N" else x)
        for x in z: a(x)
        self.odd_vcc()
        for mp in range(4):
            if mp == 0: a(f"s_waitcnt lgkmcnt(8)")
            for dt in range(4):
                if mp == 0 and dt == 3: a(sh.pop(0) and "s_waitcnt lgkmcnt(0)")
                a(f"{SMF} {vr(D+4*dt)}, {vr(QP+16+4*mp)}, {vr(VAT+32*mp+8*dt,8)}, v{vIdx}")
                if mp * 4 + dt >= 3:
                    for _ in range(2 if mp == 3 or dt == 0 else 1):
                        if sh: self.emit_shadow_item(sh.pop(0))
        for x in sh: self.emit_shadow_item(x)
        self.lab("EPI")
        a("s_nop 4")
        self.stamp("pv_mfma_end", 8, True)
        for dt in range(4): a(f"v_pk_add_f32 {vr(D+4*dt,2)}, {vr(D+4*dt,2)}, {vr(D+4*dt+2,2)}")
        for dt in (0, 2, 1, 3): a(f"v_pk_mul_f32 {vr(D+4*dt,2)}, {vr(D+4*dt,2)}, {vr(T+6,2)}")
        a(f"v_permlane32_swap_b32 v{D+0}, v{D+8}")
        a(f"v_permlane32_swap_b32 v{D+1}, v{D+9}")
        a(f"v_permlane32_swap_b32 v{D+4}, v{D+12}")
        a(f"v_permlane32_swap_b32 v{D+5}, v{D+13}")
        a(f"v_pk_add_f32 {vr(D,2)}, {vr(D,2)}, {vr(D+8,2)}")
        a(f"v_pk_add_f32 {vr(D+4,2)}, {vr(D+4,2)}, {vr(D+12,2)}")
        a("s_nop 1")
        a(f"v_permlane16_swap_b32 v{D+0}, v{D+4}")
        a(f"v_permlane16_swap_b32 v{D+1}, v{D+5}")
        a(f"v_pk_add_f32 {vr(D,2)}, {vr(D,2)}, {vr(D+4,2)}")
        a(f"v_cndmask_b32 v{T+0}, v{D+1}, v{D+0}, vcc")
        a("s_nop 1")
        a(f"v_mov_b32_dpp v{T+1}, v{T+0} quad_perm:[1,0,3,2] {DPP}")
        a(f"v_cndmask_b32 v{T+2}, v{D+0}, v{T+1}, vcc")
        a(f"v_cndmask_b32 v{T+3}, v{T+1}, v{D+1}, vcc")
        a(f"v_cvt_pk_bf16_f32 v{T+0}, v{T+2}, v{T+3}")
        a(f"v_min_u32 v{T+0}, -2, v{T+0}")
        self.pub("buffer_store_dword", f"v{T+0}", vOw, oOW)
        self.stamp("o_pub", 9, True)
        self.ret_if_stream()

    def v_addr(self, tmp):
        for k in range(1, 4): self.a(f"v_xor_b32 v{tmp+k-1}, {k<<5}, v{vVr0}")
    def v_read(self, mp, dt, dst, tmp):
        ad = vVr0 if dt == 0 else tmp + dt - 1
        for hi in range(2):
            for h in range(2):
                self.a(f"ds_read_b64_tr_b16 {vr(dst+4*hi+2*h,2)}, v{ad} offset:{mp*8192+hi*2048+h*512}")
    def r_vcopy(self):
        for mp in range(4):
            self.lab(f"VC_{mp}")
            self.v_addr(T + 1)
            for dt in range(4): self.v_read(mp, dt, VAT + 32 * mp + 8 * dt, T + 1)
            if mp < 3: self.ret_if_stream()
        self.a(f"s_setpc_b64 {sp(sRET)}")
    def r_pv2(self, waits):
        a = self.a
        self.lab("PV2")
        BUF = [S, S + 8, QP + 8, QP]
        self.pv_reads()
        self.odd_vcc()
        sh = self.pv_shadow()
        z = [f"v_mov_b64 {vr(D+2*k,2)}, 0" for k in range(8)]
        tmp = [vKr0, vVb0, vVb1]
        for k in range(1, 4): a(f"v_xor_b32 v{tmp[k-1]}, {k<<5}, v{vVr0}")
        def rd(n, dt):
            mp, w = waits[n]
            if dt == 0 and w is not None:
                a(f"s_waitcnt vmcnt({w})")
                if n == len(waits) - 1: self.stamp("stream_end", 4)
            ad = vVr0 if dt == 0 else tmp[dt - 1]
            for hi in range(2):
                for h in range(2):
                    a(f"ds_read_b64_tr_b16 {vr(BUF[dt]+4*hi+2*h,2)}, v{ad} offset:{mp*8192+hi*2048+h*512}")
        rd(0, 0); rd(0, 1)
        while sh[0] != "W":
            x = sh.pop(0)
            a(z.pop(0) if x == "N" else x)
        for x in z: a(x)
        sh.pop(0); a("s_waitcnt lgkmcnt(8)")
        for x in sh: self.emit_shadow_item(x)
        rd(0, 2); rd(0, 3)
        for n in range(4):
            mp = waits[n][0]
            for dt in range(4):
                a(f"s_waitcnt lgkmcnt({12 if n < 3 else 12-4*dt})")
                a(f"{SMF} {vr(D+4*dt)}, {vr(QP+16+4*mp)}, {vr(BUF[dt],8)}, v{vIdx}")
                if n < 3: rd(n + 1, dt)
        a("s_branch EPI")

    def r_cs(self):
        a = self.a
        self.lab("CSUM")
        for k in range(4): a(f"v_mov_b32 v{T+k}, {ONES}")
        for k in range(4): self.w_read(k, S + 4 * k)
        for k in range(14):
            a(f"s_waitcnt lgkmcnt({min(6, 2*(13-k))})")
            a(f"{MFMA} {vr(CS)}, {vr(S+4*(k%4))}, {vr(T)}, {'0' if k == 0 else vr(CS)}")
            if k + 4 < 14: self.w_read(k + 4, S + 4 * (k % 4))
        a("s_nop 7")
        a(f"s_setpc_b64 {sp(sRET)}")

    def r_loop(self):
        a = self.a
        self.lab("LOOP")
        a(f"s_cmp_ge_u32 s{sJ}, 28"); a("s_cbranch_scc1 L_skipwo")
        assert self.womid
        a(f"buffer_load_dwordx4 {vr(QP+16)}, v{vSr}, {srd(rWS)}, s{oSR} offen sc1")
        for k in range(16): a(f"v_swap_b32 v{WOC+k}, v{WON+k}")
        a("s_branch WO_w")
        self.r_wo()
        a(f"s_cmp_eq_u32 s{sL}, 2"); a("s_cbranch_scc1 L_vpf")
        a(f"s_cmp_eq_u32 s{sL}, 1"); a("s_cbranch_scc1 L_h3w")
        a(f"s_cmp_lg_u32 s{sG}, 0"); a("s_cbranch_scc1 L_fin")
        self.lab("L_h3w")
        if self.h3d: a(f"s_sleep {self.h3d}")
        self.r_h3()
        self.lab("ADV")
        self.advance()
        self.ret_if_stream()
        a(f"s_and_b32 s{sT0}, s{sL}, 1"); a(f"s_cmp_lg_u32 s{sT0}, s{sQM}"); a("s_cbranch_scc1 ATT_poll")
        self.r_qp()
        self.r_att()
        self.r_pv()
        a("s_branch LOOP")
        self.lab("RET")
        a(f"s_setpc_b64 {sp(sRET)}")
        self.lab("L_vpf")
        self.call("VC_0")
        self.tmp_srd(pOUT, 7168)
        a("s_branch H3_poll")
        self.lab("L_skipwo")
        a(f"s_cmp_eq_u32 s{sL}, 3"); a("s_cbranch_scc1 L_fin")
        a(f"s_cmp_eq_u32 s{sL}, 1"); a("s_cbranch_scc1 ADV")
        self.call("VC_0")
        a("s_branch ADV")
        self.r_h3_final(); self.r_wo_stubs(); self.r_qp_stubs()

    def to_qp(self, delay):
        a = self.a
        a(f"s_cmp_eq_u32 s{sQM}, 1")
        a(f"s_cselect_b32 s{sPH}, {QP_I}, {AT_I}")
        a(f"s_cselect_b32 s{sAge}, {delay}, {delay + self.gaps[3] + self.A}")
    def q1_issue(self):
        a = self.a
        a(f"v_lshrrev_b32 v{T+5}, 1, v{vL}"); a(f"v_lshlrev_b32 v{T+5}, 8, v{T+5}"); a(f"v_and_b32 v{T+6}, 1, v{vL}")
        a(f"v_lshl_add_u32 v{T+5}, v{T+6}, 4, v{T+5}")
        a(f"s_mul_i32 s{sA1}, s{sG}, {GSTRIDE}"); a(f"s_lshl_b32 s{sT1}, s{sB}, 5"); a(f"s_add_u32 s{sA1}, s{sA1}, s{sT1}"); a(f"s_add_u32 s{sA1}, s{sA1}, {BASE}")
        a(f"buffer_load_dwordx4 {vr(S)}, v{T+5}, {srd(rWS)}, s{sA1} offen {self.qpol}")
        a(f"v_and_b32 v{T+6}, 31, v{vL}"); a(f"v_lshlrev_b32 v{T+6}, 7, v{T+6}")
        a(f"s_lshl_b32 s{sA1}, s{sG}, 12"); a(f"s_add_u32 s{sA1}, s{sA1}, {XCBASE}")
        a(f"buffer_load_dword v{T+7}, v{T+6}, {srd(rWS)}, s{sA1} offen {self.qpol}")
    def r_q1(self):
        a = self.a
        self.lab("Q1_poll")
        self.q1_issue()
        a("s_waitcnt vmcnt(0)")
        self.check([(S, 4), (T + 7, 1)], T + 0)
        a("s_cbranch_vccz Q1_go")
        a(f"s_cmp_eq_u32 s{sTO}, 0"); a("s_cbranch_scc1 Q1_go"); a(f"s_sub_u32 s{sTO}, s{sTO}, 1"); a("s_branch Q1_poll")
        self.lab("Q1_go")
        a(f"v_readfirstlane_b32 s{sT0}, v{T+7}")
        a("s_nop 1")
        a(f"v_cmp_ne_u32 vcc, s{sT0}, v{T+7}")
        a("s_cbranch_vccnz XC_slow")
        if not self.slow:
            a(f"s_mov_b32 s{rPF+2}, {WS_SIZE}"); a(f"s_mov_b32 s{rPS+2}, 0")
        self.lab("XC_slow")
        self.stamp("gate", 2)
        l = self.newlab("Lw0")
        a(f"s_cmp_eq_u32 s{sW}, 0"); a(f"s_cbranch_scc1 {l}"); a(f"s_cmp_ge_u32 s{sJ}, 28"); a(f"s_cbranch_scc1 {l}")
        self.reset_loc()
        self.lab(l)
        l = self.newlab("Lna")
        a(f"s_cmp_lg_u32 s{sJ}, 31"); a(f"s_cbranch_scc1 {l}"); a(f"s_cmp_lg_u32 s{sW}, 0"); a(f"s_cbranch_scc1 {l}")
        a(f"s_lshl_b32 s{sT0}, s{sG}, 2"); a(f"v_mov_b32 v{T+6}, s{sT0}"); a(f"v_mov_b32 v{T+7}, 1")
        a("s_mov_b64 exec, 1")
        a(f"global_store_dword v{T+6}, v{T+7}, {sp(pDBG)} offset:128 sc1")
        a("s_mov_b64 exec, -1")
        self.lab(l)
        self.warm_part(OOFF, 9)
        a("s_waitcnt lgkmcnt(0)")
        self.call("ATT_h0")
        a(f"s_mov_b32 s{sPH}, {DONE}")
        a(f"s_setpc_b64 {sp(sRET2)}")
    def r_handler(self):
        a = self.a
        G, A, Ar = self.gaps, self.A, self.Ar
        ret = f"s_setpc_b64 {sp(sRET2)}"
        self.lab("HND")
        a(f"s_cmp_eq_u32 s{sAge}, 0"); a("s_cbranch_scc1 HND_act")
        a(f"s_sub_u32 s{sAge}, s{sAge}, 1")
        a(f"s_bitcmp1_b32 s{sPH}, 0"); a("s_cbranch_scc1 HND_ret")
        a(f"s_cmp_gt_u32 s{sAge}, {self.hold}"); a("s_cbranch_scc1 HND_ret")
        a(f"s_waitcnt vmcnt({self.Tlo - 2})"); a(ret)
        self.lab("HND_act")
        for stt, nm in ((DONE, "HND_ret"), (Q1_I, "H_Q1I"), (Q1_C, "H_Q1C"), (WO_C, "H_WOC"), (H3_I, "H_H3I"), (H3_C, "H_H3C"), (QP_I, "H_QPI"), (QP_C, "H_QPC"), (AT_I, "H_ATI0"), (AT_C, "H_ATC")):
            a(f"s_cmp_eq_u32 s{sPH}, {stt}"); a(f"s_cbranch_scc1 {nm}")
        def issue(lab, fn, nxt_):
            self.lab(lab)
            if self.stamps and not self.posst: self.stamp(lab + "_first", {"H_WOI": 26, "H_H3I": 38, "H_QPI": 50, "H_QPIz": 50, "H_ATI": 62}[lab])
            a(f"s_waitcnt vmcnt({self.Tlo})"); a(f"s_mov_b32 s{sAge}, {A-1}"); a(f"s_mov_b32 s{sA0}, 0"); a(f"s_branch {lab}x")
            self.lab(lab + "r"); a(f"s_waitcnt vmcnt({self.Tr})"); a(f"s_mov_b32 s{sAge}, {Ar-1}"); a(f"s_mov_b32 s{sA0}, 1")
            self.lab(lab + "x")
            if self.stamps and not self.posst: self.stamp(lab + "_last", {"H_WOI": 27, "H_H3I": 39, "H_QPI": 51, "H_QPIz": 51, "H_ATI": 63}[lab])
            fn(); a(f"s_mov_b32 s{sPH}, {nxt_}"); a(ret)
        def landed(lab):
            self.lab(lab)
            l = self.newlab("Lw")
            a(f"s_waitcnt vmcnt({2*A})")
            a(f"s_cmp_eq_u32 s{sA0}, 0"); a(f"s_cbranch_scc1 {l}"); a(f"s_waitcnt vmcnt({2*Ar})"); self.lab(l)
        issue("H_WOI", self.wo_issue, WO_C)
        landed("H_WOC")
        self.check(self.wo_st + self.wo_o, T + 0); a("s_cbranch_vccnz H_WOIr")
        a(f"s_cmp_eq_u32 s{sWOok}, 0"); a("s_cbranch_scc1 HND_ret")
        a("s_waitcnt lgkmcnt(0)")
        self.gate2("G2")
        self.wo_scales()
        self.call("WO_go2")
        self.warm_part(XOFF, 3)
        a(f"s_mov_b32 s{sPH}, {H3_I}"); a(f"s_mov_b32 s{sAge}, {G[1]}"); a(ret)
        issue("H_H3I", self.h3_issue, H3_C)
        landed("H_H3C")
        self.check(self.h3_regs(0), T + 0); a("s_cbranch_vccnz H_H3Ir")
        self.call("H3_h0")
        self.warm_part(LSTRIDE + QOFF, 3)
        self.to_qp(G[2])
        a(ret)
        if self.qpblk:
            self.lab("H_QPI"); self.call("QP_first")
            a(f"s_mov_b32 s{sPH}, {AT_I}"); a(f"s_mov_b32 s{sAge}, {G[3]}"); a(ret)
        issue("H_QPI" + ("z" if self.qpblk else ""), lambda: (self.qp_prep(), self.qp_issue()), QP_C)
        landed("H_QPC")
        self.check(self.qp_regs, D); a("s_cbranch_vccnz H_QPI" + ("z" if self.qpblk else "") + "r")
        self.qp_preload()
        self.call("QP_go")
        a(f"s_mov_b32 s{sPH}, {AT_I}"); a(f"s_mov_b32 s{sAge}, {G[3]}"); a(ret)
        self.lab("H_ATI0")
        a(f"s_cmp_eq_u32 s{sKBok}, 0"); a("s_cbranch_scc1 HND_ret")
        issue("H_ATI", self.att_issue, AT_C)
        landed("H_ATC")
        self.check(self.att_regs(0), T + 0); a("s_cbranch_vccnz H_ATIr")
        a(f"s_cmp_lt_u32 s{sKBok}, 2"); a("s_cbranch_scc1 HND_ret")
        a("s_waitcnt lgkmcnt(0)")
        self.call("ATT_h0")
        a(f"s_mov_b32 s{sPH}, {DONE}")
        self.lab("HND_ret")
        a(ret)
        An = (self.Tbase + 1) // 2
        self.lab("H_Q1C")
        a(f"s_waitcnt vmcnt({2*An})")
        self.check([(S, 4), (T + 7, 1)], T + 0); a("s_cbranch_vccz Q1_go")
        self.lab("H_Q1I")
        self.q1_issue(); a(f"s_mov_b32 s{sPH}, {Q1_C}"); a(f"s_mov_b32 s{sAge}, {An-1}"); a(ret)
        self.r_q1()
    def gate2(self, nm):
        a = self.a
        self.lab(f"{nm}_chk")
        a(f"v_cmp_eq_u32 vcc, 0, v{T+7}")
        a(f"s_cbranch_vccz {nm}_ok")
        a(f"s_cmp_eq_u32 s{sTO}, 0"); a(f"s_cbranch_scc1 {nm}_ok"); a(f"s_sub_u32 s{sTO}, s{sTO}, 1")
        a("s_sleep 4")
        a(f"global_load_dword v{T+7}, v{T+6}, {sp(pDBG)} offset:128 sc1"); a("s_waitcnt vmcnt(0)"); a(f"s_branch {nm}_chk")
        self.lab(f"{nm}_ok")
    def finish_chain(self):
        a = self.a
        l1, l2, l3, l4 = (self.newlab("Lfin") for _ in range(4))
        a(f"s_cmp_gt_u32 s{sPH}, {WO_C}"); a(f"s_cbranch_scc1 {l1}")
        a("s_waitcnt vmcnt(0)")
        self.gate2("F2")
        self.call("WO_poll")
        self.lab(l1)
        a(f"s_cmp_gt_u32 s{sPH}, {H3_C}"); a(f"s_cbranch_scc1 {l2}")
        self.call("H3_poll")
        self.to_qp(0)
        self.lab(l2)
        a(f"s_cmp_gt_u32 s{sPH}, {QP_C}"); a(f"s_cbranch_scc1 {l3}")
        self.call("QP_first")
        self.lab(l3)
        a(f"s_cmp_eq_u32 s{sPH}, {DONE}"); a(f"s_cbranch_scc1 {l4}")
        self.call("ATT_poll")
        a("s_waitcnt vmcnt(0)")
        self.lab(l4)

    def k_dma(self, r, m, i):
        a = self.a
        if i == 0:
            self.slot_free(m)
            a(f"s_add_u32 m0, s{sRing}, {m*4096}")
        x = (8 * (m & 1) + 2 * i) << 4
        if x: a(f"v_xor_b32 v{D+15}, {x}, v{vKb}")
        elif i == 0: a("s_nop 0")
        self.throttle()
        a(f"buffer_load_dwordx4 v{D+15 if x else vKb}, {srd(r)}, s{sM+m} offen offset:{i*1024} nt lds")
        return self.streamop()
    def k_copy(self, base, t):
        a = self.a
        for k in range(1, 4): a(f"v_xor_b32 v{D+11+k}, {k<<6}, v{vKr0}")
        for i in range(8):
            ad = vKr0 if i % 4 == 0 else D + 11 + i % 4
            a(f"ds_read_b128 {ar(base+32*t+4*i)}, v{ad} offset:{t*8192+(i//4)*256}")
        self.slot_read(2 * t); self.slot_read(2 * t + 1)
    def v_dma(self, r, m, w):
        a = self.a
        if w == 0:
            self.slot_free(m)
            a(f"s_add_u32 m0, s{sRing}, {m*4096}")
            a("s_nop 0")
        else:
            a(f"s_add_u32 s{sT0}, s{sM+m}, {3072*w}")
        self.throttle()
        a(f"buffer_load_dwordx4 v{vVb0+(m&1)}, {srd(r)}, s{sM+m if w == 0 else sT0} offen offset:{w*1024} nt lds")
        return self.streamop()
    def v_copy(self, mp):
        self.call(f"VC_{mp}"); self.slot_read(2 * mp); self.slot_read(2 * mp + 1)
    def tmp_srd(self, p, size):
        a = self.a
        a(f"s_mov_b32 s{rTMP}, s{p}"); a(f"s_mov_b32 s{rTMP+1}, s{p+1}"); a(f"s_mov_b32 s{rTMP+2}, {size}"); a(f"s_mov_b32 s{rTMP+3}, 0x20000")
    def wo_dma(self, p, slot, ks=range(4)):
        a = self.a
        if 0 in ks: self.slot_free(slot)
        l = self.if_j28()
        self.tmp_srd(p, 4096 * 896)
        a(f"s_lshl_b32 s{sT0}, s{sG}, 1"); a(f"s_and_b32 s{sT1}, s{sJ}, 1"); a(f"s_add_u32 s{sT0}, s{sT0}, s{sT1}")
        a(f"s_lshl_b32 s{sT0}, s{sT0}, 2"); a(f"s_add_u32 s{sT0}, s{sT0}, s{sW}"); a(f"s_mul_i32 s{sT0}, s{sT0}, {64*896}")
        a(f"s_lshr_b32 s{sT1}, s{sJ}, 1"); a(f"s_lshl_b32 s{sT1}, s{sT1}, 6"); a(f"s_add_u32 s{sT0}, s{sT0}, s{sT1}")
        a(f"v_lshrrev_b32 v{D+15}, 2, v{vL}"); a(f"v_mul_u32_u24 v{D+15}, 896, v{D+15}")
        a(f"v_and_b32 v{D+14}, 3, v{vL}"); a(f"v_lshl_add_u32 v{D+15}, v{D+14}, 4, v{D+15}")
        if ks[0]: a(f"s_add_u32 s{sT0}, s{sT0}, {16*896*ks[0]}")
        for kk in ks:
            a(f"s_add_u32 m0, s{sRing}, {slot*4096+kk*1024}")
            if kk != ks[0]: a(f"s_add_u32 s{sT0}, s{sT0}, {16*896}")
            else: a("s_nop 0")
            a(f"buffer_load_dwordx4 v{D+15}, {srd(rTMP)}, s{sT0} offen {self.wpol} lds")
        self.lab(l)
        return self.optional()
    def wo_copy(self, W, slot):
        a = self.a
        a(f"v_lshrrev_b32 v{D+12}, 4, v{vL}"); a(f"v_lshlrev_b32 v{D+12}, 9, v{D+12}")
        a(f"v_bfe_u32 v{D+13}, v{vL}, 2, 2"); a(f"v_lshl_add_u32 v{D+12}, v{D+13}, 6, v{D+12}")
        a(f"v_and_b32 v{D+13}, 3, v{vL}"); a(f"v_lshl_add_u32 v{D+12}, v{D+13}, 3, v{D+12}")
        a(f"v_add_u32 v{D+12}, s{sRing}, v{D+12}")
        for i in range(2):
            for ct in range(2):
                for h in range(2):
                    a(f"ds_read_b64_tr_b16 {vr(W+8*i+4*ct+2*h,2)}, v{D+12} offset:{slot*4096+i*2048+h*256+ct*32}")
        self.slot_read(slot)
    def wq_all(self, only=None):
        a = self.a
        skip = None
        if only is not False and only is not None:
            skip = self.newlab("Lwq")
            a(f"s_cmp_ge_u32 s{sA0}, 16"); a(f"s_cbranch_scc{1 - only} {skip}")
        a(f"s_cmp_ge_u32 s{sA0}, 16")
        a(f"s_cselect_b32 s{rTMP}, s{pWQB}, s{pWQA}"); a(f"s_cselect_b32 s{rTMP+1}, s{pWQB+1}, s{pWQA+1}")
        a(f"s_mov_b32 s{rTMP+2}, {448*8192}"); a(f"s_mov_b32 s{rTMP+3}, 0x20000")
        nq = 7
        if self.bal:
            a(f"s_mul_i32 s{sT1}, s{sW}, 4"); a(f"s_cmp_eq_u32 s{sW}, 3"); a(f"s_cselect_b32 s{sT1}, 18, s{sT1}")
            nq = 10
        else:
            a(f"s_mul_i32 s{sT1}, s{sW}, 7")
        a(f"s_lshl_b32 s{sT0}, s{sT1}, 17"); a(f"s_lshl_b32 s{sT1}, s{sT1}, 10"); a(f"s_add_u32 s{sA1}, s{sT1}, {WQ_LDS}")
        a(f"s_lshl_b32 s{sT1}, s{sG}, 10"); a(f"s_add_u32 s{sT0}, s{sT0}, s{sT1}")
        a(f"s_and_b32 s{sT1}, s{sA0}, 15"); a(f"s_lshl_b32 s{sT1}, s{sT1}, 6"); a(f"s_add_u32 s{sT0}, s{sT0}, s{sT1}")
        a(f"v_lshrrev_b32 v{D+15}, 2, v{vL}"); a(f"v_lshlrev_b32 v{D+15}, 13, v{D+15}")
        a(f"v_and_b32 v{D+14}, 3, v{vL}"); a(f"v_lshl_add_u32 v{D+15}, v{D+14}, 4, v{D+15}")
        o = None
        short = None
        for q in range(nq):
            if self.bal and q == 4:
                short = self.newlab("Lwqs")
                a(f"s_cmp_lt_u32 s{sW}, 2"); a(f"s_cbranch_scc1 {short}")
            a(f"s_add_u32 m0, s{sA1}, {q*1024}")
            if q: a(f"s_add_u32 s{sT0}, s{sT0}, {1 << 17}")
            else: a("s_nop 0")
            a(f"buffer_load_dwordx4 v{D+15}, {srd(rTMP)}, s{sT0} offen {self.wpol} lds")
            if skip is None and short is None: o = self.counted()
        if short is not None: self.lab(short)
        if skip is not None: self.lab(skip)
        if skip is not None or short is not None: o = self.optional()
        return o
    def wq_part(self, q0, n):
        a = self.a
        a(f"s_cmp_ge_u32 s{sA0}, 16")
        a(f"s_cselect_b32 s{rTMP}, s{pWQB}, s{pWQA}"); a(f"s_cselect_b32 s{rTMP+1}, s{pWQB+1}, s{pWQA+1}")
        a(f"s_mov_b32 s{rTMP+2}, {448*8192}"); a(f"s_mov_b32 s{rTMP+3}, 0x20000")
        a(f"s_mul_i32 s{sT1}, s{sW}, 7"); a(f"s_add_u32 s{sT1}, s{sT1}, {q0}")
        a(f"s_lshl_b32 s{sT0}, s{sT1}, 17"); a(f"s_lshl_b32 s{sT1}, s{sT1}, 10"); a(f"s_add_u32 s{sA1}, s{sT1}, {WQ_LDS}")
        a(f"s_lshl_b32 s{sT1}, s{sG}, 10"); a(f"s_add_u32 s{sT0}, s{sT0}, s{sT1}")
        a(f"s_and_b32 s{sT1}, s{sA0}, 15"); a(f"s_lshl_b32 s{sT1}, s{sT1}, 6"); a(f"s_add_u32 s{sT0}, s{sT0}, s{sT1}")
        a(f"v_lshrrev_b32 v{D+15}, 2, v{vL}"); a(f"v_lshlrev_b32 v{D+15}, 13, v{D+15}")
        a(f"v_and_b32 v{D+14}, 3, v{vL}"); a(f"v_lshl_add_u32 v{D+15}, v{D+14}, 4, v{D+15}")
        for q in range(n):
            a(f"s_add_u32 m0, s{sA1}, {q*1024}")
            if q: a(f"s_add_u32 s{sT0}, s{sT0}, {1 << 17}")
            else: a("s_nop 0")
            self.throttle()
            a(f"buffer_load_dwordx4 v{D+15}, {srd(rTMP)}, s{sT0} offen {self.wpol} lds")
            o = self.streamop()
        return o
    def role(self):
        self.a(f"s_mov_b32 s{sA0}, s{sJ}"); self.a(f"s_lshr_b32 s{sT0}, s{sJ}, 1")
        for v, d in ((3, 22), (14, -22), (11, 8), (15, -8)):
            self.a(f"s_add_i32 s{sT1}, s{sJ}, {d}"); self.a(f"s_cmp_eq_u32 s{sT0}, {v}"); self.a(f"s_cselect_b32 s{sA0}, s{sT1}, s{sA0}")
        self.a(f"s_and_b32 s{sJQ}, s{sA0}, 15"); self.a(f"s_lshl_b32 s{sJQ}, s{sJQ}, 1"); self.a(f"s_add_u32 s{sJQ}, s{sJQ}, s{sW}")
        self.a(f"s_lshr_b32 s{sQM}, s{sA0}, 4"); self.a(f"s_cmp_ge_u32 s{sW}, 2"); self.a(f"s_cselect_b32 s{sQM}, 2, s{sQM}")
    def x_first(self):
        a = self.a
        t0, t1 = D + 14, D + 15
        a(f"v_and_b32 v{t0}, 7, v{vL}"); a(f"v_mul_u32_u24 v{t0}, 896, v{t0}"); a(f"v_bfe_u32 v{t1}, v{vL}, 3, 1"); a(f"v_mul_u32_u24 v{t1}, 448, v{t1}")
        a(f"v_add_u32 v{t0}, v{t0}, v{t1}"); a(f"v_and_b32 v{t1}, 48, v{vL}"); a(f"v_add_u32 v{t0}, v{t0}, v{t1}")
        self.tmp_srd(pAX, 7168)
        for i in range(7):
            a(f"buffer_load_dwordx4 {vr(QP+4*i)}, v{t0}, {srd(rTMP)}, 0 offen offset:{64*i}")
    def loc0(self, dst):
        a = self.a
        a(f"s_mul_i32 s{dst}, s{sG}, {GSTRIDE}"); a(f"s_add_u32 s{dst}, s{dst}, {BASE}"); a(f"s_sub_u32 s{dst}, s{dst}, s{sScrW}")
    SENT = S + 12
    def reset_leader(self):
        a = self.a
        l2 = self.newlab("Ldn")
        i1 = f"buffer_store_dwordx4 {vr(self.SENT)}, v{vScr}, {srd(rWS)}, s{sT0} offen"
        a(f"s_cmp_lg_u32 s{sB}, 4"); a(f"s_cbranch_scc1 {l2}")
        a(f"s_cmp_lg_u32 s{sW}, 2"); a(f"s_cbranch_scc1 {l2}")
        self.loc0(sA1)
        a(f"s_lshl_b32 s{sT1}, s{sS}, 11"); a(f"s_add_u32 s{sT0}, s{sA1}, s{sT1}")
        a(i1 + " sc1"); a(i1 + " offset:1024 sc1")
        a(f"s_lshl_b32 s{sT0}, s{sG}, 2"); a(f"s_add_u32 s{sT0}, s{sT0}, s{sS}"); a(f"s_lshl_b32 s{sT0}, s{sT0}, 10")
        a(f"s_add_u32 s{sT0}, s{sT0}, {XCBASE}"); a(f"s_sub_u32 s{sT0}, s{sT0}, s{sScrW}")
        a(i1 + " sc1")
        self.lab(l2)
    def reset_general(self):
        a = self.a
        l = self.if_wave(0); l2 = self.newlab("Ldn")
        self.loc0(sT0)
        a(f"s_mul_i32 s{sT1}, s{sJ}, 1408"); a(f"s_add_u32 s{sT0}, s{sT0}, s{sT1}"); a(f"s_add_u32 s{sT0}, s{sT0}, {OOFF}")
        i1 = f"buffer_store_dwordx4 {vr(self.SENT)}, v{vScr}, {srd(rWS)}, s{sT0} offen"
        a(i1 + " " + self.rpol); a("s_mov_b64 exec, 0xffffff"); a(i1 + " offset:1024 " + self.rpol); a("s_mov_b64 exec, -1")
        a(f"s_branch {l2}")
        self.lab(l)
        a(f"s_mul_i32 s{sT0}, s{sW}, {LSTRIDE}"); a(f"s_mul_i32 s{sT1}, s2, 896"); a(f"s_add_u32 s{sT0}, s{sT0}, s{sT1}")
        a(f"s_add_u32 s{sT0}, s{sT0}, {BASE + X3OFF}"); a(f"s_sub_u32 s{sT0}, s{sT0}, s{sScrW}")
        if "nox3" in self.exp: a(f"s_branch {l2}")
        a("s_mov_b32 exec_hi, 0xffffff"); a(i1 + " " + self.rpol); a("s_mov_b32 exec_hi, -1")
        self.lab(l2)
        if "noown" in self.exp: return
        l = self.if_j28()
        a(f"buffer_store_dword v{self.SENT}, v{vX3w}, {srd(rWS)}, s{oX3W} offen {self.rpol}")
        self.lab(l)
    def reset_loc(self):
        a = self.a
        self.loc0(sT0)
        a(f"s_mul_i32 s{sT1}, s{sW}, {LSTRIDE}"); a(f"s_add_u32 s{sT0}, s{sT0}, s{sT1}")
        a(f"s_mul_i32 s{sT1}, s{sJ}, 1872"); a(f"s_add_u32 s{sT0}, s{sT0}, s{sT1}")
        self.pub("buffer_store_dwordx4", vr(self.SENT), vScr, sT0)
        a("s_mov_b32 exec_hi, 0x1fffff"); self.pub("buffer_store_dwordx4", vr(self.SENT), vScr, sT0, "offset:1024"); a("s_mov_b32 exec_hi, -1")
    def warm_part(self, off, n):
        if not self.warm: return
        a = self.a
        l = self.if_wave(3)
        a(f"s_mul_i32 s{sT0}, s{sG}, {GSTRIDE}"); a(f"s_mul_i32 s{sT1}, s{sJ}, {n*128}"); a(f"s_add_u32 s{sT0}, s{sT0}, s{sT1}")
        a(f"s_add_u32 s{sT0}, s{sT0}, {BASE + off}")
        a(f"v_lshlrev_b32 v{CS+1}, 7, v{vL}")
        a(f"s_mov_b64 exec, {(1 << n) - 1}")
        a(f"buffer_load_dword v{CS}, v{CS+1}, {srd(rWS)}, s{sT0} offen")
        a("s_mov_b64 exec, -1")
        self.lab(l)
    def warm_loads(self, t0, sink):
        if not self.warm: return
        a = self.a
        l = self.if_wave(3)
        a(f"v_mul_u32_u24 v{t0+1}, 79, v{vL}"); a(f"v_lshrrev_b32 v{t0+1}, 10, v{t0+1}")
        a(f"v_mul_u32_u24 v{t0}, 13, v{t0+1}"); a(f"v_sub_u32 v{t0}, v{vL}, v{t0}")
        a(f"s_mov_b32 s{sT0}, {LSTRIDE}"); a(f"v_mul_lo_u32 v{t0+1}, v{t0+1}, s{sT0}")
        a(f"v_lshl_add_u32 v{t0+1}, v{t0}, 7, v{t0+1}")
        a(f"s_mul_i32 s{sT0}, s{sG}, {GSTRIDE}"); a(f"s_mul_i32 s{sT1}, s{sJ}, {13*128}"); a(f"s_add_u32 s{sT0}, s{sT0}, s{sT1}")
        a(f"s_add_u32 s{sT0}, s{sT0}, {BASE}")
        a(f"buffer_load_dword v{sink}, v{t0+1}, {srd(rWS)}, s{sT0} offen")
        self.lab(l)
    def if_wave(self, w):
        l = self.newlab("Lnw")
        self.a(f"s_cmp_lg_u32 s{sW}, {w}"); self.a(f"s_cbranch_scc1 {l}")
        return l
    def if_qm(self, p):
        l = self.newlab("Lnq")
        self.a(f"s_cmp_lg_u32 s{sQM}, {p}"); self.a(f"s_cbranch_scc1 {l}")
        return l
    def if_j28(self):
        l = self.newlab("Lj28")
        self.a(f"s_cmp_ge_u32 s{sJ}, 28"); self.a(f"s_cbranch_scc1 {l}")
        return l

    def build(self):
        name = KN + "_kernel"
        self.L = header([f"; @launch grid=(256,1,1) block=(256,1,1) lds={LDS_TOTAL}"]) + kernel_begin(name)
        a = self.a
        a("s_cmp_ge_u32 s2, 256"); a("s_cbranch_scc1 L_end")
        a("s_load_dwordx16 s[8:23], s[0:1], 0")
        a("s_load_dwordx8 s[24:31], s[0:1], 64")
        a("s_load_dwordx2 s[32:33], s[0:1], 96")
        a(f"v_lshrrev_b32 v1, 6, v0"); a(f"v_and_b32 v{vL}, 63, v0"); a(f"v_readfirstlane_b32 s{sW}, v1")
        a(f"s_and_b32 s{sG}, s2, 7"); a(f"s_lshr_b32 s{sJ}, s2, 3"); a(f"s_lshr_b32 s{sB}, s2, 5"); a(f"s_and_b32 s{sS}, s{sJ}, 3")
        a(f"s_lshl_b32 s{sRing}, s{sW}, 15"); a(f"s_lshl_b32 s{sScrW}, s{sW}, 10"); a(f"s_add_u32 s{sScrW}, s{sScrW}, {SCR}")
        for m in range(8): a(f"s_mov_b32 s{sM+m}, {m*65536}")
        t0, t1, t2 = T, T + 1, T + 2
        a(f"s_lshl_b32 s{sT0}, s{sS}, 14"); a(f"s_lshl_b32 s{sT1}, s{sW}, 12"); a(f"s_add_u32 s{sT1}, s{sT0}, s{sT1}")
        a(f"v_lshrrev_b32 v{t0}, 5, v{vL}"); a(f"v_and_b32 v{t1}, 31, v{vL}"); a(f"v_xor_b32 v{t1}, v{t1}, v{t0}")
        a(f"v_lshlrev_b32 v{t0}, 9, v{t0}"); a(f"v_lshl_add_u32 v{t0}, v{t1}, 4, v{t0}"); a(f"v_add_u32 v{vKb}, s{sT1}, v{t0}")
        a(f"s_lshl_b32 s{sT0}, s{sB}, 3"); a(f"s_add_u32 s{sT0}, s{sT0}, s{sG}"); a(f"s_lshl_b32 s{sT0}, s{sT0}, 21")
        a(f"s_add_u32 s{sT0}, s{sT0}, 0x180000")
        if self.stamps:
            a(f"v_mov_b32 v{vST}, 0"); a(f"s_mov_b32 s{sSB}, 16")
            a("s_memtime s[100:101]")
        a("s_waitcnt lgkmcnt(0)")
        if self.stamps: a(f"v_writelane_b32 v{vST}, s100, 13")
        self.stamp("start", 0)
        for r, p in ((rKA, pKA), (rVA, pVA), (rKB, pKB), (rVB, pVB)):
            a(f"s_add_u32 s{r}, s{p}, s{sT0}"); a(f"s_addc_u32 s{r+1}, s{p+1}, 0"); a(f"s_mov_b32 s{r+2}, 0x80000"); a(f"s_mov_b32 s{r+3}, 0x20000")
        kA = {}
        if self.WQ1 < 0:
            self.role()
            wq0 = self.wq_all(self.wqsplit and 0)
        for m in range(self.K0 // 4):
            for i in range(4): kA[(m, i)] = self.k_dma(rKA, m, i)
        self.stamp("k0", 6)
        for r, size in ((rWS, 0), (rPF, 0), (rPS, 0)):
            a(f"s_mov_b32 s{r}, s{pWS}"); a(f"s_mov_b32 s{r+1}, s{pWS+1}"); a(f"s_mov_b32 s{r+2}, {size}"); a(f"s_mov_b32 s{r+3}, 0x20000")
        a(f"s_mov_b32 s{sTO}, {self.TO}"); a(f"s_mov_b32 s{sL}, 0"); a(f"s_mov_b32 s{sC}, {CSCALE}")
        a(f"s_mov_b32 s{sStream}, 1"); a(f"s_mov_b32 s{sWarm}, 1"); a(f"s_mov_b32 s{sSENT1}, -1"); a(f"s_mov_b32 s{sSENT2}, 0")
        for r, v in ((mX, 0xFF),):
            a(f"s_mov_b32 s{r}, {v:#x}"); a(f"s_mov_b32 s{r+1}, {v:#x}")
        a(f"s_mov_b32 s{mP}, 0x00f0000f"); a(f"s_mov_b32 s{mP+1}, 0xf0000f00")
        if self.WQ1 >= 0: self.role()
        n_, kq_, r_, c_, o_ = D, D + 1, D + 2, D + 3, D + 4
        a(f"v_and_b32 v{n_}, 15, v{vL}"); a(f"v_lshrrev_b32 v{kq_}, 4, v{vL}"); a(f"v_bfe_u32 v{r_}, v{vL}, 2, 2"); a(f"v_and_b32 v{c_}, 3, v{vL}")
        a(f"v_and_b32 v{o_}, 1, v{vL}")
        a(f"v_lshlrev_b32 v{t0}, 4, v{vL}"); a(f"v_add_u32 v{vScr}, s{sScrW}, v{t0}")
        a(f"v_bfe_u32 v{t0}, v{vL}, 2, 1"); a(f"v_mul_u32_u24 v{t0}, 896, v{t0}"); a(f"v_lshl_add_u32 v{t0}, v{c_}, 3, v{t0}")
        a(f"v_lshrrev_b32 v{t1}, 5, v{vL}"); a(f"v_lshl_add_u32 v{vXn}, v{t1}, 2, v{t0}")
        a(f"v_bfe_u32 v{t0}, v{vL}, 1, 1"); a(f"v_lshlrev_b32 v{t0}, 8, v{t0}"); a(f"v_lshl_add_u32 v{t0}, v{t1}, 2, v{t0}")
        a(f"v_bfe_u32 v{t1}, v{vL}, 2, 1"); a(f"v_lshl_add_u32 v{t0}, v{t1}, 4, v{t0}"); a(f"v_lshl_add_u32 v{vXw}, v{o_}, 3, v{t0}")
        a(f"v_lshrrev_b32 v{t0}, 1, v{kq_}"); a(f"v_lshlrev_b32 v{t0}, 11, v{t0}"); a(f"v_and_b32 v{t1}, 1, v{kq_}")
        a(f"v_lshl_add_u32 v{t0}, v{t1}, 6, v{t0}"); a(f"v_lshl_add_u32 v{vX3w}, v{n_}, 2, v{t0}")
        a(f"s_lshl_b32 s{sT0}, s{sS}, 14"); a(f"s_lshl_b32 s{sT1}, s{sW}, 7"); a(f"s_add_u32 s{sT0}, s{sT0}, s{sT1}")
        a(f"v_and_b32 v{t0}, 7, v{vL}"); a(f"v_lshlrev_b32 v{t1}, 1, v{t1}"); a(f"v_xor_b32 v{t0}, v{t0}, v{t1}")
        a(f"v_lshrrev_b32 v{t1}, 3, v{vL}"); a(f"v_lshlrev_b32 v{t1}, 9, v{t1}"); a(f"v_lshl_add_u32 v{t0}, v{t0}, 4, v{t1}")
        a(f"v_add_u32 v{vVb0}, s{sT0}, v{t0}"); a(f"v_xor_b32 v{vVb1}, 64, v{vVb0}")
        a(f"v_bfe_u32 v{t0}, v{vL}, 3, 1"); a(f"v_lshlrev_b32 v{t0}, 12, v{t0}"); a(f"v_and_b32 v{t1}, 7, v{vL}"); a(f"v_lshl_add_u32 v{t0}, v{t1}, 9, v{t0}")
        a(f"v_xor_b32 v{t1}, v{kq_}, v{n_}"); a(f"v_lshl_add_u32 v{t0}, v{t1}, 4, v{t0}"); a(f"v_add_u32 v{vKr0}, s{sRing}, v{t0}")
        a(f"v_and_b32 v{t1}, 1, v{kq_}"); a(f"v_mul_u32_u24 v{t0}, 4160, v{t1}"); a(f"v_lshrrev_b32 v{t1}, 1, v{kq_}"); a(f"v_lshl_add_u32 v{t0}, v{t1}, 10, v{t0}")
        a(f"v_lshl_add_u32 v{t0}, v{r_}, 7, v{t0}"); a(f"v_lshl_add_u32 v{t0}, v{c_}, 3, v{t0}")
        a(f"v_lshrrev_b32 v{t1}, 1, v{r_}"); a(f"v_lshl_add_u32 v{t0}, v{t1}, 5, v{t0}"); a(f"v_add_u32 v{vVr0}, s{sRing}, v{t0}")
        a(f"v_bfe_u32 v{t2}, v{vL}, 1, 1")
        a(f"v_mul_u32_u24 v{vIdx}, 0xaaaa, v{t2}"); a(f"v_add_u32 v{vIdx}, 0x4444, v{vIdx}")
        a(f"v_lshlrev_b32 v{t0}, 9, v{o_}"); a(f"v_lshl_add_u32 v{t0}, v{kq_}, 5, v{t0}"); a(f"v_lshl_add_u32 v{t0}, v{t2}, 4, v{t0}")
        a(f"v_add_u32 v{vQr}, s{sScrW}, v{t0}")
        a(f"v_lshlrev_b32 v{t0}, 7, v{o_}"); a(f"v_lshl_add_u32 v{t0}, v{kq_}, 10, v{t0}"); a(f"v_lshl_add_u32 v{t0}, v{t2}, 4, v{t0}")
        a(f"v_add_u32 v{vPr}, {SCR}, v{t0}")
        a(f"v_lshlrev_b32 v{t0}, 5, v{kq_}"); a(f"v_lshl_add_u32 v{t0}, v{t2}, 4, v{t0}"); a(f"v_lshl_add_u32 v{t0}, v{r_}, 2, v{t0}")
        a(f"v_lshl_add_u32 v{t0}, v{o_}, 1, v{t0}"); a(f"v_add_u32 v{vPw}, s{sScrW}, v{t0}")
        a(f"v_and_b32 v{t0}, 6, v{vL}"); a(f"v_lshlrev_b32 v{t0}, 1, v{t0}"); a(f"v_lshl_add_u32 v{t0}, v{o_}, 14, v{t0}")
        a(f"v_lshrrev_b32 v{t1}, 5, v{vL}"); a(f"v_lshl_add_u32 v{t0}, v{t1}, 10, v{t0}")
        a(f"v_bfe_u32 v{t2}, v{vL}, 3, 2"); a(f"v_lshl_add_u32 v{vOw}, v{t2}, 8, v{t0}")
        a(f"v_and_b32 v{t0}, 31, v{vL}"); a(f"v_lshlrev_b32 v{t0}, 5, v{t0}"); a(f"v_lshl_add_u32 v{vSr}, v{t1}, 4, v{t0}")
        a(f"v_and_b32 v{t0}, 7, v{vL}"); a(f"v_lshlrev_b32 v{t0}, 5, v{t0}"); a(f"v_lshl_add_u32 v{t0}, v{kq_}, 2, v{t0}")
        a(f"v_bfe_u32 v{t2}, v{vL}, 3, 1"); a(f"v_lshl_add_u32 v{vQw}, v{t2}, 4, v{t0}")
        a(f"s_and_b32 s{sT0}, s{sW}, 1"); a(f"s_lshl_b32 s{sT0}, s{sT0}, 5"); a(f"s_add_u32 s{sT0}, s{sT0}, {WQ_LDS}")
        a(f"v_lshlrev_b32 v{t0}, 9, v{kq_}"); a(f"v_lshl_add_u32 v{t0}, v{r_}, 6, v{t0}"); a(f"v_lshl_add_u32 v{t0}, v{c_}, 3, v{t0}")
        a(f"v_add_u32 v{vWr}, s{sT0}, v{t0}")
        a(f"s_mul_i32 s{sA1}, s{sG}, {GSTRIDE}"); a(f"s_add_u32 s{sA1}, s{sA1}, {BASE}")
        a(f"s_sub_u32 s{oXR}, s{sA1}, s{sScrW}")
        a(f"s_lshl_b32 s{sT0}, s{sB}, 10"); a(f"s_add_u32 s{oQR}, s{oXR}, s{sT0}")
        a(f"s_lshl_b32 s{sT0}, s{sJQ}, 8"); a(f"s_add_u32 s{oQW}, s{sA1}, s{sT0}")
        a(f"s_lshl_b32 s{sT0}, s{sJ}, 5"); a(f"s_lshl_b32 s{sT1}, s{sW}, 2"); a(f"s_add_u32 s{sT0}, s{sT0}, s{sT1}")
        a(f"s_add_u32 s{oSR}, s{sA1}, {STOFF}"); a(f"s_add_u32 s{oST}, s{oSR}, s{sT0}")
        a(f"s_and_b32 s{sT1}, s{sJ}, 1"); a(f"s_lshl_b32 s{sT0}, s{sT1}, 10"); a(f"s_add_u32 s{oSR}, s{oSR}, s{sT0}")
        a(f"s_lshl_b32 s{sT0}, s{sW}, 12"); a(f"s_add_u32 s{sT0}, s{sT0}, {OOFF}")
        a(f"s_add_u32 s{oOW}, s{sA1}, s{sT0}"); a(f"s_add_u32 s{oOR}, s{oXR}, s{sT0}")
        a(f"s_lshl_b32 s{sT0}, s{sT1}, 14"); a(f"s_add_u32 s{oOR}, s{oOR}, s{sT0}")
        a(f"s_lshr_b32 s{sT0}, s{sJ}, 4"); a(f"s_lshl_b32 s{sT0}, s{sT0}, 11"); a(f"s_add_u32 s{oOW}, s{oOW}, s{sT0}")
        a(f"s_and_b32 s{sT0}, s{sJ}, 15"); a(f"s_lshl_b32 s{sT0}, s{sT0}, 4"); a(f"s_add_u32 s{oOW}, s{oOW}, s{sT0}")
        a(f"s_and_b32 s{oX3W}, s{sJ}, 30"); a(f"s_lshl_b32 s{oX3W}, s{oX3W}, 13"); a(f"s_lshl_b32 s{sT0}, s{sW}, 12"); a(f"s_add_u32 s{oX3W}, s{oX3W}, s{sT0}")
        a(f"s_lshl_b32 s{sT0}, s{sG}, 8"); a(f"s_add_u32 s{oX3W}, s{oX3W}, s{sT0}"); a(f"s_lshl_b32 s{sT0}, s{sT1}, 7"); a(f"s_add_u32 s{oX3W}, s{oX3W}, s{sT0}")
        a(f"s_add_u32 s{oX3W}, s{oX3W}, {BASE + X3OFF}")
        a(f"s_lshl_b32 s{oX3R}, s{sJ}, 13"); a(f"s_lshl_b32 s{sT0}, s{sW}, 11"); a(f"s_add_u32 s{oX3R}, s{oX3R}, s{sT0}")
        a(f"s_add_u32 s{oX3R}, s{oX3R}, {BASE + X3OFF}"); a(f"s_sub_u32 s{oX3R}, s{oX3R}, s{sScrW}")
        a(f"s_lshr_b32 s{sXN}, s{sJ}, 1"); a(f"s_lshl_b32 s{oXW}, s{sXN}, 10"); a(f"s_cmp_ge_u32 s{sXN}, 7")
        a(f"s_cselect_b32 s{sT0}, {(128 - 7168) & 0xffffffff}, 0"); a(f"s_add_u32 s{oXW}, s{oXW}, s{sT0}"); a(f"s_lshl_b32 s{sXN}, s{sXN}, 6")
        a(f"s_lshl_b32 s{sT1}, s{sT1}, 1"); a(f"s_and_b32 s{sT0}, s{sW}, 1"); a(f"s_add_u32 s{sT1}, s{sT1}, s{sT0}")
        a(f"s_lshl_b32 s{sT0}, s{sT1}, 5"); a(f"s_add_u32 s{oXW}, s{oXW}, s{sT0}"); a(f"s_mul_i32 s{sT0}, s{sT1}, 1792"); a(f"s_add_u32 s{sXN}, s{sXN}, s{sT0}")
        a(f"s_lshr_b32 s{sT1}, s{sW}, 1"); a(f"s_lshl_b32 s{sT0}, s{sT1}, 9"); a(f"s_add_u32 s{oXW}, s{oXW}, s{sT0}")
        a(f"s_lshl_b32 s{sT0}, s{sT1}, 5"); a(f"s_add_u32 s{sXN}, s{sXN}, s{sT0}")
        a(f"s_add_u32 s{oXW}, s{oXW}, s{sA1}"); a(f"s_add_u32 s{oXW}, s{oXW}, {XOFF}")
        a(f"s_add_u32 s{oXR}, s{oXR}, {(XOFF - LSTRIDE) & 0xffffffff}")
        a(f"s_add_u32 s{oSXR}, s{sA1}, {(SXOFF - LSTRIDE) & 0xffffffff}")
        a(f"s_and_b32 s{sT0}, s{sJ}, 30"); a(f"s_add_u32 s{sT0}, s{sT0}, s{sT1}"); a(f"s_lshl_b32 s{oSXW}, s{sT0}, 2")
        a(f"s_and_b32 s{sT0}, s{sJ}, 1"); a(f"s_lshl_b32 s{sT0}, s{sT0}, 9"); a(f"s_add_u32 s{oSXW}, s{oSXW}, s{sT0}")
        a(f"s_and_b32 s{sT0}, s{sW}, 1"); a(f"s_lshl_b32 s{sT0}, s{sT0}, 8"); a(f"s_add_u32 s{oSXW}, s{oSXW}, s{sT0}")
        a(f"s_add_u32 s{oSXW}, s{oSXW}, s{sA1}"); a(f"s_add_u32 s{oSXW}, s{oSXW}, {SXOFF}")
        if self.codepf:
            l = self.newlab("Lpf")
            a(f"s_lshl_b32 s{sT0}, s{sJ}, 2"); a(f"s_add_u32 s{sT0}, s{sT0}, s{sW}")
            a(f"s_cmp_ge_u32 s{sT0}, (L_codeend - {name} + 1023) / 1024"); a(f"s_cbranch_scc1 {l}")
            a(f"s_getpc_b64 s[34:35]")
            self.lab("L_pc")
            a(f"s_lshl_b32 s{sT0}, s{sT0}, 10"); a(f"s_sub_u32 s{sT0}, s{sT0}, L_pc - {name}")
            a(f"s_ashr_i32 s{sT1}, s{sT0}, 31")
            a(f"s_add_u32 s34, s34, s{sT0}"); a(f"s_addc_u32 s35, s35, s{sT1}")
            a(f"v_lshlrev_b32 v{t0}, 4, v{vL}")
            a(f"global_load_dword v{CS}, v{t0}, s[34:35]")
            self.lab(l)
        a(f"s_mov_b32 s{rWS+2}, {WS_SIZE}")
        for k in range(4): a(f"v_mov_b32 v{self.SENT+k}, -1")
        self.reset_leader()
        if self.P0 == 0: self.reset_general()
        rst = self.optional()
        a(f"s_mov_b32 s{sWarm}, 0"); a(f"s_mov_b32 s{sSENT2}, -1"); a(f"s_mov_b32 s{(rPF if 'plainq' in self.exp else rPS)+2}, {WS_SIZE}")
        self.tmp_srd(pAX, 7168)
        a(f"buffer_load_dword v{vXres}, v{vXn}, {srd(rTMP)}, s{sXN} offen")
        self.counted()
        self.stamp("setup_end", 7)

        self.thr_on = True
        order2 = [2, 3, 4, 5, 6, 7, 0, 1]
        groups = [("K", "A", m) for m in range(8)] + [("V", "A", m) for m in range(8)] + \
                 [("K", "B", m) for m in order2] + [("V", "B", m) for m in order2]
        extra = {i: [] for i in range(32)}
        if self.stagB:
            for k, w in enumerate([2, 3, 0, 1]): extra[self.WQB + (self.stagB * k) // 2].append(("WW", "B", w, k))
        if self.stag:
            order = [2, 3, 0, 1]
            for k, w in enumerate(order): extra[self.WQ1 + (self.stag * k) // 2].append(("WW", "A", w, 0))
            extra[self.WQ1 + (self.stag * 3) // 2].append(("X", "A", 0, 0))
        elif self.wqs:
            g0 = self.WQ1
            for q0 in range(0, 7, self.wqs):
                extra[g0].append(("WP", "A", q0, min(self.wqs, 7 - q0))); g0 += 1
            extra[g0 - 1].append(("X", "A", 0, 0))
        elif "nowq" not in self.exp and self.WQ1 >= 0: extra[self.WQ1].append(("WQ", "A", 0, 0))
        if self.WQ1 < 0: extra[self.XP].append(("X", "A", 0, 0))
        if self.wqsplit and not self.stagB: extra[self.WQB].append(("WQ", "B", 0, 0))
        if "nowo" not in self.exp:
            for g0, ab, sl in ((self.WOA, "A", self.woslot), (self.WO2, "B", 1)):
                if g0 < 0: continue
                if self.wos:
                    for k in range(0, 4, self.wos): extra[g0 + k // self.wos].append(("WS", ab, sl, k))
                else: extra[g0].append(("WO", ab, sl, 0))
        prog = []
        for gi, (kd, ab, m) in enumerate(groups):
            prog += [(kd, ab, m, i) for i in range(4) if not (kd == "K" and ab == "A" and (m, i) in kA)]
            prog += extra[gi]
        ops = {("K", "A") + k: v for k, v in kA.items()}
        copies = [([kA[(m, i)] for m in (2 * t, 2 * t + 1) for i in range(4)], (lambda t=t: self.k_copy(0, t)), ("K", "A", t))
                  for t in range(self.K0 // 8)]
        copied = set()
        st = {"phase": 0, "smark": 0}
        G = self.gaps
        def need(tags): return all(t in copied for t in tags)
        KA_all = [("K", "A", t) for t in range(4)]
        KB_all = [("K", "B", t) for t in range(4)]
        VA_all = [("V", "A", mp) for mp in range(4)]
        def drain_to(n):
            if len(self.stream) > n: self.wait_for(self.stream[-n - 1])
        def burst_done(): return len(self.stream) - st["smark"] >= self.Thi - self.Tlo
        def polled():
            st["smark"] = len(self.stream); self.T = self.Thi

        def chain():
            ph, pos = st["phase"], self.nops
            if "nochain" in self.exp and ph >= self.stop:
                if "wqmark" in st and len(self.stream) - st["wqmark"] >= self.Thi - self.Tlo: self.T = self.Tbase
                return False
            def nxt(): st["phase"] += 1; self.log.append((ph, pos))
            if ph == 0 and pos >= self.K0 + 3:
                l = self.newlab("Lnl")
                a(f"s_cmp_lg_u32 s{sB}, 4"); a(f"s_cbranch_scc1 {l}"); a(f"s_cmp_lg_u32 s{sW}, 2"); a(f"s_cbranch_scc1 {l}")
                a(f"s_waitcnt vmcnt({self.after(rst)})")
                a(f"s_lshl_b32 s{sT0}, s{sG}, 2"); a(f"s_add_u32 s{sT0}, s{sT0}, s{sS}"); a(f"s_lshl_b32 s{sT0}, s{sT0}, 2")
                a(f"v_mov_b32 v{T+4}, s{sT0}"); a(f"v_mov_b32 v{T+5}, 1")
                a("s_mov_b64 exec, 1")
                a(f"global_store_dword v{T+4}, v{T+5}, {sp(pDBG)} sc1")
                a("s_mov_b64 exec, -1")
                self.stamp("arrive", 9)
                self.lab(l)
                nxt(); return True
            if ph == 1 and pos >= self.P0:
                if "noreset" not in self.exp and self.P0: self.reset_general()
                st["rstx"] = self.optional()
                nxt(); return True
            if ph == 2 and pos >= self.P1:
                a(f"v_and_b32 v{T+6}, 3, v{vL}"); a(f"s_lshl_b32 s{sT0}, s{sG}, 2"); a(f"v_add_lshl_u32 v{T+6}, v{T+6}, s{sT0}, 2")
                a(f"global_load_dword v{T+7}, v{T+6}, {sp(pDBG)} sc1")
                st["op"] = self.counted()
                nxt(); return True
            if ph == 3:
                if "wqmark" not in st: return False
                if self.nat:
                    if not (ops[("WQ", "A", 0, 0)].done and st["op"].done): return False
                elif len(self.stream) - st["wqmark"] < self.Thi - self.Tlo: return False
                self.wait_for(ops[("WQ", "A", 0, 0)])
                self.wait_for(st["op"]); self.wait_for(st["rstx"])
                self.stamp("pre_gate", 10)
                self.lab("GATE_chk")
                a(f"v_cmp_eq_u32 vcc, 0, v{T+7}")
                a("s_cbranch_vccz GATE_ok")
                a(f"s_cmp_eq_u32 s{sTO}, 0"); a("s_cbranch_scc1 GATE_ok"); a(f"s_sub_u32 s{sTO}, s{sTO}, 1")
                a("s_sleep 4")
                a(f"global_load_dword v{T+7}, v{T+6}, {sp(pDBG)} sc1"); a("s_waitcnt vmcnt(0)"); a("s_branch GATE_chk")
                self.lab("GATE_ok")
                self.stamp("pre_bar0", 8)
                if "nobar" not in self.exp: a("s_barrier")
                l = self.if_wave(3)
                a(f"s_getreg_b32 s{sT0}, hwreg(HW_REG_XCC_ID, 0, 4)")
                a(f"v_mov_b32 v{T+4}, s{sT0}"); a(f"v_lshlrev_b32 v{T+5}, 2, v{vL}")
                a(f"s_lshl_b32 s{sT0}, s{sG}, 5"); a(f"s_add_u32 s{sT0}, s{sT0}, s{sJ}"); a(f"s_lshl_b32 s{sT0}, s{sT0}, 7")
                a(f"s_add_u32 s{sT0}, s{sT0}, {XCBASE}")
                a("s_mov_b32 exec_hi, 0")
                a(f"buffer_store_dword v{T+4}, v{T+5}, {srd(rWS)}, s{sT0} offen {'' if 'plainx' in self.exp else self.ppol}")
                a("s_mov_b32 exec_hi, -1")
                self.lab(l)
                l = self.newlab("Lnq"); l3 = self.newlab("Ldn")
                if self.wqsplit: a(f"s_cmp_lg_u32 s{sQM}, 0")
                else: a(f"s_cmp_eq_u32 s{sQM}, 2")
                a(f"s_cbranch_scc1 {l}")
                if "noqp" in self.exp: a(f"s_branch {l}")
                self.call("CSUM")
                l2 = self.if_qm(0)
                self.qp_preload()
                self.x_stats()
                self.call("QP_go")
                self.lab(l2)
                a(f"s_branch {l3}")
                self.lab(l)
                if self.iwarm:
                    a(f"s_mov_b32 s{sWarm}, 1"); a(f"s_mov_b32 s{rWS+2}, 0"); a(f"s_mov_b32 s{sSENT2}, 0")
                    l4 = self.if_wave(2); l5 = self.newlab("Ldn")
                    self.call("PV2"); self.call("WO_poll"); a(f"s_branch {l5}")
                    self.lab(l4)
                    self.call("QP_first"); self.call("H3_poll"); self.call("ATT_poll")
                    self.lab(l5)
                    a(f"s_mov_b32 s{sWarm}, 0"); a(f"s_mov_b32 s{rWS+2}, {WS_SIZE}"); a(f"s_mov_b32 s{sSENT2}, -1")
                    a("s_waitcnt vmcnt(0) lgkmcnt(0)")
                self.lab(l3)
                for k in range(4): a(f"v_mov_b32 v{self.SENT+k}, -1")
                a(f"v_and_b32 v{T}, 7, v{vL}"); a(f"v_mul_u32_u24 v{T}, 992, v{T}"); a(f"v_add_u32 v{vQw}, v{vQw}, v{T}")
                a(f"s_mul_i32 s{sT0}, s{sJQ}, 224"); a(f"s_sub_u32 s{oQW}, s{oQW}, s{sT0}")
                self.stamp("bar0", 1)
                self.T = self.Tbase
                nxt(); return True
            if ph == 4 and pos >= self.P2 and need(KA_all):
                a(f"s_mov_b32 s{sPH}, {Q1_I}"); a(f"s_mov_b32 s{sAge}, 0")
                st["dyn1"] = True
                st["phase"] = 6; self.log.append((ph, pos)); return True
            if ph == 6 and ("V", "A", 7, 3) in ops:
                polled()
                self.T = self.Tbase; st["smark"] -= self.Thi - self.Tlo - self.PVB
                nxt(); return True
            if ph == 7 and burst_done() and not need(VA_all):
                self.wait_for(ops[("V", "A", 7, 3)])
                return True
            if ph == 7 and need(VA_all):
                st["dyn1"] = False
                l = self.newlab("Lq1")
                a(f"s_cmp_eq_u32 s{sPH}, {DONE}"); a(f"s_cbranch_scc1 {l}")
                a(f"s_call_b64 {sp(sRET2)}, Q1_poll")
                self.lab(l)
                self.lg0()
                self.stamp("pre_pv1", 11)
                a(f"v_and_b32 v{T+5}, 0xffffff6f, v{vPr}"); a(f"v_and_b32 v{T+3}, 0xfffff000, v{vPr}")
                if self.wqsplit: assert ops[("WQ", "B", 0, 0)].done
                self.call("PV")
                if self.wqsplit:
                    l = self.if_qm(1); self.call("CSUM"); self.lab(l)
                a(f"v_and_b32 v{T+6}, 7, v{vL}"); a(f"v_lshlrev_b32 v{T+6}, 2, v{T+6}")
                a(f"global_load_dword v{T+7}, v{T+6}, {sp(pDBG)} offset:128 sc1"); self.counted()
                a(f"s_mov_b32 s{sPH}, {WO_I}"); a(f"s_mov_b32 s{sAge}, {G[0]}"); a(f"s_mov_b32 s{sKBok}, 0"); a(f"s_mov_b32 s{sWOok}, 0")
                l = self.newlab("Llt28")
                a(f"s_cmp_lt_u32 s{sJ}, 28"); a(f"s_cbranch_scc1 {l}")
                self.call("ADV")
                self.to_qp(G[0] + G[1] + G[2] + 3 * self.A)
                self.lab(l)
                st["dyn"] = True
                self.T = self.Tbase
                nxt(); return True
            return False
        LASTPH = 7

        def service():
            made = True
            while made:
                made = False
                for c in list(copies):
                    nd, fn, tag = c
                    if all(o.done for o in nd):
                        fn(); copied.add(tag); copies.remove(c); made = True
                if chain(): made = True

        pi = 0
        while pi < len(prog):
            it = prog[pi]; pi += 1
            kind, ab, m, i = it
            if self.T2 and len(self.stream) >= 4 * self.G2: self.T = self.T2
            if kind == "K":
                ops[it] = self.k_dma(rKA if ab == "A" else rKB, m, i)
                if i == 3 and (m & 1) and not (ab == "A" and m // 2 < self.K0 // 8):
                    t = m // 2
                    copies.append(([ops[("K", ab, mm, ii)] for mm in (2 * t, 2 * t + 1) for ii in range(4)],
                                   (lambda b=(0 if ab == "A" else 128), t=t: self.k_copy(b, t)), ("K", ab, t)))
            elif kind == "V":
                ops[it] = self.v_dma(rVA if ab == "A" else rVB, m, i)
                if i == 3 and (m & 1) and ab == "A":
                    copies.append(([ops[("V", ab, mm, ii)] for mm in (m - 1, m) for ii in range(4)], (lambda mp=m // 2: self.v_copy(mp)), ("V", ab, m // 2)))
            elif kind == "WO":
                ops[it] = self.wo_dma(pWOA if ab == "A" else pWOB, m)
                copies.append(([ops[it]], (lambda ab=ab, m=m: self.wo_copy_sel(ab, m)), ("WO", ab)))
            elif kind == "WS":
                ops[it] = self.wo_dma(pWOA if ab == "A" else pWOB, m, list(range(i, i + self.wos)))
                if i + self.wos == 4: copies.append(([ops[it]], (lambda ab=ab, m=m: self.wo_copy_sel(ab, m)), ("WO", ab)))
            elif kind == "WQ":
                if "nodrain" not in self.exp and not self.nat: drain_to(self.Tlo)
                if "nox" not in self.exp and ab == "A":
                    l = self.if_qm(0); self.x_first(); self.lab(l)
                ops[it] = self.wq_all(self.wqsplit and (0 if ab == "A" else 1))
                if ab == "A":
                    st["wqmark"] = len(self.stream)
                    if not self.nat: self.T = self.Thi
            elif kind == "WW":
                l = self.if_wave(m)
                n0, lv = self.nops, list(self.live)
                self.wq_all(1 if ab == "B" else None)
                self.nops, self.live = n0, lv
                self.lab(l)
                ops[("WQ", "B", 0, 0)] = self.optional()
            elif kind == "WP":
                self.wq_part(m, i)
            elif kind == "X":
                l = self.if_qm(0); self.x_first(); self.lab(l)
                ops[("WQ", "A", 0, 0)] = self.optional(); st["wqmark"] = len(self.stream); self.T = self.Thi
            service()
            if st.get("dyn") and self.WOA < 0 and not st.get("woq") and kind in "KV" and i == 3:
                if "nowo" not in self.exp: prog[pi:pi] = [("WO", "A", 0, 0)] + ([("WO", "B", 1, 0)] if self.WO2 < 0 else [])
                else: copied.update([("WO", "A"), ("WO", "B")])
                st["woq"] = True
            if st.get("dyn1") and kind in "KV" and i in (1, 3):
                a(f"s_call_b64 {sp(sRET2)}, HND")
            if st.get("dyn"):
                if ("K", "B", 3) in copied and not st.get("kb1"): a(f"s_mov_b32 s{sKBok}, 1"); st["kb1"] = True
                if need(KB_all) and not st.get("kb2"): a(f"s_mov_b32 s{sKBok}, 2"); st["kb2"] = True
                if need([("WO", "A")]) and not st.get("wok"):
                    a(f"s_mov_b32 s{sWOok}, 1"); st["wok"] = True; self.log.append(("wo_ok", self.nops))
                if kind in "KV" and i in (1, 3) and not self.nohnd:
                    if not st.get("nh"): self.log.append(("first_hnd", self.nops))
                    a(f"s_call_b64 {sp(sRET2)}, HND"); st["nh"] = True
            if self.posst and i == 3 and kind in "KV":
                st["nst"] = st.get("nst", 0) + 1
                self.stamp(f"s{len(self.stream):03d}_{kind}{ab}{m}_ph{st['phase']}", 16 + st["nst"])
        self.log.append(("issue_end", self.nops))
        self.stamp("issue_end", 3)
        if "nochain" in self.exp:
            a("s_waitcnt vmcnt(0)"); self.stamp("stream_end", 4); a("s_branch L_fin")
            pv2w = [(1, None), (2, None), (3, None), (0, 0)]
        else:
            assert st["phase"] > LASTPH and need(KB_all) and not copies
            self.lg0()
            self.warm_loads(D + 14, vKb)
            self.finish_chain()
            self.stamp("chain_done", 12)
            assert need([("WO", "B")])
            a(f"s_mov_b32 s{sStream}, 0")
            pv2w = []
            for mp in (1, 2, 3, 0):
                o = ops[("V", "B", 2 * mp + 1, 3)]
                pv2w.append((mp, None if o.done else self.after(o)))
            a("s_branch PV2")
        self.lab("L_fin")
        if self.stamps:
            self.stamp("end", 5)
            a("s_memtime s[34:35]"); a("s_waitcnt lgkmcnt(0)"); a(f"v_writelane_b32 v{vST}, s34, 14")
            a(f"s_lshl_b32 s{sT0}, s2, 2"); a(f"s_add_u32 s{sT0}, s{sT0}, s{sW}"); a(f"s_lshl_b32 s{sT0}, s{sT0}, 8")
            a(f"s_add_u32 s{sT0}, s{sT0}, {STAMP_OFF}"); a(f"s_add_u32 s34, s{pWS}, s{sT0}"); a(f"s_addc_u32 s35, s{pWS+1}, 0")
            a(f"v_lshlrev_b32 v{T}, 2, v{vL}")
            a(f"v_writelane_b32 v{vST}, s{sTO}, 15")
            a(f"global_store_dword v{T}, v{vST}, s[34:35]")
        self.lab("L_end")
        a("s_endpgm")
        self.r_handler(); self.r_pv2(pv2w); self.r_loop(); self.r_vcopy(); self.r_cs()
        for l, go in self.tailstubs:
            self.lab(l); a(f"s_mov_b32 s{sTO}, 0"); a(f"s_branch {go}")
        self.lab("L_codeend")
        a("s_endpgm")
        a(".fill 256, 4, 0xBF800000")
        self.L += kernel_desc(name, 512, 102, 256)
        return "\n".join(self.L) + "\n"

    def wo_copy_sel(self, ab, slot):
        self.wo_copy(WOC if ab == "A" else WON, slot)


if __name__ == "__main__":
    import argparse, json
    ap = argparse.ArgumentParser()
    ap.add_argument("-o", default="main.s")
    ap.add_argument("kv", nargs="*")
    x = ap.parse_args()
    kw = {}
    for kv in x.kv:
        k, v = kv.split("=") if "=" in kv else (kv, "1")
        if k == "gaps": kw[k] = tuple(int(t) for t in v.split(","))
        elif k in ("exp", "wpol", "rpol", "ppol", "qpol", "fpol"): kw[k] = v.replace("+", " ")
        else: kw[k] = int(v)
    if kw.get("posst"): kw["stamps"] = 1
    g = Gen(**kw)
    s = g.build()
    open(x.o, "w").write(s)
    print("chain log:", g.log)
    if g.stamps: json.dump(g.stamp_names, open(x.o + ".stamps.json", "w"))
```

```python
import sys
from gen_common import *

WQ_LDS = 131072
SCR = WQ_LDS + 28672
LDS_TOTAL = 163840
BASE = 0x100000
GSTRIDE = 53376
QOFF, OOFF, STOFF, XOFF, SXOFF = 0, 8320, 41088, 43136, 50304
X3OFF = 8 * GSTRIDE
LSTRIDE = X3OFF + 229376
XCBASE = BASE + 4 * LSTRIDE
WS_SIZE = XCBASE + 8 * 4096
STAMP_OFF = 0x1000000

sRET2 = 0
sW, sG, sJ, sB, sS = 3, 4, 5, 6, 7
pAX, pKA, pVA, pWQA, pWOA, pKB, pVB, pWQB, pWOB, pOUT, pDBG, pWS = 8, 10, 12, 14, 16, 20, 22, 24, 26, 28, 30, 32
sJQ, sQM = 18, 19
rPF = 20
rKA, rVA, rKB, rVB, rWS, rTMP = 36, 40, 44, 48, 52, 56
sPH, sAge, sKBok, sWOok = 36, 37, 38, 39
sRET = 60
sRing, sScrW = 62, 63
sM = 64
sT0, sT1, sTO, sL = 72, 73, 74, 75
oQR, oST, oOW, oOR, oSR, oX3W, oX3R, oXW, oXR, oQW = range(76, 86)
oSXW, oSXR = 90, 91
OFFS = list(range(76, 86)) + [90, 91]
mP, mX = 86, 88
rPS = 92
sC, sXN, sSB, sSI = 96, 97, 98, 99
sStream, sWarm = 100, 101
sSENT1, sSENT2, sA0, sA1 = 10, 11, 12, 13
WO_I, WO_C, H3_I, H3_C, QP_I, QP_C, AT_I, AT_C, DONE, Q1_C, Q1_I = range(11)

vL, vKb, vVb0, vVb1, vKr0, vVr0, vScr, vQr, vPw, vPr, vOw, vQw, vX3w, vXw, vXn, vWr, vXres, vIdx, vSr, vST = range(20)
vSink = vST + 0
T = 20
CS = 28
S = 32
D = 48
QP = 64
WOC, WON = 96, 112
VAT = 128

CSCALE = 0x3DB8AA3B
ONES = 0x3F803F80


def srd(r): return f"s[{r}:{r+3}]"
def sp(r): return f"s[{r}:{r+1}]"
def vr(r, n=4): return f"v[{r}:{r+n-1}]"
def ar(r, n=4): return f"a[{r}:{r+n-1}]"
DPP = "row_mask:0xf bank_mask:0xf"
MFMA = "v_mfma_f32_16x16x32_bf16"
SMF = "v_smfmac_f32_16x16x64_bf16"
ODD = "0xaaaaaaaa"


class Op:
    def __init__(self, pos, counted): self.pos, self.counted, self.done = pos, counted, False


class Gen:
    def __init__(self, **k):
        d = dict(T=8, Thi=16, Tlo=8, K0=12, wpol="nt", stamps=False, posst=False, slow=False, P0=18, P1=30, P2=58,
                 gaps=(1, 2, 1, 1), hold=0, WQ1=4, WO2=-1, warm=True, codepf=True, iwarm=False, TO=300000, exp="", Ar=2, stag=0, tlb=0, wos=0, qpblk=0, nohnd=0, stagB=0, T2=14, G2=24, fpol='', woslot=0, wqs=0, womid=True, h3d=6, Tr=4, bal=False, ppol='sc1', qpol='sc1', nat=False, PVB=8, WOA=-1, wqsplit=False, WQB=10, XP=3, rpol='sc1 nt', stop=0, pipe=False)
        d.update(k)
        self.__dict__.update(d)
        self.Tbase = self.T
        self.A = (self.Thi - self.Tlo + 1) // 2
        self.L = []
        self.nlab = 0
        self.stamp_names = {}
        self.nops = 0
        self.live = []
        self.lg_epoch = 0
        self.slot_epoch = [-1] * 8
        self.slot_pending = [False] * 8
        self.log = []
        self.stream = []
        self.thr_on = False
        self.tailstubs = []
        self.sink = CS + 3 if False else (T + 7 if False else None)

    def a(self, s): self.L.append("    " + s)
    def lab(self, s): self.L.append(s + ":")
    def newlab(self, p="L"):
        self.nlab += 1
        return f"{p}_{self.nlab}"

    def stamp(self, name, idx, layered=False):
        if not self.stamps: return
        if self.posst and layered: return
        a = self.a
        a("s_memrealtime s[34:35]")
        if layered:
            a(f"s_add_u32 s{sSI}, s{sSB}, {idx}")
            for L in range(4): self.stamp_names[16 + L * 12 + idx] = f"L{L+1}.{name}"
        else:
            a(f"s_mov_b32 s{sSI}, {idx}")
            self.stamp_names[idx] = name
        a(f"s_lshl_b64 exec, 1, s{sSI}")
        a("s_waitcnt lgkmcnt(0)")
        a(f"v_mov_b32 v{vST}, s34")
        a("s_mov_b64 exec, -1")

    def counted(self):
        o = Op(self.nops, True); self.nops += 1; self.live.append(o); return o
    def optional(self):
        o = Op(self.nops, False); self.live.append(o); return o
    def after(self, o): return self.nops - 1 - o.pos if o.counted else self.nops - o.pos
    def wait_vm(self, k):
        assert k <= 63
        self.a(f"s_waitcnt vmcnt({k})")
        for o in self.live:
            if self.after(o) >= k: o.done = True
        self.live = [o for o in self.live if not o.done]
    def wait_for(self, o):
        if not o.done: self.wait_vm(self.after(o))
    def throttle(self):
        if self.thr_on and len(self.stream) >= self.T: self.wait_for(self.stream[-self.T])
    def streamop(self):
        o = self.counted(); self.stream.append(o); return o
    def lg0(self):
        self.a("s_waitcnt lgkmcnt(0)")
        self.lg_epoch += 1
    def slot_free(self, m):
        assert not self.slot_pending[m], m
        self.slot_pending[m] = True
        if self.slot_epoch[m] == self.lg_epoch: self.lg0()
    def slot_read(self, m):
        self.slot_epoch[m] = self.lg_epoch
        self.slot_pending[m] = False

    def pub(self, op, data, addr, off, imm=""):
        self.a(f"{op} {data}, v{addr}, {srd(rPF)}, s{off} offen {imm} {self.fpol}")
        if "nodual" in self.exp and off != oQW: return
        self.a(f"{op} {data}, v{addr}, {srd(rPS)}, s{off} offen {imm} {self.ppol}")

    def budget(self, go):
        a = self.a
        l = self.newlab("Lbud")
        a(f"s_sub_u32 s{sTO}, s{sTO}, 1"); a(f"s_cbranch_scc1 {l}")
        self.tailstubs.append((l, go))
    def call(self, target): self.a(f"s_call_b64 {sp(sRET)}, {target}")
    def ret_if_stream(self):
        self.a(f"s_cmp_lg_u32 s{sStream}, 0"); self.a("s_cbranch_scc1 RET")

    def check(self, regs, acc, waits=None, sent=f"s{sSENT2}"):
        a = self.a
        first = True
        for n, (r, c) in enumerate(regs):
            if waits is not None: a(f"s_waitcnt vmcnt({waits[n]})")
            rs = list(range(r, r + c))
            if first:
                a(f"v_max3_u32 v{acc}, v{rs[0]}, v{rs[1]}, v{rs[2]}"); rs = rs[3:]
                first = False
            while len(rs) >= 2:
                a(f"v_max3_u32 v{acc}, v{acc}, v{rs[0]}, v{rs[1]}"); rs = rs[2:]
            if rs: a(f"v_max_u32 v{acc}, v{acc}, v{rs[0]}")
        a(f"v_cmp_eq_u32 vcc, {sent}, v{acc}")

    def pipelined(self, name, nsets, issue, regs, go, acc):
        a = self.a
        nl = len(regs(0))
        self.lab(f"{name}_poll")
        for k in range(nsets): issue(k)
        self.lab(f"{name}_loop")
        for k in range(nsets):
            w0 = nl * nsets - 1
            self.check(regs(k), acc, waits=[w0 - n for n in range(nl)])
            a(f"s_cbranch_vccz {name}_h{k}")
            if k == nsets - 1: self.budget(f"{name}_h{k}")
            issue(k)
        a(f"s_branch {name}_loop")
        for k in list(range(1, nsets)) + [0]:
            self.lab(f"{name}_h{k}")
            go(k)
            if k: a(f"s_branch {name}_go2")
        self.lab(f"{name}_go2")

    wo_st, wo_o = [(QP + 16, 4)], [(QP, 4), (QP + 4, 4), (QP + 8, 4), (QP + 12, 4)]
    def wo_issue_o(self):
        for n in range(4):
            self.a(f"buffer_load_dwordx4 {vr(QP+4*n)}, v{vScr}, {srd(rWS)}, s{oOR} offen offset:{1024*n} sc1")
    def wo_issue(self):
        self.a(f"buffer_load_dwordx4 {vr(QP+16)}, v{vSr}, {srd(rWS)}, s{oSR} offen sc1")
        self.wo_issue_o()
    def wo_scales(self, mid=None):
        a = self.a
        Lj, M, Mb, e, bp = QP + 16, QP + 20, QP + 21, QP + 22, T + 1
        a(f"v_permlane32_swap_b32 v{Lj+3}, v{M}")
        a(f"v_add_f32 v{Lj}, v{Lj}, v{Lj+1}"); a(f"v_add_f32 v{Lj+2}, v{Lj+2}, v{Lj+3}")
        a(f"v_max_f32_dpp v{Mb}, v{M}, v{M} quad_perm:[1,0,3,2] {DPP}")
        a(f"v_add_f32 v{Lj}, v{Lj}, v{Lj+2}"); a(f"v_and_b32 v{bp}, 48, v{vL}")
        a(f"v_max_f32_dpp v{Mb}, v{Mb}, v{Mb} quad_perm:[2,3,0,1] {DPP}")
        a(f"v_sub_f32 v{e}, v{M}, v{Mb}"); a(f"v_exp_f32 v{e}, v{e}")
        if mid: mid()
        a(f"s_mul_i32 s{sT0}, s{sW}, 1020")
        a(f"v_mul_f32 v{Lj}, v{Lj}, v{e}")
        a(f"v_subrev_u32 v{T+2}, s{sT0}, v{vScr}")
        a("s_nop 0")
        a(f"v_add_f32_dpp v{Lj}, v{Lj}, v{Lj} quad_perm:[1,0,3,2] {DPP}")
        a("s_nop 1")
        a(f"v_add_f32_dpp v{Lj}, v{Lj}, v{Lj} quad_perm:[2,3,0,1] {DPP}")
        a(f"v_rcp_f32 v{Lj}, v{Lj}"); a("s_nop 0"); a(f"v_mul_f32 v{e}, v{e}, v{Lj}")
        for rt in range(2):
            for r in range(4):
                a(f"ds_bpermute_b32 v{QP+24+4*rt+r}, v{bp}, v{e} offset:{(16*rt+r)*4}")
    def r_wo(self):
        a = self.a
        self.lab("WO_poll")
        if self.womid:
            a(f"buffer_load_dwordx4 {vr(QP+16)}, v{vSr}, {srd(rWS)}, s{oSR} offen sc1")
        else: self.wo_issue()
        self.lab("WO_w")
        self.check(self.wo_st, T + 0, waits=[0 if self.womid else 4], sent=f"s{sSENT1}")
        a("s_cbranch_vccnz WO_r1")
        self.lab("WO_sc")
        self.wo_scales(self.wo_issue_o if self.womid else None)
        self.lab("WO_o")
        self.check(self.wo_o, T + 0, waits=[3, 2, 1, 0])
        a("s_cbranch_vccnz WO_r2")
        self.lab("WO_go2")
        self.stamp("wo_go", 0, True)
        for rt in range(2):
            for i in range(2):
                for ct in range(2):
                    d = D + 8 * rt + 4 * ct
                    a(f"{MFMA} {vr(d)}, {vr(QP+8*rt+4*i)}, {vr(WOC+8*i+4*ct)}, {'0' if i == 0 else vr(d)}")
        a("s_waitcnt lgkmcnt(0)"); a("s_nop 1")
        for rt in range(2):
            c = QP + 24 + 4 * rt
            d0, d1 = D + 8 * rt, D + 8 * rt + 4
            a(f"v_pk_mul_f32 {vr(d0,2)}, {vr(d0,2)}, {vr(c,2)}")
            if rt == 0: a("s_nop 0")
            a(f"v_pk_mul_f32 {vr(d1,2)}, {vr(d1,2)}, {vr(c,2)}")
            a(f"v_pk_fma_f32 {vr(d0,2)}, {vr(d0+2,2)}, {vr(c+2,2)}, {vr(d0,2)}")
            a(f"v_pk_fma_f32 {vr(d1,2)}, {vr(d1+2,2)}, {vr(c+2,2)}, {vr(d1,2)}")
            a(f"v_add_f32 v{d0}, v{d0}, v{d0+1}"); a(f"v_add_f32 v{d1}, v{d1}, v{d1+1}")
            a(f"ds_write_b32 v{T+2}, v{d0} offset:{(2*rt)*1024}")
            a(f"ds_write_b32 v{T+2}, v{d1} offset:{(2*rt+1)*1024}")
        a("s_waitcnt lgkmcnt(0)")
        a("s_barrier")
        a(f"ds_read_b128 {vr(S)}, v{vScr}")
        a("s_waitcnt lgkmcnt(0)")
        a(f"v_pk_add_f32 {vr(S,2)}, {vr(S,2)}, {vr(S+2,2)}"); a(f"v_add_f32 v{S}, v{S}, v{S+1}")
        a(f"v_min_u32 v{S}, -2, v{S}")
        a(f"buffer_store_dword v{S}, v{vX3w}, {srd(rWS)}, s{oX3W} offen sc1")
        self.stamp("x3_pub", 1, True)
        self.ret_if_stream()
    def r_wo_stubs(self):
        a = self.a
        self.lab("WO_r1"); self.budget("WO_sc"); a("s_branch WO_poll")
        self.lab("WO_r2"); self.budget("WO_go2"); self.wo_issue_o(); a("s_branch WO_o")

    def h3_regs(self, k): return [(QP + 8 * k, 4), (QP + 8 * k + 4, 4)]
    def h3_issue(self, k=0):
        self.a(f"buffer_load_dwordx4 {vr(QP+8*k)}, v{vScr}, {srd(rWS)}, s{oX3R} offen sc1")
        self.a(f"buffer_load_dwordx4 {vr(QP+8*k+4)}, v{vScr}, {srd(rWS)}, s{oX3R} offen offset:1024 sc1")
    def r_h3(self):
        a = self.a
        A = S
        def head(k):
            a(f"v_pk_add_f32 {vr(A,2)}, {vr(QP+8*k,2)}, {vr(QP+8*k+4,2)}")
            a(f"v_pk_add_f32 {vr(A+2,2)}, {vr(QP+8*k+2,2)}, {vr(QP+8*k+6,2)}")
        self.pipelined("H3", 3 if self.pipe else 1, self.h3_issue, self.h3_regs, head, T + 0)
        self.stamp("h3_go", 2, True)
        a(f"v_lshlrev_b32 v{T+4}, 16, v{vXres}")
        a(f"v_and_b32 v{T+5}, 0xffff0000, v{vXres}")
        a(f"v_permlane32_swap_b32 v{A}, v{A+2}")
        a(f"v_permlane32_swap_b32 v{A+1}, v{A+3}")
        a(f"v_pk_add_f32 {vr(A,2)}, {vr(A,2)}, {vr(A+2,2)}")
        a(f"s_cmp_eq_u32 s{sL}, 3"); a("s_nop 0")
        a(f"v_add_f32_dpp v{A}, v{A}, v{A} row_ror:8 {DPP}")
        a(f"v_add_f32_dpp v{A+1}, v{A+1}, v{A+1} row_ror:8 {DPP}")
        a(f"v_mov_b64 {vr(A+2,2)}, {vr(A,2)}")
        a("s_nop 1")
        a(f"v_permlane16_swap_b32 v{A}, v{A+2}")
        a(f"v_permlane16_swap_b32 v{A+1}, v{A+3}")
        a(f"v_pk_add_f32 {vr(A,2)}, {vr(A,2)}, {vr(A+2,2)}")
        a(f"v_cvt_pk_bf16_f32 v{A+1}, v{A}, v{A+1}")
        a(f"v_lshlrev_b32 v{A}, 16, v{A+1}")
        a(f"v_and_b32 v{A+1}, 0xffff0000, v{A+1}")
        a(f"v_pk_add_f32 {vr(A,2)}, {vr(A,2)}, {vr(T+4,2)}")
        a(f"v_cvt_pk_bf16_f32 v{vXres}, v{A}, v{A+1}")
        a(f"s_mov_b64 exec, {sp(mX)}")
        a(f"v_min_u32 v{A}, -2, v{vXres}")
        a("s_cbranch_scc1 H3_final")
        self.pub("buffer_store_dword", f"v{A}", vXw, oXW)
        a("s_mov_b64 exec, -1")
        self.stamp("x_pub", 3, True)
        a(f"v_lshlrev_b32 v{A+2}, 16, v{vXres}"); a(f"v_and_b32 v{A+3}, 0xffff0000, v{vXres}")
        a(f"v_add_f32 v{A}, v{A+2}, v{A+3}"); a(f"v_mul_f32 v{A+1}, v{A+2}, v{A+2}"); a(f"v_fmac_f32 v{A+1}, v{A+3}, v{A+3}")
        a(f"v_lshrrev_b32 v{A+2}, 5, v{vL}"); a(f"v_bfe_u32 v{A+3}, v{vL}, 2, 1")
        a(f"v_permlane32_swap_b32 v{A}, v{A+1}")
        a(f"v_add_f32 v{A}, v{A}, v{A+1}")
        a(f"v_lshlrev_b32 v{A+2}, 10, v{A+2}"); a(f"v_lshl_add_u32 v{A+2}, v{A+3}, 7, v{A+2}")
        a(f"v_add_f32_dpp v{A}, v{A}, v{A} quad_perm:[1,0,3,2] {DPP}")
        a("s_mov_b32 vcc_lo, 0x11"); a("s_mov_b32 vcc_hi, 0x11")
        a(f"v_add_f32_dpp v{A}, v{A}, v{A} quad_perm:[2,3,0,1] {DPP}")
        a("s_mov_b64 exec, vcc")
        a(f"v_min_u32 v{A}, -2, v{A}")
        self.pub("buffer_store_dword", f"v{A}", A + 2, oSXW)
        a("s_mov_b64 exec, -1")
    def r_h3_final(self):
        a = self.a
        self.lab("H3_final")
        a(f"buffer_store_dword v{vXres}, v{vXn}, {srd(rTMP)}, s{sXN} offen")
        a("s_mov_b64 exec, -1")
        self.stamp("x_pub", 3, True)
        a("s_branch L_fin")

    def advance(self):
        for o in OFFS: self.a(f"s_add_u32 s{o}, s{o}, {LSTRIDE}")
        self.a(f"s_add_u32 s{sL}, s{sL}, 1")
        if self.stamps: self.a(f"s_add_u32 s{sSB}, s{sSB}, 12")

    qp_regs = [(QP + 4 * i, 4) for i in range(7)] + [(T, 4), (T + 4, 4)]
    WSLOT = [S, S + 4, S + 8, S + 12, D + 8, D + 12, QP + 28]
    WORDER = [k for i in range(7) for k in (i, 7 + i)]
    def w_read(self, k, dst):
        self.a(f"ds_read_b64_tr_b16 {vr(dst,2)}, v{vWr} offset:{k*2048}")
        self.a(f"ds_read_b64_tr_b16 {vr(dst+2,2)}, v{vWr} offset:{k*2048+256}")
    def qp_preload(self):
        for n in range(7): self.w_read(self.WORDER[n], self.WSLOT[n])
    def qp_prep(self):
        a = self.a
        a(f"v_and_b32 v{D+1}, 7, v{vL}"); a(f"v_lshlrev_b32 v{D+1}, 7, v{D+1}"); a(f"v_lshrrev_b32 v{D+2}, 3, v{vL}")
        a(f"v_lshl_add_u32 v{D+1}, v{D+2}, 4, v{D+1}")
        for k in range(4): a(f"v_mov_b64 {vr(T+2*k,2)}, 0")
    def qp_issue(self):
        a = self.a
        a(f"s_add_u32 s{sA1}, s{oXR}, 4096")
        for i in range(7):
            a(f"buffer_load_dwordx4 {vr(QP+4*i)}, v{vScr}, {srd(rWS)}, s{oXR if i < 4 else sA1} offen offset:{1024*(i%4)} sc1")
        a("s_mov_b32 exec_hi, 0xffffff")
        a(f"buffer_load_dwordx4 {vr(T)}, v{D+1}, {srd(rWS)}, s{oSXR} offen sc1")
        a(f"buffer_load_dwordx4 {vr(T+4)}, v{D+1}, {srd(rWS)}, s{oSXR} offen offset:1024 sc1")
        a("s_mov_b32 exec_hi, -1")
    def x_stats(self):
        a = self.a
        for k in range(4): a(f"v_mov_b64 {vr(T+2*k,2)}, 0")
        a(f"s_mov_b32 s{sT0}, {ONES}")
        for x in range(QP, QP + 28):
            a(f"v_dot2c_f32_bf16 v{T+(x&1)}, s{sT0}, v{x}"); a(f"v_dot2c_f32_bf16 v{T+4+(x&1)}, v{x}, v{x}")
        a("s_nop 2")
    def r_qp(self):
        a = self.a
        self.lab("QP_first")
        self.qp_prep()
        self.qp_issue()
        self.qp_preload()
        self.lab("QP_chk")
        self.check(self.qp_regs, D, waits=[8, 7, 6, 5, 4, 3, 2, 1, 0])
        a("s_cbranch_vccnz QP_r")
        self.lab("QP_go")
        self.stamp("qp_go", 4, True)
        a("s_waitcnt lgkmcnt(0)")
        s1, s2, t = T + 0, T + 4, T + 1
        sh = [f"v_pk_add_f32 {vr(T,2)}, {vr(T,2)}, {vr(T+2,2)}", f"v_pk_add_f32 {vr(T+4,2)}, {vr(T+4,2)}, {vr(T+6,2)}",
              f"v_add_f32 v{s1}, v{T}, v{T+1}", f"v_add_f32 v{s2}, v{T+4}, v{T+5}", "N", "N",
              f"v_permlane32_swap_b32 v{s1}, v{s2}", f"v_add_f32 v{s1}, v{s1}, v{s2}", f"v_mov_b32 v{t}, v{s1}", "N", "N",
              f"v_permlane16_swap_b32 v{s1}, v{t}", f"v_add_f32 v{s1}, v{s1}, v{t}", "N", "N",
              f"v_add_f32_dpp v{s1}, v{s1}, v{s1} row_ror:8 {DPP}",
              f"v_mul_f32 v{s1}, 0x3b124925, v{s1}",
              f"v_mov_b32 v{t}, v{s1}", "N", "N",
              f"v_permlane32_swap_b32 v{s1}, v{t}",
              f"v_fma_f32 v{t}, -v{s1}, v{s1}, v{t}", f"v_max_f32 v{t}, 0, v{t}", f"v_add_f32 v{t}, 0x3727c5ac, v{t}",
              f"v_rsq_f32 v{t}, v{t}", "N",
              f"v_mul_f32 v{s1}, v{s1}, v{t}",
              f"v_pk_mul_f32 {vr(T+4,2)}, {vr(CS,2)}, {vr(T,2)} op_sel_hi:[1,0]", f"v_pk_mul_f32 {vr(T+6,2)}, {vr(CS+2,2)}, {vr(T,2)} op_sel_hi:[1,0]"]
        for n in range(14):
            i, half = n // 2, n % 2
            d = D + 4 * half
            st = 0
            if n >= 7: a(f"s_waitcnt lgkmcnt({2*(13-n)})"); st += 1
            a(f"{MFMA} {vr(d)}, {vr(self.WSLOT[n%7])}, {vr(QP+4*i)}, {'0' if i == 0 else vr(d)}"); st += 1
            if n < 7: self.w_read(self.WORDER[n + 7], self.WSLOT[n]); st += 2
            while sh and sh[0] == "N" and st: sh.pop(0); st -= 1
            k = 0
            while sh and k < (1 if n < 7 else 2):
                x = sh.pop(0); self.emit_shadow_item(x); k += 1
        nrem = len(sh) + k
        for x in sh: self.emit_shadow_item(x)
        if nrem < 8: a(f"s_nop {7 - nrem}")
        for r in range(4): a(f"v_add_f32_dpp v{D+r}, v{D+4+r}, v{D+r} row_ror:8 {DPP}")
        a(f"v_pk_fma_f32 {vr(D+2,2)}, {vr(D+2,2)}, {vr(T,2)}, {vr(T+6,2)} op_sel:[0,1,0] neg_lo:[0,0,1] neg_hi:[0,0,1]")
        a(f"v_pk_fma_f32 {vr(D,2)}, {vr(D,2)}, {vr(T,2)}, {vr(T+4,2)} op_sel:[0,1,0] neg_lo:[0,0,1] neg_hi:[0,0,1]")
        a(f"v_cvt_pk_bf16_f32 v{D+5}, v{D+2}, v{D+3}")
        a(f"v_cvt_pk_bf16_f32 v{D+4}, v{D+0}, v{D+1}")
        a("s_nop 0")
        a(f"v_mov_b32_dpp v{D+4}, v{D+5} row_ror:8 row_mask:0xf bank_mask:0xc")
        a(f"v_min_u32 v{D+4}, -2, v{D+4}")
        self.pub("buffer_store_dword", f"v{D+4}", vQw, oQW)
        self.stamp("q_pub", 5, True)
        self.ret_if_stream()
    def r_qp_stubs(self):
        self.lab("QP_r"); self.budget("QP_go"); self.qp_issue(); self.a("s_branch QP_chk")

    def att_regs(self, k): return [(S + 4 * k, 4)]
    def att_issue(self, k=0):
        self.a(f"buffer_load_dwordx4 {vr(S+4*k)}, v{vScr}, {srd(rWS)}, s{oQR} offen sc1")
    def r_att(self):
        a = self.a
        self.pipelined("ATT", 3 if self.pipe else 1, self.att_issue, self.att_regs, lambda k: a(f"ds_write_b128 v{vScr}, {vr(S+4*k)}"), T + 0)
        for i in range(4): a(f"ds_read_b128 {vr(QP+4*i)}, v{vQr} offset:{128*i}")
        self.stamp("att_go", 6, True)
        a(f"s_bitcmp1_b32 s{sL}, 0")
        for k in range(8): a(f"v_mov_b64 {vr(D+2*k,2)}, 0")
        a("s_cbranch_scc1 ATT_qkB")
        def sel(t):
            d = D + 4 * t
            return [f"v_add_f32_dpp v{T+h}, v{d+h}, v{d+2+h} quad_perm:[0,1,2,3] row_mask:{1<<t:#x} bank_mask:0xf" for h in range(2)]
        def qk(base):
            fill = {4: [f"v_lshrrev_b32 v{T+5}, 5, v{vL}"], 5: [f"v_lshlrev_b32 v{T+5}, 2, v{T+5}"],
                    6: [f"v_add_u32 v{T+5}, s{sScrW}, v{T+5}"], 11: [sel(0)[0]], 12: [sel(0)[1]]}
            for t in range(4):
                for i in range(4):
                    if t == 0: a(f"s_waitcnt lgkmcnt({3-i})")
                    a(f"{SMF} {vr(D+4*t)}, {vr(QP+4*i)}, {ar(base+32*t+8*i,8)}, v{vIdx}")
                    for x in fill.get(4 * t + i, []): a(x)
        qk(0)
        a("s_branch ATT_sm")
        self.lab("ATT_qkB")
        qk(128)
        self.lab("ATT_sm")
        z = [f"v_mov_b64 {vr(QP+16+2*k,2)}, 0" for k in range(8)]
        def Z(n):
            for _ in range(n): a(z.pop(0) if z else "s_nop 0")
        for x in sel(1): a(x)
        Z(1)
        for x in sel(2): a(x)
        Z(3)
        for x in sel(3): a(x)
        m, t = T + 2, T + 3
        a(f"v_mov_b64 {vr(m,2)}, {vr(T,2)}")
        Z(2)
        a(f"v_permlane32_swap_b32 v{m}, v{t}")
        a(f"v_max_f32 v{m}, v{m}, v{t}")
        a(f"v_mov_b32 v{t}, v{m}")
        Z(2)
        a(f"v_permlane16_swap_b32 v{m}, v{t}")
        a(f"v_max_f32 v{m}, v{m}, v{t}")
        for r in (8, 4, 2, 1):
            a("s_nop 1"); a(f"v_max_f32_dpp v{m}, v{m}, v{m} row_ror:{r} {DPP}")
        a(f"v_mul_f32 v{m}, s{sC}, v{m}")
        a(f"v_mov_b32 v{t}, v{m}")
        a(f"v_mov_b32 v{T+4}, v{m}")
        a(f"ds_write_b32 v{T+5}, v{m} offset:256")
        a(f"v_permlane32_swap_b32 v{m}, v{t}")
        a(f"v_fma_f32 v{T+0}, v{T+0}, s{sC}, -v{m}")
        a(f"v_fma_f32 v{T+1}, v{T+1}, s{sC}, -v{t}")
        a(f"v_exp_f32 v{T+0}, v{T+0}")
        a(f"v_exp_f32 v{T+1}, v{T+1}")
        a(f"s_cmp_lg_u32 s{sStream}, 0")
        a(f"v_cvt_pk_bf16_f32 v{T+2}, v{T+0}, v{T+1}")
        a(f"ds_write_b16 v{vPw}, v{T+2}")
        a(f"ds_write_b16_d16_hi v{vPw}, v{T+2} offset:128")
        a(f"v_permlane32_swap_b32 v{T+0}, v{T+1}")
        a(f"v_add_f32 v{T+0}, v{T+0}, v{T+1}")
        a(f"v_mov_b32 v{T+1}, v{T+0}")
        a(f"v_and_b32 v{T+5}, 0xffffff6f, v{vPr}")
        a(f"v_and_b32 v{T+3}, 0xfffff000, v{vPr}")
        a(f"v_permlane16_swap_b32 v{T+0}, v{T+1}")
        a(f"v_add_f32 v{T+0}, v{T+0}, v{T+1}")
        a("s_waitcnt lgkmcnt(0)")
        if self.stamps and not self.posst:
            self.stamp("att_end", 7, True); a(f"s_cmp_lg_u32 s{sStream}, 0")
        a("s_cbranch_scc1 RET")

    def pv_reads(self):
        a = self.a
        a("s_barrier")
        a(f"s_mov_b64 exec, {sp(mP)}")
        for mp in range(4): a(f"ds_read_b128 {vr(QP+16+4*mp)}, v{vPr} offset:{32*mp}")
        a("s_mov_b64 exec, -1")
        a(f"ds_read_b64 {vr(T+6,2)}, v{T+5} offset:256")
        for w in range(4): a(f"ds_read_b64 {vr(QP+2*w,2)}, v{T+3} offset:{1024*w+256}")
    def pv_shadow(self):
        l, M0, M1, t = T + 0, QP + 8, QP + 9, T + 2
        o = []
        for r in (8, 4, 2, 1):
            o += [f"v_add_f32_dpp v{l}, v{l}, v{l} row_ror:{r} {DPP}", "N", "N"]
        o = o[:-2]
        o += ["W",
              f"v_max3_f32 v{M0}, v{QP}, v{QP+2}, v{QP+4}", f"v_max3_f32 v{M1}, v{QP+1}, v{QP+3}, v{QP+5}",
              f"v_max_f32 v{M0}, v{M0}, v{QP+6}", f"v_max_f32 v{M1}, v{M1}, v{QP+7}",
              f"v_pk_add_f32 {vr(T+6,2)}, {vr(T+6,2)}, {vr(M0,2)} neg_lo:[0,1] neg_hi:[0,1]",
              f"v_exp_f32 v{T+6}, v{T+6}", f"v_exp_f32 v{T+7}, v{T+7}",
              f"v_mov_b32_dpp v{M0}, v{M1} quad_perm:[0,1,2,3] row_mask:0xc bank_mask:0xf",
              f"v_sub_f32 v{t}, v{T+4}, v{M0}",
              f"v_exp_f32 v{t}, v{t}",
              f"v_lshrrev_b32 v{t+1}, 5, v{vL}",
              f"v_mul_f32 v{l}, v{l}, v{t}",
              f"v_lshlrev_b32 v{t+1}, 10, v{t+1}",
              f"v_and_b32 v{t}, 1, v{vL}",
              f"v_mov_b32_dpp v{l}, v{M0} quad_perm:[0,1,2,3] row_mask:0xf bank_mask:0xf ODDSEL",
              f"v_lshl_add_u32 v{t}, v{t}, 4, v{t+1}",
              f"v_min_u32 v{l}, -2, v{l}",
              "STATS"]
        return o
    def emit_shadow_item(self, x):
        a = self.a
        if x == "N": a("s_nop 0")
        elif x == "W": a("s_waitcnt lgkmcnt(0)")
        elif x.endswith("ODDSEL"):
            a(f"v_cndmask_b32 v{T+0}, v{T+0}, v{QP+8}, vcc")
        elif x == "STATS":
            a("s_mov_b32 exec_lo, 3"); a("s_mov_b32 exec_hi, 3")
            self.pub("buffer_store_dword", f"v{T+0}", T + 2, oST)
            a("s_mov_b64 exec, -1")
        else: a(x)
    def odd_vcc(self):
        self.a(f"s_mov_b32 vcc_lo, {ODD}"); self.a(f"s_mov_b32 vcc_hi, {ODD}")
    def r_pv(self):
        a = self.a
        self.lab("PV")
        self.pv_reads()
        sh = self.pv_shadow()
        z = [f"v_mov_b64 {vr(D+2*k,2)}, 0" for k in range(8)]
        while sh[0] != "W":
            x = sh.pop(0)
            a(z.pop(0) if x == "N" else x)
        for x in z: a(x)
        self.odd_vcc()
        for mp in range(4):
            if mp == 0: a(f"s_waitcnt lgkmcnt(8)")
            for dt in range(4):
                if mp == 0 and dt == 3: a(sh.pop(0) and "s_waitcnt lgkmcnt(0)")
                a(f"{SMF} {vr(D+4*dt)}, {vr(QP+16+4*mp)}, {vr(VAT+32*mp+8*dt,8)}, v{vIdx}")
                if mp * 4 + dt >= 3:
                    for _ in range(2 if mp == 3 or dt == 0 else 1):
                        if sh: self.emit_shadow_item(sh.pop(0))
        for x in sh: self.emit_shadow_item(x)
        self.lab("EPI")
        a("s_nop 4")
        self.stamp("pv_mfma_end", 8, True)
        for dt in range(4): a(f"v_pk_add_f32 {vr(D+4*dt,2)}, {vr(D+4*dt,2)}, {vr(D+4*dt+2,2)}")
        for dt in (0, 2, 1, 3): a(f"v_pk_mul_f32 {vr(D+4*dt,2)}, {vr(D+4*dt,2)}, {vr(T+6,2)}")
        a(f"v_permlane32_swap_b32 v{D+0}, v{D+8}")
        a(f"v_permlane32_swap_b32 v{D+1}, v{D+9}")
        a(f"v_permlane32_swap_b32 v{D+4}, v{D+12}")
        a(f"v_permlane32_swap_b32 v{D+5}, v{D+13}")
        a(f"v_pk_add_f32 {vr(D,2)}, {vr(D,2)}, {vr(D+8,2)}")
        a(f"v_pk_add_f32 {vr(D+4,2)}, {vr(D+4,2)}, {vr(D+12,2)}")
        a("s_nop 1")
        a(f"v_permlane16_swap_b32 v{D+0}, v{D+4}")
        a(f"v_permlane16_swap_b32 v{D+1}, v{D+5}")
        a(f"v_pk_add_f32 {vr(D,2)}, {vr(D,2)}, {vr(D+4,2)}")
        a(f"v_cndmask_b32 v{T+0}, v{D+1}, v{D+0}, vcc")
        a("s_nop 1")
        a(f"v_mov_b32_dpp v{T+1}, v{T+0} quad_perm:[1,0,3,2] {DPP}")
        a(f"v_cndmask_b32 v{T+2}, v{D+0}, v{T+1}, vcc")
        a(f"v_cndmask_b32 v{T+3}, v{T+1}, v{D+1}, vcc")
        a(f"v_cvt_pk_bf16_f32 v{T+0}, v{T+2}, v{T+3}")
        a(f"v_min_u32 v{T+0}, -2, v{T+0}")
        self.pub("buffer_store_dword", f"v{T+0}", vOw, oOW)
        self.stamp("o_pub", 9, True)
        self.ret_if_stream()

    def v_addr(self, tmp):
        for k in range(1, 4): self.a(f"v_xor_b32 v{tmp+k-1}, {k<<5}, v{vVr0}")
    def v_read(self, mp, dt, dst, tmp):
        ad = vVr0 if dt == 0 else tmp + dt - 1
        for hi in range(2):
            for h in range(2):
                self.a(f"ds_read_b64_tr_b16 {vr(dst+4*hi+2*h,2)}, v{ad} offset:{mp*8192+hi*2048+h*512}")
    def r_vcopy(self):
        for mp in range(4):
            self.lab(f"VC_{mp}")
            self.v_addr(T + 1)
            for dt in range(4): self.v_read(mp, dt, VAT + 32 * mp + 8 * dt, T + 1)
            if mp < 3: self.ret_if_stream()
        self.a(f"s_setpc_b64 {sp(sRET)}")
    def r_pv2(self, waits):
        a = self.a
        self.lab("PV2")
        BUF = [S, S + 8, QP + 8, QP]
        self.pv_reads()
        self.odd_vcc()
        sh = self.pv_shadow()
        z = [f"v_mov_b64 {vr(D+2*k,2)}, 0" for k in range(8)]
        tmp = [vKr0, vVb0, vVb1]
        for k in range(1, 4): a(f"v_xor_b32 v{tmp[k-1]}, {k<<5}, v{vVr0}")
        def rd(n, dt):
            mp, w = waits[n]
            if dt == 0 and w is not None:
                a(f"s_waitcnt vmcnt({w})")
                if n == len(waits) - 1: self.stamp("stream_end", 4)
            ad = vVr0 if dt == 0 else tmp[dt - 1]
            for hi in range(2):
                for h in range(2):
                    a(f"ds_read_b64_tr_b16 {vr(BUF[dt]+4*hi+2*h,2)}, v{ad} offset:{mp*8192+hi*2048+h*512}")
        rd(0, 0); rd(0, 1)
        while sh[0] != "W":
            x = sh.pop(0)
            a(z.pop(0) if x == "N" else x)
        for x in z: a(x)
        sh.pop(0); a("s_waitcnt lgkmcnt(8)")
        for x in sh: self.emit_shadow_item(x)
        rd(0, 2); rd(0, 3)
        for n in range(4):
            mp = waits[n][0]
            for dt in range(4):
                a(f"s_waitcnt lgkmcnt({12 if n < 3 else 12-4*dt})")
                a(f"{SMF} {vr(D+4*dt)}, {vr(QP+16+4*mp)}, {vr(BUF[dt],8)}, v{vIdx}")
                if n < 3: rd(n + 1, dt)
        a("s_branch EPI")

    def r_cs(self):
        a = self.a
        self.lab("CSUM")
        for k in range(4): a(f"v_mov_b32 v{T+k}, {ONES}")
        for k in range(4): self.w_read(k, S + 4 * k)
        for k in range(14):
            a(f"s_waitcnt lgkmcnt({min(6, 2*(13-k))})")
            a(f"{MFMA} {vr(CS)}, {vr(S+4*(k%4))}, {vr(T)}, {'0' if k == 0 else vr(CS)}")
            if k + 4 < 14: self.w_read(k + 4, S + 4 * (k % 4))
        a("s_nop 7")
        a(f"s_setpc_b64 {sp(sRET)}")

    def r_loop(self):
        a = self.a
        self.lab("LOOP")
        a(f"s_cmp_ge_u32 s{sJ}, 28"); a("s_cbranch_scc1 L_skipwo")
        assert self.womid
        a(f"buffer_load_dwordx4 {vr(QP+16)}, v{vSr}, {srd(rWS)}, s{oSR} offen sc1")
        for k in range(16): a(f"v_swap_b32 v{WOC+k}, v{WON+k}")
        a("s_branch WO_w")
        self.r_wo()
        a(f"s_cmp_eq_u32 s{sL}, 2"); a("s_cbranch_scc1 L_vpf")
        a(f"s_cmp_eq_u32 s{sL}, 1"); a("s_cbranch_scc1 L_h3w")
        a(f"s_cmp_lg_u32 s{sG}, 0"); a("s_cbranch_scc1 L_fin")
        self.lab("L_h3w")
        if self.h3d: a(f"s_sleep {self.h3d}")
        self.r_h3()
        self.lab("ADV")
        self.advance()
        self.ret_if_stream()
        a(f"s_and_b32 s{sT0}, s{sL}, 1"); a(f"s_cmp_lg_u32 s{sT0}, s{sQM}"); a("s_cbranch_scc1 ATT_poll")
        self.r_qp()
        self.r_att()
        self.r_pv()
        a("s_branch LOOP")
        self.lab("RET")
        a(f"s_setpc_b64 {sp(sRET)}")
        self.lab("L_vpf")
        self.call("VC_0")
        self.tmp_srd(pOUT, 7168)
        a("s_branch H3_poll")
        self.lab("L_skipwo")
        a(f"s_cmp_eq_u32 s{sL}, 3"); a("s_cbranch_scc1 L_fin")
        a(f"s_cmp_eq_u32 s{sL}, 1"); a("s_cbranch_scc1 ADV")
        self.call("VC_0")
        a("s_branch ADV")
        self.r_h3_final(); self.r_wo_stubs(); self.r_qp_stubs()

    def to_qp(self, delay):
        a = self.a
        a(f"s_cmp_eq_u32 s{sQM}, 1")
        a(f"s_cselect_b32 s{sPH}, {QP_I}, {AT_I}")
        a(f"s_cselect_b32 s{sAge}, {delay}, {delay + self.gaps[3] + self.A}")
    def q1_issue(self):
        a = self.a
        a(f"v_lshrrev_b32 v{T+5}, 1, v{vL}"); a(f"v_lshlrev_b32 v{T+5}, 8, v{T+5}"); a(f"v_and_b32 v{T+6}, 1, v{vL}")
        a(f"v_lshl_add_u32 v{T+5}, v{T+6}, 4, v{T+5}")
        a(f"s_mul_i32 s{sA1}, s{sG}, {GSTRIDE}"); a(f"s_lshl_b32 s{sT1}, s{sB}, 5"); a(f"s_add_u32 s{sA1}, s{sA1}, s{sT1}"); a(f"s_add_u32 s{sA1}, s{sA1}, {BASE}")
        a(f"buffer_load_dwordx4 {vr(S)}, v{T+5}, {srd(rWS)}, s{sA1} offen {self.qpol}")
        a(f"v_and_b32 v{T+6}, 31, v{vL}"); a(f"v_lshlrev_b32 v{T+6}, 7, v{T+6}")
        a(f"s_lshl_b32 s{sA1}, s{sG}, 12"); a(f"s_add_u32 s{sA1}, s{sA1}, {XCBASE}")
        a(f"buffer_load_dword v{T+7}, v{T+6}, {srd(rWS)}, s{sA1} offen {self.qpol}")
    def r_q1(self):
        a = self.a
        self.lab("Q1_poll")
        self.q1_issue()
        a("s_waitcnt vmcnt(0)")
        self.check([(S, 4), (T + 7, 1)], T + 0)
        a("s_cbranch_vccz Q1_go")
        a(f"s_cmp_eq_u32 s{sTO}, 0"); a("s_cbranch_scc1 Q1_go"); a(f"s_sub_u32 s{sTO}, s{sTO}, 1"); a("s_branch Q1_poll")
        self.lab("Q1_go")
        a(f"v_readfirstlane_b32 s{sT0}, v{T+7}")
        a("s_nop 1")
        a(f"v_cmp_ne_u32 vcc, s{sT0}, v{T+7}")
        a("s_cbranch_vccnz XC_slow")
        if not self.slow:
            a(f"s_mov_b32 s{rPF+2}, {WS_SIZE}"); a(f"s_mov_b32 s{rPS+2}, 0")
        self.lab("XC_slow")
        self.stamp("gate", 2)
        l = self.newlab("Lw0")
        a(f"s_cmp_eq_u32 s{sW}, 0"); a(f"s_cbranch_scc1 {l}"); a(f"s_cmp_ge_u32 s{sJ}, 28"); a(f"s_cbranch_scc1 {l}")
        self.reset_loc()
        self.lab(l)
        l = self.newlab("Lna")
        a(f"s_cmp_lg_u32 s{sJ}, 31"); a(f"s_cbranch_scc1 {l}"); a(f"s_cmp_lg_u32 s{sW}, 0"); a(f"s_cbranch_scc1 {l}")
        a(f"s_lshl_b32 s{sT0}, s{sG}, 2"); a(f"v_mov_b32 v{T+6}, s{sT0}"); a(f"v_mov_b32 v{T+7}, 1")
        a("s_mov_b64 exec, 1")
        a(f"global_store_dword v{T+6}, v{T+7}, {sp(pDBG)} offset:128 sc1")
        a("s_mov_b64 exec, -1")
        self.lab(l)
        self.warm_part(OOFF, 9)
        a("s_waitcnt lgkmcnt(0)")
        self.call("ATT_h0")
        a(f"s_mov_b32 s{sPH}, {DONE}")
        a(f"s_setpc_b64 {sp(sRET2)}")
    def r_handler(self):
        a = self.a
        G, A, Ar = self.gaps, self.A, self.Ar
        ret = f"s_setpc_b64 {sp(sRET2)}"
        self.lab("HND")
        a(f"s_cmp_eq_u32 s{sAge}, 0"); a("s_cbranch_scc1 HND_act")
        a(f"s_sub_u32 s{sAge}, s{sAge}, 1")
        a(f"s_bitcmp1_b32 s{sPH}, 0"); a("s_cbranch_scc1 HND_ret")
        a(f"s_cmp_gt_u32 s{sAge}, {self.hold}"); a("s_cbranch_scc1 HND_ret")
        a(f"s_waitcnt vmcnt({self.Tlo - 2})"); a(ret)
        self.lab("HND_act")
        for stt, nm in ((DONE, "HND_ret"), (Q1_I, "H_Q1I"), (Q1_C, "H_Q1C"), (WO_C, "H_WOC"), (H3_I, "H_H3I"), (H3_C, "H_H3C"), (QP_I, "H_QPI"), (QP_C, "H_QPC"), (AT_I, "H_ATI0"), (AT_C, "H_ATC")):
            a(f"s_cmp_eq_u32 s{sPH}, {stt}"); a(f"s_cbranch_scc1 {nm}")
        def issue(lab, fn, nxt_):
            self.lab(lab)
            if self.stamps and not self.posst: self.stamp(lab + "_first", {"H_WOI": 26, "H_H3I": 38, "H_QPI": 50, "H_QPIz": 50, "H_ATI": 62}[lab])
            a(f"s_waitcnt vmcnt({self.Tlo})"); a(f"s_mov_b32 s{sAge}, {A-1}"); a(f"s_mov_b32 s{sA0}, 0"); a(f"s_branch {lab}x")
            self.lab(lab + "r"); a(f"s_waitcnt vmcnt({self.Tr})"); a(f"s_mov_b32 s{sAge}, {Ar-1}"); a(f"s_mov_b32 s{sA0}, 1")
            self.lab(lab + "x")
            if self.stamps and not self.posst: self.stamp(lab + "_last", {"H_WOI": 27, "H_H3I": 39, "H_QPI": 51, "H_QPIz": 51, "H_ATI": 63}[lab])
            fn(); a(f"s_mov_b32 s{sPH}, {nxt_}"); a(ret)
        def landed(lab):
            self.lab(lab)
            l = self.newlab("Lw")
            a(f"s_waitcnt vmcnt({2*A})")
            a(f"s_cmp_eq_u32 s{sA0}, 0"); a(f"s_cbranch_scc1 {l}"); a(f"s_waitcnt vmcnt({2*Ar})"); self.lab(l)
        issue("H_WOI", self.wo_issue, WO_C)
        landed("H_WOC")
        self.check(self.wo_st + self.wo_o, T + 0); a("s_cbranch_vccnz H_WOIr")
        a(f"s_cmp_eq_u32 s{sWOok}, 0"); a("s_cbranch_scc1 HND_ret")
        a("s_waitcnt lgkmcnt(0)")
        self.gate2("G2")
        self.wo_scales()
        self.call("WO_go2")
        self.warm_part(XOFF, 3)
        a(f"s_mov_b32 s{sPH}, {H3_I}"); a(f"s_mov_b32 s{sAge}, {G[1]}"); a(ret)
        issue("H_H3I", self.h3_issue, H3_C)
        landed("H_H3C")
        self.check(self.h3_regs(0), T + 0); a("s_cbranch_vccnz H_H3Ir")
        self.call("H3_h0")
        self.warm_part(LSTRIDE + QOFF, 3)
        self.to_qp(G[2])
        a(ret)
        if self.qpblk:
            self.lab("H_QPI"); self.call("QP_first")
            a(f"s_mov_b32 s{sPH}, {AT_I}"); a(f"s_mov_b32 s{sAge}, {G[3]}"); a(ret)
        issue("H_QPI" + ("z" if self.qpblk else ""), lambda: (self.qp_prep(), self.qp_issue()), QP_C)
        landed("H_QPC")
        self.check(self.qp_regs, D); a("s_cbranch_vccnz H_QPI" + ("z" if self.qpblk else "") + "r")
        self.qp_preload()
        self.call("QP_go")
        a(f"s_mov_b32 s{sPH}, {AT_I}"); a(f"s_mov_b32 s{sAge}, {G[3]}"); a(ret)
        self.lab("H_ATI0")
        a(f"s_cmp_eq_u32 s{sKBok}, 0"); a("s_cbranch_scc1 HND_ret")
        issue("H_ATI", self.att_issue, AT_C)
        landed("H_ATC")
        self.check(self.att_regs(0), T + 0); a("s_cbranch_vccnz H_ATIr")
        a(f"s_cmp_lt_u32 s{sKBok}, 2"); a("s_cbranch_scc1 HND_ret")
        a("s_waitcnt lgkmcnt(0)")
        self.call("ATT_h0")
        a(f"s_mov_b32 s{sPH}, {DONE}")
        self.lab("HND_ret")
        a(ret)
        An = (self.Tbase + 1) // 2
        self.lab("H_Q1C")
        a(f"s_waitcnt vmcnt({2*An})")
        self.check([(S, 4), (T + 7, 1)], T + 0); a("s_cbranch_vccz Q1_go")
        self.lab("H_Q1I")
        self.q1_issue(); a(f"s_mov_b32 s{sPH}, {Q1_C}"); a(f"s_mov_b32 s{sAge}, {An-1}"); a(ret)
        self.r_q1()
    def gate2(self, nm):
        a = self.a
        self.lab(f"{nm}_chk")
        a(f"v_cmp_eq_u32 vcc, 0, v{T+7}")
        a(f"s_cbranch_vccz {nm}_ok")
        a(f"s_cmp_eq_u32 s{sTO}, 0"); a(f"s_cbranch_scc1 {nm}_ok"); a(f"s_sub_u32 s{sTO}, s{sTO}, 1")
        a("s_sleep 4")
        a(f"global_load_dword v{T+7}, v{T+6}, {sp(pDBG)} offset:128 sc1"); a("s_waitcnt vmcnt(0)"); a(f"s_branch {nm}_chk")
        self.lab(f"{nm}_ok")
    def finish_chain(self):
        a = self.a
        l1, l2, l3, l4 = (self.newlab("Lfin") for _ in range(4))
        a(f"s_cmp_gt_u32 s{sPH}, {WO_C}"); a(f"s_cbranch_scc1 {l1}")
        a("s_waitcnt vmcnt(0)")
        self.gate2("F2")
        self.call("WO_poll")
        self.lab(l1)
        a(f"s_cmp_gt_u32 s{sPH}, {H3_C}"); a(f"s_cbranch_scc1 {l2}")
        self.call("H3_poll")
        self.to_qp(0)
        self.lab(l2)
        a(f"s_cmp_gt_u32 s{sPH}, {QP_C}"); a(f"s_cbranch_scc1 {l3}")
        self.call("QP_first")
        self.lab(l3)
        a(f"s_cmp_eq_u32 s{sPH}, {DONE}"); a(f"s_cbranch_scc1 {l4}")
        self.call("ATT_poll")
        a("s_waitcnt vmcnt(0)")
        self.lab(l4)

    def k_dma(self, r, m, i):
        a = self.a
        if i == 0:
            self.slot_free(m)
            a(f"s_add_u32 m0, s{sRing}, {m*4096}")
        x = (8 * (m & 1) + 2 * i) << 4
        if x: a(f"v_xor_b32 v{D+15}, {x}, v{vKb}")
        elif i == 0: a("s_nop 0")
        self.throttle()
        a(f"buffer_load_dwordx4 v{D+15 if x else vKb}, {srd(r)}, s{sM+m} offen offset:{i*1024} nt lds")
        return self.streamop()
    def k_copy(self, base, t):
        a = self.a
        for k in range(1, 4): a(f"v_xor_b32 v{D+11+k}, {k<<6}, v{vKr0}")
        for i in range(8):
            ad = vKr0 if i % 4 == 0 else D + 11 + i % 4
            a(f"ds_read_b128 {ar(base+32*t+4*i)}, v{ad} offset:{t*8192+(i//4)*256}")
        self.slot_read(2 * t); self.slot_read(2 * t + 1)
    def v_dma(self, r, m, w):
        a = self.a
        if w == 0:
            self.slot_free(m)
            a(f"s_add_u32 m0, s{sRing}, {m*4096}")
            a("s_nop 0")
        else:
            a(f"s_add_u32 s{sT0}, s{sM+m}, {3072*w}")
        self.throttle()
        a(f"buffer_load_dwordx4 v{vVb0+(m&1)}, {srd(r)}, s{sM+m if w == 0 else sT0} offen offset:{w*1024} nt lds")
        return self.streamop()
    def v_copy(self, mp):
        self.call(f"VC_{mp}"); self.slot_read(2 * mp); self.slot_read(2 * mp + 1)
    def tmp_srd(self, p, size):
        a = self.a
        a(f"s_mov_b32 s{rTMP}, s{p}"); a(f"s_mov_b32 s{rTMP+1}, s{p+1}"); a(f"s_mov_b32 s{rTMP+2}, {size}"); a(f"s_mov_b32 s{rTMP+3}, 0x20000")
    def wo_dma(self, p, slot, ks=range(4)):
        a = self.a
        if 0 in ks: self.slot_free(slot)
        l = self.if_j28()
        self.tmp_srd(p, 4096 * 896)
        a(f"s_lshl_b32 s{sT0}, s{sG}, 1"); a(f"s_and_b32 s{sT1}, s{sJ}, 1"); a(f"s_add_u32 s{sT0}, s{sT0}, s{sT1}")
        a(f"s_lshl_b32 s{sT0}, s{sT0}, 2"); a(f"s_add_u32 s{sT0}, s{sT0}, s{sW}"); a(f"s_mul_i32 s{sT0}, s{sT0}, {64*896}")
        a(f"s_lshr_b32 s{sT1}, s{sJ}, 1"); a(f"s_lshl_b32 s{sT1}, s{sT1}, 6"); a(f"s_add_u32 s{sT0}, s{sT0}, s{sT1}")
        a(f"v_lshrrev_b32 v{D+15}, 2, v{vL}"); a(f"v_mul_u32_u24 v{D+15}, 896, v{D+15}")
        a(f"v_and_b32 v{D+14}, 3, v{vL}"); a(f"v_lshl_add_u32 v{D+15}, v{D+14}, 4, v{D+15}")
        if ks[0]: a(f"s_add_u32 s{sT0}, s{sT0}, {16*896*ks[0]}")
        for kk in ks:
            a(f"s_add_u32 m0, s{sRing}, {slot*4096+kk*1024}")
            if kk != ks[0]: a(f"s_add_u32 s{sT0}, s{sT0}, {16*896}")
            else: a("s_nop 0")
            a(f"buffer_load_dwordx4 v{D+15}, {srd(rTMP)}, s{sT0} offen {self.wpol} lds")
        self.lab(l)
        return self.optional()
    def wo_copy(self, W, slot):
        a = self.a
        a(f"v_lshrrev_b32 v{D+12}, 4, v{vL}"); a(f"v_lshlrev_b32 v{D+12}, 9, v{D+12}")
        a(f"v_bfe_u32 v{D+13}, v{vL}, 2, 2"); a(f"v_lshl_add_u32 v{D+12}, v{D+13}, 6, v{D+12}")
        a(f"v_and_b32 v{D+13}, 3, v{vL}"); a(f"v_lshl_add_u32 v{D+12}, v{D+13}, 3, v{D+12}")
        a(f"v_add_u32 v{D+12}, s{sRing}, v{D+12}")
        for i in range(2):
            for ct in range(2):
                for h in range(2):
                    a(f"ds_read_b64_tr_b16 {vr(W+8*i+4*ct+2*h,2)}, v{D+12} offset:{slot*4096+i*2048+h*256+ct*32}")
        self.slot_read(slot)
    def wq_all(self, only=None):
        a = self.a
        skip = None
        if only is not False and only is not None:
            skip = self.newlab("Lwq")
            a(f"s_cmp_ge_u32 s{sA0}, 16"); a(f"s_cbranch_scc{1 - only} {skip}")
        a(f"s_cmp_ge_u32 s{sA0}, 16")
        a(f"s_cselect_b32 s{rTMP}, s{pWQB}, s{pWQA}"); a(f"s_cselect_b32 s{rTMP+1}, s{pWQB+1}, s{pWQA+1}")
        a(f"s_mov_b32 s{rTMP+2}, {448*8192}"); a(f"s_mov_b32 s{rTMP+3}, 0x20000")
        nq = 7
        if self.bal:
            a(f"s_mul_i32 s{sT1}, s{sW}, 4"); a(f"s_cmp_eq_u32 s{sW}, 3"); a(f"s_cselect_b32 s{sT1}, 18, s{sT1}")
            nq = 10
        else:
            a(f"s_mul_i32 s{sT1}, s{sW}, 7")
        a(f"s_lshl_b32 s{sT0}, s{sT1}, 17"); a(f"s_lshl_b32 s{sT1}, s{sT1}, 10"); a(f"s_add_u32 s{sA1}, s{sT1}, {WQ_LDS}")
        a(f"s_lshl_b32 s{sT1}, s{sG}, 10"); a(f"s_add_u32 s{sT0}, s{sT0}, s{sT1}")
        a(f"s_and_b32 s{sT1}, s{sA0}, 15"); a(f"s_lshl_b32 s{sT1}, s{sT1}, 6"); a(f"s_add_u32 s{sT0}, s{sT0}, s{sT1}")
        a(f"v_lshrrev_b32 v{D+15}, 2, v{vL}"); a(f"v_lshlrev_b32 v{D+15}, 13, v{D+15}")
        a(f"v_and_b32 v{D+14}, 3, v{vL}"); a(f"v_lshl_add_u32 v{D+15}, v{D+14}, 4, v{D+15}")
        o = None
        short = None
        for q in range(nq):
            if self.bal and q == 4:
                short = self.newlab("Lwqs")
                a(f"s_cmp_lt_u32 s{sW}, 2"); a(f"s_cbranch_scc1 {short}")
            a(f"s_add_u32 m0, s{sA1}, {q*1024}")
            if q: a(f"s_add_u32 s{sT0}, s{sT0}, {1 << 17}")
            else: a("s_nop 0")
            a(f"buffer_load_dwordx4 v{D+15}, {srd(rTMP)}, s{sT0} offen {self.wpol} lds")
            if skip is None and short is None: o = self.counted()
        if short is not None: self.lab(short)
        if skip is not None: self.lab(skip)
        if skip is not None or short is not None: o = self.optional()
        return o
    def wq_part(self, q0, n):
        a = self.a
        a(f"s_cmp_ge_u32 s{sA0}, 16")
        a(f"s_cselect_b32 s{rTMP}, s{pWQB}, s{pWQA}"); a(f"s_cselect_b32 s{rTMP+1}, s{pWQB+1}, s{pWQA+1}")
        a(f"s_mov_b32 s{rTMP+2}, {448*8192}"); a(f"s_mov_b32 s{rTMP+3}, 0x20000")
        a(f"s_mul_i32 s{sT1}, s{sW}, 7"); a(f"s_add_u32 s{sT1}, s{sT1}, {q0}")
        a(f"s_lshl_b32 s{sT0}, s{sT1}, 17"); a(f"s_lshl_b32 s{sT1}, s{sT1}, 10"); a(f"s_add_u32 s{sA1}, s{sT1}, {WQ_LDS}")
        a(f"s_lshl_b32 s{sT1}, s{sG}, 10"); a(f"s_add_u32 s{sT0}, s{sT0}, s{sT1}")
        a(f"s_and_b32 s{sT1}, s{sA0}, 15"); a(f"s_lshl_b32 s{sT1}, s{sT1}, 6"); a(f"s_add_u32 s{sT0}, s{sT0}, s{sT1}")
        a(f"v_lshrrev_b32 v{D+15}, 2, v{vL}"); a(f"v_lshlrev_b32 v{D+15}, 13, v{D+15}")
        a(f"v_and_b32 v{D+14}, 3, v{vL}"); a(f"v_lshl_add_u32 v{D+15}, v{D+14}, 4, v{D+15}")
        for q in range(n):
            a(f"s_add_u32 m0, s{sA1}, {q*1024}")
            if q: a(f"s_add_u32 s{sT0}, s{sT0}, {1 << 17}")
            else: a("s_nop 0")
            self.throttle()
            a(f"buffer_load_dwordx4 v{D+15}, {srd(rTMP)}, s{sT0} offen {self.wpol} lds")
            o = self.streamop()
        return o
    def role(self):
        self.a(f"s_mov_b32 s{sA0}, s{sJ}"); self.a(f"s_lshr_b32 s{sT0}, s{sJ}, 1")
        for v, d in ((3, 22), (14, -22), (11, 8), (15, -8)):
            self.a(f"s_add_i32 s{sT1}, s{sJ}, {d}"); self.a(f"s_cmp_eq_u32 s{sT0}, {v}"); self.a(f"s_cselect_b32 s{sA0}, s{sT1}, s{sA0}")
        self.a(f"s_and_b32 s{sJQ}, s{sA0}, 15"); self.a(f"s_lshl_b32 s{sJQ}, s{sJQ}, 1"); self.a(f"s_add_u32 s{sJQ}, s{sJQ}, s{sW}")
        self.a(f"s_lshr_b32 s{sQM}, s{sA0}, 4"); self.a(f"s_cmp_ge_u32 s{sW}, 2"); self.a(f"s_cselect_b32 s{sQM}, 2, s{sQM}")
    def x_first(self):
        a = self.a
        t0, t1 = D + 14, D + 15
        a(f"v_and_b32 v{t0}, 7, v{vL}"); a(f"v_mul_u32_u24 v{t0}, 896, v{t0}"); a(f"v_bfe_u32 v{t1}, v{vL}, 3, 1"); a(f"v_mul_u32_u24 v{t1}, 448, v{t1}")
        a(f"v_add_u32 v{t0}, v{t0}, v{t1}"); a(f"v_and_b32 v{t1}, 48, v{vL}"); a(f"v_add_u32 v{t0}, v{t0}, v{t1}")
        self.tmp_srd(pAX, 7168)
        for i in range(7):
            a(f"buffer_load_dwordx4 {vr(QP+4*i)}, v{t0}, {srd(rTMP)}, 0 offen offset:{64*i}")
    def loc0(self, dst):
        a = self.a
        a(f"s_mul_i32 s{dst}, s{sG}, {GSTRIDE}"); a(f"s_add_u32 s{dst}, s{dst}, {BASE}"); a(f"s_sub_u32 s{dst}, s{dst}, s{sScrW}")
    SENT = S + 12
    def reset_leader(self):
        a = self.a
        l2 = self.newlab("Ldn")
        i1 = f"buffer_store_dwordx4 {vr(self.SENT)}, v{vScr}, {srd(rWS)}, s{sT0} offen"
        a(f"s_cmp_lg_u32 s{sB}, 4"); a(f"s_cbranch_scc1 {l2}")
        a(f"s_cmp_lg_u32 s{sW}, 2"); a(f"s_cbranch_scc1 {l2}")
        self.loc0(sA1)
        a(f"s_lshl_b32 s{sT1}, s{sS}, 11"); a(f"s_add_u32 s{sT0}, s{sA1}, s{sT1}")
        a(i1 + " sc1"); a(i1 + " offset:1024 sc1")
        a(f"s_lshl_b32 s{sT0}, s{sG}, 2"); a(f"s_add_u32 s{sT0}, s{sT0}, s{sS}"); a(f"s_lshl_b32 s{sT0}, s{sT0}, 10")
        a(f"s_add_u32 s{sT0}, s{sT0}, {XCBASE}"); a(f"s_sub_u32 s{sT0}, s{sT0}, s{sScrW}")
        a(i1 + " sc1")
        self.lab(l2)
    def reset_general(self):
        a = self.a
        l = self.if_wave(0); l2 = self.newlab("Ldn")
        self.loc0(sT0)
        a(f"s_mul_i32 s{sT1}, s{sJ}, 1408"); a(f"s_add_u32 s{sT0}, s{sT0}, s{sT1}"); a(f"s_add_u32 s{sT0}, s{sT0}, {OOFF}")
        i1 = f"buffer_store_dwordx4 {vr(self.SENT)}, v{vScr}, {srd(rWS)}, s{sT0} offen"
        a(i1 + " " + self.rpol); a("s_mov_b64 exec, 0xffffff"); a(i1 + " offset:1024 " + self.rpol); a("s_mov_b64 exec, -1")
        a(f"s_branch {l2}")
        self.lab(l)
        a(f"s_mul_i32 s{sT0}, s{sW}, {LSTRIDE}"); a(f"s_mul_i32 s{sT1}, s2, 896"); a(f"s_add_u32 s{sT0}, s{sT0}, s{sT1}")
        a(f"s_add_u32 s{sT0}, s{sT0}, {BASE + X3OFF}"); a(f"s_sub_u32 s{sT0}, s{sT0}, s{sScrW}")
        if "nox3" in self.exp: a(f"s_branch {l2}")
        a("s_mov_b32 exec_hi, 0xffffff"); a(i1 + " " + self.rpol); a("s_mov_b32 exec_hi, -1")
        self.lab(l2)
        if "noown" in self.exp: return
        l = self.if_j28()
        a(f"buffer_store_dword v{self.SENT}, v{vX3w}, {srd(rWS)}, s{oX3W} offen {self.rpol}")
        self.lab(l)
    def reset_loc(self):
        a = self.a
        self.loc0(sT0)
        a(f"s_mul_i32 s{sT1}, s{sW}, {LSTRIDE}"); a(f"s_add_u32 s{sT0}, s{sT0}, s{sT1}")
        a(f"s_mul_i32 s{sT1}, s{sJ}, 1872"); a(f"s_add_u32 s{sT0}, s{sT0}, s{sT1}")
        self.pub("buffer_store_dwordx4", vr(self.SENT), vScr, sT0)
        a("s_mov_b32 exec_hi, 0x1fffff"); self.pub("buffer_store_dwordx4", vr(self.SENT), vScr, sT0, "offset:1024"); a("s_mov_b32 exec_hi, -1")
    def warm_part(self, off, n):
        if not self.warm: return
        a = self.a
        l = self.if_wave(3)
        a(f"s_mul_i32 s{sT0}, s{sG}, {GSTRIDE}"); a(f"s_mul_i32 s{sT1}, s{sJ}, {n*128}"); a(f"s_add_u32 s{sT0}, s{sT0}, s{sT1}")
        a(f"s_add_u32 s{sT0}, s{sT0}, {BASE + off}")
        a(f"v_lshlrev_b32 v{CS+1}, 7, v{vL}")
        a(f"s_mov_b64 exec, {(1 << n) - 1}")
        a(f"buffer_load_dword v{CS}, v{CS+1}, {srd(rWS)}, s{sT0} offen")
        a("s_mov_b64 exec, -1")
        self.lab(l)
    def warm_loads(self, t0, sink):
        if not self.warm: return
        a = self.a
        l = self.if_wave(3)
        a(f"v_mul_u32_u24 v{t0+1}, 79, v{vL}"); a(f"v_lshrrev_b32 v{t0+1}, 10, v{t0+1}")
        a(f"v_mul_u32_u24 v{t0}, 13, v{t0+1}"); a(f"v_sub_u32 v{t0}, v{vL}, v{t0}")
        a(f"s_mov_b32 s{sT0}, {LSTRIDE}"); a(f"v_mul_lo_u32 v{t0+1}, v{t0+1}, s{sT0}")
        a(f"v_lshl_add_u32 v{t0+1}, v{t0}, 7, v{t0+1}")
        a(f"s_mul_i32 s{sT0}, s{sG}, {GSTRIDE}"); a(f"s_mul_i32 s{sT1}, s{sJ}, {13*128}"); a(f"s_add_u32 s{sT0}, s{sT0}, s{sT1}")
        a(f"s_add_u32 s{sT0}, s{sT0}, {BASE}")
        a(f"buffer_load_dword v{sink}, v{t0+1}, {srd(rWS)}, s{sT0} offen")
        self.lab(l)
    def if_wave(self, w):
        l = self.newlab("Lnw")
        self.a(f"s_cmp_lg_u32 s{sW}, {w}"); self.a(f"s_cbranch_scc1 {l}")
        return l
    def if_qm(self, p):
        l = self.newlab("Lnq")
        self.a(f"s_cmp_lg_u32 s{sQM}, {p}"); self.a(f"s_cbranch_scc1 {l}")
        return l
    def if_j28(self):
        l = self.newlab("Lj28")
        self.a(f"s_cmp_ge_u32 s{sJ}, 28"); self.a(f"s_cbranch_scc1 {l}")
        return l

    def build(self):
        name = KN + "_kernel"
        self.L = header([f"; @launch grid=(256,1,1) block=(256,1,1) lds={LDS_TOTAL}"]) + kernel_begin(name)
        a = self.a
        a("s_cmp_ge_u32 s2, 256"); a("s_cbranch_scc1 L_end")
        a("s_load_dwordx16 s[8:23], s[0:1], 0")
        a("s_load_dwordx8 s[24:31], s[0:1], 64")
        a("s_load_dwordx2 s[32:33], s[0:1], 96")
        a(f"v_lshrrev_b32 v1, 6, v0"); a(f"v_and_b32 v{vL}, 63, v0"); a(f"v_readfirstlane_b32 s{sW}, v1")
        a(f"s_and_b32 s{sG}, s2, 7"); a(f"s_lshr_b32 s{sJ}, s2, 3"); a(f"s_lshr_b32 s{sB}, s2, 5"); a(f"s_and_b32 s{sS}, s{sJ}, 3")
        a(f"s_lshl_b32 s{sRing}, s{sW}, 15"); a(f"s_lshl_b32 s{sScrW}, s{sW}, 10"); a(f"s_add_u32 s{sScrW}, s{sScrW}, {SCR}")
        for m in range(8): a(f"s_mov_b32 s{sM+m}, {m*65536}")
        t0, t1, t2 = T, T + 1, T + 2
        a(f"s_lshl_b32 s{sT0}, s{sS}, 14"); a(f"s_lshl_b32 s{sT1}, s{sW}, 12"); a(f"s_add_u32 s{sT1}, s{sT0}, s{sT1}")
        a(f"v_lshrrev_b32 v{t0}, 5, v{vL}"); a(f"v_and_b32 v{t1}, 31, v{vL}"); a(f"v_xor_b32 v{t1}, v{t1}, v{t0}")
        a(f"v_lshlrev_b32 v{t0}, 9, v{t0}"); a(f"v_lshl_add_u32 v{t0}, v{t1}, 4, v{t0}"); a(f"v_add_u32 v{vKb}, s{sT1}, v{t0}")
        a(f"s_lshl_b32 s{sT0}, s{sB}, 3"); a(f"s_add_u32 s{sT0}, s{sT0}, s{sG}"); a(f"s_lshl_b32 s{sT0}, s{sT0}, 21")
        a(f"s_add_u32 s{sT0}, s{sT0}, 0x180000")
        if self.stamps:
            a(f"v_mov_b32 v{vST}, 0"); a(f"s_mov_b32 s{sSB}, 16")
            a("s_memtime s[100:101]")
        a("s_waitcnt lgkmcnt(0)")
        if self.stamps: a(f"v_writelane_b32 v{vST}, s100, 13")
        self.stamp("start", 0)
        for r, p in ((rKA, pKA), (rVA, pVA), (rKB, pKB), (rVB, pVB)):
            a(f"s_add_u32 s{r}, s{p}, s{sT0}"); a(f"s_addc_u32 s{r+1}, s{p+1}, 0"); a(f"s_mov_b32 s{r+2}, 0x80000"); a(f"s_mov_b32 s{r+3}, 0x20000")
        kA = {}
        if self.WQ1 < 0:
            self.role()
            wq0 = self.wq_all(self.wqsplit and 0)
        for m in range(self.K0 // 4):
            for i in range(4): kA[(m, i)] = self.k_dma(rKA, m, i)
        if self.tlb:
            l = self.if_wave(3) if self.tlb == 1 else None
            a("s_mov_b64 exec, 1")
            for r in (rVA, rKB, rVB):
                a(f"buffer_load_dword v{CS+2}, v{vKb}, {srd(r)}, 0 offen nt")
            a("s_mov_b64 exec, -1")
            if l: self.lab(l)
        self.stamp("k0", 6)
        for r, size in ((rWS, 0), (rPF, 0), (rPS, 0)):
            a(f"s_mov_b32 s{r}, s{pWS}"); a(f"s_mov_b32 s{r+1}, s{pWS+1}"); a(f"s_mov_b32 s{r+2}, {size}"); a(f"s_mov_b32 s{r+3}, 0x20000")
        a(f"s_mov_b32 s{sTO}, {self.TO}"); a(f"s_mov_b32 s{sL}, 0"); a(f"s_mov_b32 s{sC}, {CSCALE}")
        a(f"s_mov_b32 s{sStream}, 1"); a(f"s_mov_b32 s{sWarm}, 1"); a(f"s_mov_b32 s{sSENT1}, -1"); a(f"s_mov_b32 s{sSENT2}, 0")
        for r, v in ((mX, 0xFF),):
            a(f"s_mov_b32 s{r}, {v:#x}"); a(f"s_mov_b32 s{r+1}, {v:#x}")
        a(f"s_mov_b32 s{mP}, 0x00f0000f"); a(f"s_mov_b32 s{mP+1}, 0xf0000f00")
        if self.WQ1 >= 0: self.role()
        n_, kq_, r_, c_, o_ = D, D + 1, D + 2, D + 3, D + 4
        a(f"v_and_b32 v{n_}, 15, v{vL}"); a(f"v_lshrrev_b32 v{kq_}, 4, v{vL}"); a(f"v_bfe_u32 v{r_}, v{vL}, 2, 2"); a(f"v_and_b32 v{c_}, 3, v{vL}")
        a(f"v_and_b32 v{o_}, 1, v{vL}")
        a(f"v_lshlrev_b32 v{t0}, 4, v{vL}"); a(f"v_add_u32 v{vScr}, s{sScrW}, v{t0}")
        a(f"v_bfe_u32 v{t0}, v{vL}, 2, 1"); a(f"v_mul_u32_u24 v{t0}, 896, v{t0}"); a(f"v_lshl_add_u32 v{t0}, v{c_}, 3, v{t0}")
        a(f"v_lshrrev_b32 v{t1}, 5, v{vL}"); a(f"v_lshl_add_u32 v{vXn}, v{t1}, 2, v{t0}")
        a(f"v_bfe_u32 v{t0}, v{vL}, 1, 1"); a(f"v_lshlrev_b32 v{t0}, 8, v{t0}"); a(f"v_lshl_add_u32 v{t0}, v{t1}, 2, v{t0}")
        a(f"v_bfe_u32 v{t1}, v{vL}, 2, 1"); a(f"v_lshl_add_u32 v{t0}, v{t1}, 4, v{t0}"); a(f"v_lshl_add_u32 v{vXw}, v{o_}, 3, v{t0}")
        a(f"v_lshrrev_b32 v{t0}, 1, v{kq_}"); a(f"v_lshlrev_b32 v{t0}, 11, v{t0}"); a(f"v_and_b32 v{t1}, 1, v{kq_}")
        a(f"v_lshl_add_u32 v{t0}, v{t1}, 6, v{t0}"); a(f"v_lshl_add_u32 v{vX3w}, v{n_}, 2, v{t0}")
        a(f"s_lshl_b32 s{sT0}, s{sS}, 14"); a(f"s_lshl_b32 s{sT1}, s{sW}, 7"); a(f"s_add_u32 s{sT0}, s{sT0}, s{sT1}")
        a(f"v_and_b32 v{t0}, 7, v{vL}"); a(f"v_lshlrev_b32 v{t1}, 1, v{t1}"); a(f"v_xor_b32 v{t0}, v{t0}, v{t1}")
        a(f"v_lshrrev_b32 v{t1}, 3, v{vL}"); a(f"v_lshlrev_b32 v{t1}, 9, v{t1}"); a(f"v_lshl_add_u32 v{t0}, v{t0}, 4, v{t1}")
        a(f"v_add_u32 v{vVb0}, s{sT0}, v{t0}"); a(f"v_xor_b32 v{vVb1}, 64, v{vVb0}")
        a(f"v_bfe_u32 v{t0}, v{vL}, 3, 1"); a(f"v_lshlrev_b32 v{t0}, 12, v{t0}"); a(f"v_and_b32 v{t1}, 7, v{vL}"); a(f"v_lshl_add_u32 v{t0}, v{t1}, 9, v{t0}")
        a(f"v_xor_b32 v{t1}, v{kq_}, v{n_}"); a(f"v_lshl_add_u32 v{t0}, v{t1}, 4, v{t0}"); a(f"v_add_u32 v{vKr0}, s{sRing}, v{t0}")
        a(f"v_and_b32 v{t1}, 1, v{kq_}"); a(f"v_mul_u32_u24 v{t0}, 4160, v{t1}"); a(f"v_lshrrev_b32 v{t1}, 1, v{kq_}"); a(f"v_lshl_add_u32 v{t0}, v{t1}, 10, v{t0}")
        a(f"v_lshl_add_u32 v{t0}, v{r_}, 7, v{t0}"); a(f"v_lshl_add_u32 v{t0}, v{c_}, 3, v{t0}")
        a(f"v_lshrrev_b32 v{t1}, 1, v{r_}"); a(f"v_lshl_add_u32 v{t0}, v{t1}, 5, v{t0}"); a(f"v_add_u32 v{vVr0}, s{sRing}, v{t0}")
        a(f"v_bfe_u32 v{t2}, v{vL}, 1, 1")
        a(f"v_mul_u32_u24 v{vIdx}, 0xaaaa, v{t2}"); a(f"v_add_u32 v{vIdx}, 0x4444, v{vIdx}")
        a(f"v_lshlrev_b32 v{t0}, 9, v{o_}"); a(f"v_lshl_add_u32 v{t0}, v{kq_}, 5, v{t0}"); a(f"v_lshl_add_u32 v{t0}, v{t2}, 4, v{t0}")
        a(f"v_add_u32 v{vQr}, s{sScrW}, v{t0}")
        a(f"v_lshlrev_b32 v{t0}, 7, v{o_}"); a(f"v_lshl_add_u32 v{t0}, v{kq_}, 10, v{t0}"); a(f"v_lshl_add_u32 v{t0}, v{t2}, 4, v{t0}")
        a(f"v_add_u32 v{vPr}, {SCR}, v{t0}")
        a(f"v_lshlrev_b32 v{t0}, 5, v{kq_}"); a(f"v_lshl_add_u32 v{t0}, v{t2}, 4, v{t0}"); a(f"v_lshl_add_u32 v{t0}, v{r_}, 2, v{t0}")
        a(f"v_lshl_add_u32 v{t0}, v{o_}, 1, v{t0}"); a(f"v_add_u32 v{vPw}, s{sScrW}, v{t0}")
        a(f"v_and_b32 v{t0}, 6, v{vL}"); a(f"v_lshlrev_b32 v{t0}, 1, v{t0}"); a(f"v_lshl_add_u32 v{t0}, v{o_}, 14, v{t0}")
        a(f"v_lshrrev_b32 v{t1}, 5, v{vL}"); a(f"v_lshl_add_u32 v{t0}, v{t1}, 10, v{t0}")
        a(f"v_bfe_u32 v{t2}, v{vL}, 3, 2"); a(f"v_lshl_add_u32 v{vOw}, v{t2}, 8, v{t0}")
        a(f"v_and_b32 v{t0}, 31, v{vL}"); a(f"v_lshlrev_b32 v{t0}, 5, v{t0}"); a(f"v_lshl_add_u32 v{vSr}, v{t1}, 4, v{t0}")
        a(f"v_and_b32 v{t0}, 7, v{vL}"); a(f"v_lshlrev_b32 v{t0}, 5, v{t0}"); a(f"v_lshl_add_u32 v{t0}, v{kq_}, 2, v{t0}")
        a(f"v_bfe_u32 v{t2}, v{vL}, 3, 1"); a(f"v_lshl_add_u32 v{vQw}, v{t2}, 4, v{t0}")
        a(f"s_and_b32 s{sT0}, s{sW}, 1"); a(f"s_lshl_b32 s{sT0}, s{sT0}, 5"); a(f"s_add_u32 s{sT0}, s{sT0}, {WQ_LDS}")
        a(f"v_lshlrev_b32 v{t0}, 9, v{kq_}"); a(f"v_lshl_add_u32 v{t0}, v{r_}, 6, v{t0}"); a(f"v_lshl_add_u32 v{t0}, v{c_}, 3, v{t0}")
        a(f"v_add_u32 v{vWr}, s{sT0}, v{t0}")
        a(f"s_mul_i32 s{sA1}, s{sG}, {GSTRIDE}"); a(f"s_add_u32 s{sA1}, s{sA1}, {BASE}")
        a(f"s_sub_u32 s{oXR}, s{sA1}, s{sScrW}")
        a(f"s_lshl_b32 s{sT0}, s{sB}, 10"); a(f"s_add_u32 s{oQR}, s{oXR}, s{sT0}")
        a(f"s_lshl_b32 s{sT0}, s{sJQ}, 8"); a(f"s_add_u32 s{oQW}, s{sA1}, s{sT0}")
        a(f"s_lshl_b32 s{sT0}, s{sJ}, 5"); a(f"s_lshl_b32 s{sT1}, s{sW}, 2"); a(f"s_add_u32 s{sT0}, s{sT0}, s{sT1}")
        a(f"s_add_u32 s{oSR}, s{sA1}, {STOFF}"); a(f"s_add_u32 s{oST}, s{oSR}, s{sT0}")
        a(f"s_and_b32 s{sT1}, s{sJ}, 1"); a(f"s_lshl_b32 s{sT0}, s{sT1}, 10"); a(f"s_add_u32 s{oSR}, s{oSR}, s{sT0}")
        a(f"s_lshl_b32 s{sT0}, s{sW}, 12"); a(f"s_add_u32 s{sT0}, s{sT0}, {OOFF}")
        a(f"s_add_u32 s{oOW}, s{sA1}, s{sT0}"); a(f"s_add_u32 s{oOR}, s{oXR}, s{sT0}")
        a(f"s_lshl_b32 s{sT0}, s{sT1}, 14"); a(f"s_add_u32 s{oOR}, s{oOR}, s{sT0}")
        a(f"s_lshr_b32 s{sT0}, s{sJ}, 4"); a(f"s_lshl_b32 s{sT0}, s{sT0}, 11"); a(f"s_add_u32 s{oOW}, s{oOW}, s{sT0}")
        a(f"s_and_b32 s{sT0}, s{sJ}, 15"); a(f"s_lshl_b32 s{sT0}, s{sT0}, 4"); a(f"s_add_u32 s{oOW}, s{oOW}, s{sT0}")
        a(f"s_and_b32 s{oX3W}, s{sJ}, 30"); a(f"s_lshl_b32 s{oX3W}, s{oX3W}, 13"); a(f"s_lshl_b32 s{sT0}, s{sW}, 12"); a(f"s_add_u32 s{oX3W}, s{oX3W}, s{sT0}")
        a(f"s_lshl_b32 s{sT0}, s{sG}, 8"); a(f"s_add_u32 s{oX3W}, s{oX3W}, s{sT0}"); a(f"s_lshl_b32 s{sT0}, s{sT1}, 7"); a(f"s_add_u32 s{oX3W}, s{oX3W}, s{sT0}")
        a(f"s_add_u32 s{oX3W}, s{oX3W}, {BASE + X3OFF}")
        a(f"s_lshl_b32 s{oX3R}, s{sJ}, 13"); a(f"s_lshl_b32 s{sT0}, s{sW}, 11"); a(f"s_add_u32 s{oX3R}, s{oX3R}, s{sT0}")
        a(f"s_add_u32 s{oX3R}, s{oX3R}, {BASE + X3OFF}"); a(f"s_sub_u32 s{oX3R}, s{oX3R}, s{sScrW}")
        a(f"s_lshr_b32 s{sXN}, s{sJ}, 1"); a(f"s_lshl_b32 s{oXW}, s{sXN}, 10"); a(f"s_cmp_ge_u32 s{sXN}, 7")
        a(f"s_cselect_b32 s{sT0}, {(128 - 7168) & 0xffffffff}, 0"); a(f"s_add_u32 s{oXW}, s{oXW}, s{sT0}"); a(f"s_lshl_b32 s{sXN}, s{sXN}, 6")
        a(f"s_lshl_b32 s{sT1}, s{sT1}, 1"); a(f"s_and_b32 s{sT0}, s{sW}, 1"); a(f"s_add_u32 s{sT1}, s{sT1}, s{sT0}")
        a(f"s_lshl_b32 s{sT0}, s{sT1}, 5"); a(f"s_add_u32 s{oXW}, s{oXW}, s{sT0}"); a(f"s_mul_i32 s{sT0}, s{sT1}, 1792"); a(f"s_add_u32 s{sXN}, s{sXN}, s{sT0}")
        a(f"s_lshr_b32 s{sT1}, s{sW}, 1"); a(f"s_lshl_b32 s{sT0}, s{sT1}, 9"); a(f"s_add_u32 s{oXW}, s{oXW}, s{sT0}")
        a(f"s_lshl_b32 s{sT0}, s{sT1}, 5"); a(f"s_add_u32 s{sXN}, s{sXN}, s{sT0}")
        a(f"s_add_u32 s{oXW}, s{oXW}, s{sA1}"); a(f"s_add_u32 s{oXW}, s{oXW}, {XOFF}")
        a(f"s_add_u32 s{oXR}, s{oXR}, {(XOFF - LSTRIDE) & 0xffffffff}")
        a(f"s_add_u32 s{oSXR}, s{sA1}, {(SXOFF - LSTRIDE) & 0xffffffff}")
        a(f"s_and_b32 s{sT0}, s{sJ}, 30"); a(f"s_add_u32 s{sT0}, s{sT0}, s{sT1}"); a(f"s_lshl_b32 s{oSXW}, s{sT0}, 2")
        a(f"s_and_b32 s{sT0}, s{sJ}, 1"); a(f"s_lshl_b32 s{sT0}, s{sT0}, 9"); a(f"s_add_u32 s{oSXW}, s{oSXW}, s{sT0}")
        a(f"s_and_b32 s{sT0}, s{sW}, 1"); a(f"s_lshl_b32 s{sT0}, s{sT0}, 8"); a(f"s_add_u32 s{oSXW}, s{oSXW}, s{sT0}")
        a(f"s_add_u32 s{oSXW}, s{oSXW}, s{sA1}"); a(f"s_add_u32 s{oSXW}, s{oSXW}, {SXOFF}")
        if self.codepf:
            l = self.newlab("Lpf")
            a(f"s_lshl_b32 s{sT0}, s{sJ}, 2"); a(f"s_add_u32 s{sT0}, s{sT0}, s{sW}")
            a(f"s_cmp_ge_u32 s{sT0}, (L_codeend - {name} + 1023) / 1024"); a(f"s_cbranch_scc1 {l}")
            a(f"s_getpc_b64 s[34:35]")
            self.lab("L_pc")
            a(f"s_lshl_b32 s{sT0}, s{sT0}, 10"); a(f"s_sub_u32 s{sT0}, s{sT0}, L_pc - {name}")
            a(f"s_ashr_i32 s{sT1}, s{sT0}, 31")
            a(f"s_add_u32 s34, s34, s{sT0}"); a(f"s_addc_u32 s35, s35, s{sT1}")
            a(f"v_lshlrev_b32 v{t0}, 4, v{vL}")
            a(f"global_load_dword v{CS}, v{t0}, s[34:35]")
            self.lab(l)
        a(f"s_mov_b32 s{rWS+2}, {WS_SIZE}")
        for k in range(4): a(f"v_mov_b32 v{self.SENT+k}, -1")
        self.reset_leader()
        if self.P0 == 0: self.reset_general()
        rst = self.optional()
        a(f"s_mov_b32 s{sWarm}, 0"); a(f"s_mov_b32 s{sSENT2}, -1"); a(f"s_mov_b32 s{(rPF if 'plainq' in self.exp else rPS)+2}, {WS_SIZE}")
        self.tmp_srd(pAX, 7168)
        a(f"buffer_load_dword v{vXres}, v{vXn}, {srd(rTMP)}, s{sXN} offen")
        self.counted()
        self.stamp("setup_end", 7)

        self.thr_on = True
        order2 = [2, 3, 4, 5, 6, 7, 0, 1]
        groups = [("K", "A", m) for m in range(8)] + [("V", "A", m) for m in range(8)] + \
                 [("K", "B", m) for m in order2] + [("V", "B", m) for m in order2]
        extra = {i: [] for i in range(32)}
        if self.stagB:
            for k, w in enumerate([2, 3, 0, 1]): extra[self.WQB + (self.stagB * k) // 2].append(("WW", "B", w, k))
        if self.stag:
            order = [2, 3, 0, 1]
            for k, w in enumerate(order): extra[self.WQ1 + (self.stag * k) // 2].append(("WW", "A", w, 0))
            extra[self.WQ1 + (self.stag * 3) // 2].append(("X", "A", 0, 0))
        elif self.wqs:
            g0 = self.WQ1
            for q0 in range(0, 7, self.wqs):
                extra[g0].append(("WP", "A", q0, min(self.wqs, 7 - q0))); g0 += 1
            extra[g0 - 1].append(("X", "A", 0, 0))
        elif "nowq" not in self.exp and self.WQ1 >= 0: extra[self.WQ1].append(("WQ", "A", 0, 0))
        if self.WQ1 < 0: extra[self.XP].append(("X", "A", 0, 0))
        if self.wqsplit and not self.stagB: extra[self.WQB].append(("WQ", "B", 0, 0))
        if "nowo" not in self.exp:
            for g0, ab, sl in ((self.WOA, "A", self.woslot), (self.WO2, "B", 1)):
                if g0 < 0: continue
                if self.wos:
                    for k in range(0, 4, self.wos): extra[g0 + k // self.wos].append(("WS", ab, sl, k))
                else: extra[g0].append(("WO", ab, sl, 0))
        prog = []
        for gi, (kd, ab, m) in enumerate(groups):
            prog += [(kd, ab, m, i) for i in range(4) if not (kd == "K" and ab == "A" and (m, i) in kA)]
            prog += extra[gi]
        ops = {("K", "A") + k: v for k, v in kA.items()}
        copies = [([kA[(m, i)] for m in (2 * t, 2 * t + 1) for i in range(4)], (lambda t=t: self.k_copy(0, t)), ("K", "A", t))
                  for t in range(self.K0 // 8)]
        copied = set()
        st = {"phase": 0, "smark": 0}
        G = self.gaps
        def need(tags): return all(t in copied for t in tags)
        KA_all = [("K", "A", t) for t in range(4)]
        KB_all = [("K", "B", t) for t in range(4)]
        VA_all = [("V", "A", mp) for mp in range(4)]
        def drain_to(n):
            if len(self.stream) > n: self.wait_for(self.stream[-n - 1])
        def burst_done(): return len(self.stream) - st["smark"] >= self.Thi - self.Tlo
        def polled():
            st["smark"] = len(self.stream); self.T = self.Thi

        def chain():
            ph, pos = st["phase"], self.nops
            if "nochain" in self.exp and ph >= self.stop:
                if "wqmark" in st and len(self.stream) - st["wqmark"] >= self.Thi - self.Tlo: self.T = self.Tbase
                return False
            def nxt(): st["phase"] += 1; self.log.append((ph, pos))
            if ph == 0 and pos >= self.K0 + 3:
                l = self.newlab("Lnl")
                a(f"s_cmp_lg_u32 s{sB}, 4"); a(f"s_cbranch_scc1 {l}"); a(f"s_cmp_lg_u32 s{sW}, 2"); a(f"s_cbranch_scc1 {l}")
                a(f"s_waitcnt vmcnt({self.after(rst)})")
                a(f"s_lshl_b32 s{sT0}, s{sG}, 2"); a(f"s_add_u32 s{sT0}, s{sT0}, s{sS}"); a(f"s_lshl_b32 s{sT0}, s{sT0}, 2")
                a(f"v_mov_b32 v{T+4}, s{sT0}"); a(f"v_mov_b32 v{T+5}, 1")
                a("s_mov_b64 exec, 1")
                a(f"global_store_dword v{T+4}, v{T+5}, {sp(pDBG)} sc1")
                a("s_mov_b64 exec, -1")
                self.stamp("arrive", 9)
                self.lab(l)
                nxt(); return True
            if ph == 1 and pos >= self.P0:
                if "noreset" not in self.exp and self.P0: self.reset_general()
                st["rstx"] = self.optional()
                nxt(); return True
            if ph == 2 and pos >= self.P1:
                a(f"v_and_b32 v{T+6}, 3, v{vL}"); a(f"s_lshl_b32 s{sT0}, s{sG}, 2"); a(f"v_add_lshl_u32 v{T+6}, v{T+6}, s{sT0}, 2")
                a(f"global_load_dword v{T+7}, v{T+6}, {sp(pDBG)} sc1")
                st["op"] = self.counted()
                nxt(); return True
            if ph == 3:
                if "wqmark" not in st: return False
                if self.nat:
                    if not (ops[("WQ", "A", 0, 0)].done and st["op"].done): return False
                elif len(self.stream) - st["wqmark"] < self.Thi - self.Tlo: return False
                self.wait_for(ops[("WQ", "A", 0, 0)])
                self.wait_for(st["op"]); self.wait_for(st["rstx"])
                self.stamp("pre_gate", 10)
                self.lab("GATE_chk")
                a(f"v_cmp_eq_u32 vcc, 0, v{T+7}")
                a("s_cbranch_vccz GATE_ok")
                a(f"s_cmp_eq_u32 s{sTO}, 0"); a("s_cbranch_scc1 GATE_ok"); a(f"s_sub_u32 s{sTO}, s{sTO}, 1")
                a("s_sleep 4")
                a(f"global_load_dword v{T+7}, v{T+6}, {sp(pDBG)} sc1"); a("s_waitcnt vmcnt(0)"); a("s_branch GATE_chk")
                self.lab("GATE_ok")
                self.stamp("pre_bar0", 8)
                if "nobar" not in self.exp: a("s_barrier")
                l = self.if_wave(3)
                a(f"s_getreg_b32 s{sT0}, hwreg(HW_REG_XCC_ID, 0, 4)")
                a(f"v_mov_b32 v{T+4}, s{sT0}"); a(f"v_lshlrev_b32 v{T+5}, 2, v{vL}")
                a(f"s_lshl_b32 s{sT0}, s{sG}, 5"); a(f"s_add_u32 s{sT0}, s{sT0}, s{sJ}"); a(f"s_lshl_b32 s{sT0}, s{sT0}, 7")
                a(f"s_add_u32 s{sT0}, s{sT0}, {XCBASE}")
                a("s_mov_b32 exec_hi, 0")
                a(f"buffer_store_dword v{T+4}, v{T+5}, {srd(rWS)}, s{sT0} offen {'' if 'plainx' in self.exp else self.ppol}")
                a("s_mov_b32 exec_hi, -1")
                self.lab(l)
                l = self.newlab("Lnq"); l3 = self.newlab("Ldn")
                if self.wqsplit: a(f"s_cmp_lg_u32 s{sQM}, 0")
                else: a(f"s_cmp_eq_u32 s{sQM}, 2")
                a(f"s_cbranch_scc1 {l}")
                if "noqp" in self.exp: a(f"s_branch {l}")
                self.call("CSUM")
                l2 = self.if_qm(0)
                self.qp_preload()
                self.x_stats()
                self.call("QP_go")
                self.lab(l2)
                a(f"s_branch {l3}")
                self.lab(l)
                if self.iwarm:
                    a(f"s_mov_b32 s{sWarm}, 1"); a(f"s_mov_b32 s{rWS+2}, 0"); a(f"s_mov_b32 s{sSENT2}, 0")
                    l4 = self.if_wave(2); l5 = self.newlab("Ldn")
                    self.call("PV2"); self.call("WO_poll"); a(f"s_branch {l5}")
                    self.lab(l4)
                    self.call("QP_first"); self.call("H3_poll"); self.call("ATT_poll")
                    self.lab(l5)
                    a(f"s_mov_b32 s{sWarm}, 0"); a(f"s_mov_b32 s{rWS+2}, {WS_SIZE}"); a(f"s_mov_b32 s{sSENT2}, -1")
                    a("s_waitcnt vmcnt(0) lgkmcnt(0)")
                self.lab(l3)
                for k in range(4): a(f"v_mov_b32 v{self.SENT+k}, -1")
                a(f"v_and_b32 v{T}, 7, v{vL}"); a(f"v_mul_u32_u24 v{T}, 992, v{T}"); a(f"v_add_u32 v{vQw}, v{vQw}, v{T}")
                a(f"s_mul_i32 s{sT0}, s{sJQ}, 224"); a(f"s_sub_u32 s{oQW}, s{oQW}, s{sT0}")
                self.stamp("bar0", 1)
                self.T = self.Tbase
                nxt(); return True
            if ph == 4 and pos >= self.P2 and need(KA_all):
                a(f"s_mov_b32 s{sPH}, {Q1_I}"); a(f"s_mov_b32 s{sAge}, 0")
                st["dyn1"] = True
                st["phase"] = 6; self.log.append((ph, pos)); return True
            if ph == 6 and ("V", "A", 7, 3) in ops:
                polled()
                self.T = self.Tbase; st["smark"] -= self.Thi - self.Tlo - self.PVB
                nxt(); return True
            if ph == 7 and burst_done() and not need(VA_all):
                self.wait_for(ops[("V", "A", 7, 3)])
                return True
            if ph == 7 and need(VA_all):
                st["dyn1"] = False
                l = self.newlab("Lq1")
                a(f"s_cmp_eq_u32 s{sPH}, {DONE}"); a(f"s_cbranch_scc1 {l}")
                a(f"s_call_b64 {sp(sRET2)}, Q1_poll")
                self.lab(l)
                self.lg0()
                self.stamp("pre_pv1", 11)
                a(f"v_and_b32 v{T+5}, 0xffffff6f, v{vPr}"); a(f"v_and_b32 v{T+3}, 0xfffff000, v{vPr}")
                if self.wqsplit: assert ops[("WQ", "B", 0, 0)].done
                self.call("PV")
                if self.wqsplit:
                    l = self.if_qm(1); self.call("CSUM"); self.lab(l)
                a(f"v_and_b32 v{T+6}, 7, v{vL}"); a(f"v_lshlrev_b32 v{T+6}, 2, v{T+6}")
                a(f"global_load_dword v{T+7}, v{T+6}, {sp(pDBG)} offset:128 sc1"); self.counted()
                a(f"s_mov_b32 s{sPH}, {WO_I}"); a(f"s_mov_b32 s{sAge}, {G[0]}"); a(f"s_mov_b32 s{sKBok}, 0"); a(f"s_mov_b32 s{sWOok}, 0")
                l = self.newlab("Llt28")
                a(f"s_cmp_lt_u32 s{sJ}, 28"); a(f"s_cbranch_scc1 {l}")
                self.call("ADV")
                self.to_qp(G[0] + G[1] + G[2] + 3 * self.A)
                self.lab(l)
                st["dyn"] = True
                self.T = self.Tbase
                nxt(); return True
            return False
        LASTPH = 7

        def service():
            made = True
            while made:
                made = False
                for c in list(copies):
                    nd, fn, tag = c
                    if all(o.done for o in nd):
                        fn(); copied.add(tag); copies.remove(c); made = True
                if chain(): made = True

        pi = 0
        while pi < len(prog):
            it = prog[pi]; pi += 1
            kind, ab, m, i = it
            if self.T2 and len(self.stream) >= 4 * self.G2: self.T = self.T2
            if kind == "K":
                ops[it] = self.k_dma(rKA if ab == "A" else rKB, m, i)
                if i == 3 and (m & 1) and not (ab == "A" and m // 2 < self.K0 // 8):
                    t = m // 2
                    copies.append(([ops[("K", ab, mm, ii)] for mm in (2 * t, 2 * t + 1) for ii in range(4)],
                                   (lambda b=(0 if ab == "A" else 128), t=t: self.k_copy(b, t)), ("K", ab, t)))
            elif kind == "V":
                ops[it] = self.v_dma(rVA if ab == "A" else rVB, m, i)
                if i == 3 and (m & 1) and ab == "A":
                    copies.append(([ops[("V", ab, mm, ii)] for mm in (m - 1, m) for ii in range(4)], (lambda mp=m // 2: self.v_copy(mp)), ("V", ab, m // 2)))
            elif kind == "WO":
                ops[it] = self.wo_dma(pWOA if ab == "A" else pWOB, m)
                copies.append(([ops[it]], (lambda ab=ab, m=m: self.wo_copy_sel(ab, m)), ("WO", ab)))
            elif kind == "WS":
                ops[it] = self.wo_dma(pWOA if ab == "A" else pWOB, m, list(range(i, i + self.wos)))
                if i + self.wos == 4: copies.append(([ops[it]], (lambda ab=ab, m=m: self.wo_copy_sel(ab, m)), ("WO", ab)))
            elif kind == "WQ":
                if "nodrain" not in self.exp and not self.nat: drain_to(self.Tlo)
                if "nox" not in self.exp and ab == "A":
                    l = self.if_qm(0); self.x_first(); self.lab(l)
                ops[it] = self.wq_all(self.wqsplit and (0 if ab == "A" else 1))
                if ab == "A":
                    st["wqmark"] = len(self.stream)
                    if not self.nat: self.T = self.Thi
            elif kind == "WW":
                l = self.if_wave(m)
                n0, lv = self.nops, list(self.live)
                self.wq_all(1 if ab == "B" else None)
                self.nops, self.live = n0, lv
                self.lab(l)
                ops[("WQ", "B", 0, 0)] = self.optional()
            elif kind == "WP":
                self.wq_part(m, i)
            elif kind == "X":
                l = self.if_qm(0); self.x_first(); self.lab(l)
                ops[("WQ", "A", 0, 0)] = self.optional(); st["wqmark"] = len(self.stream); self.T = self.Thi
            service()
            if st.get("dyn") and self.WOA < 0 and not st.get("woq") and kind in "KV" and i == 3:
                if "nowo" not in self.exp: prog[pi:pi] = [("WO", "A", 0, 0)] + ([("WO", "B", 1, 0)] if self.WO2 < 0 else [])
                else: copied.update([("WO", "A"), ("WO", "B")])
                st["woq"] = True
            if st.get("dyn1") and kind in "KV" and i in (1, 3):
                a(f"s_call_b64 {sp(sRET2)}, HND")
            if st.get("dyn"):
                if ("K", "B", 3) in copied and not st.get("kb1"): a(f"s_mov_b32 s{sKBok}, 1"); st["kb1"] = True
                if need(KB_all) and not st.get("kb2"): a(f"s_mov_b32 s{sKBok}, 2"); st["kb2"] = True
                if need([("WO", "A")]) and not st.get("wok"):
                    a(f"s_mov_b32 s{sWOok}, 1"); st["wok"] = True; self.log.append(("wo_ok", self.nops))
                if kind in "KV" and i in (1, 3) and not self.nohnd:
                    if not st.get("nh"): self.log.append(("first_hnd", self.nops))
                    a(f"s_call_b64 {sp(sRET2)}, HND"); st["nh"] = True
            if self.posst and i == 3 and kind in "KV":
                st["nst"] = st.get("nst", 0) + 1
                self.stamp(f"s{len(self.stream):03d}_{kind}{ab}{m}_ph{st['phase']}", 16 + st["nst"])
        self.log.append(("issue_end", self.nops))
        self.stamp("issue_end", 3)
        if "nochain" in self.exp:
            a("s_waitcnt vmcnt(0)"); self.stamp("stream_end", 4); a("s_branch L_fin")
            pv2w = [(1, None), (2, None), (3, None), (0, 0)]
        else:
            assert st["phase"] > LASTPH and need(KB_all) and not copies
            self.lg0()
            self.warm_loads(D + 14, vKb)
            self.finish_chain()
            self.stamp("chain_done", 12)
            assert need([("WO", "B")])
            a(f"s_mov_b32 s{sStream}, 0")
            pv2w = []
            for mp in (1, 2, 3, 0):
                o = ops[("V", "B", 2 * mp + 1, 3)]
                pv2w.append((mp, None if o.done else self.after(o)))
            a("s_branch PV2")
        self.lab("L_fin")
        if self.stamps:
            self.stamp("end", 5)
            a("s_memtime s[34:35]"); a("s_waitcnt lgkmcnt(0)"); a(f"v_writelane_b32 v{vST}, s34, 14")
            a(f"s_lshl_b32 s{sT0}, s2, 2"); a(f"s_add_u32 s{sT0}, s{sT0}, s{sW}"); a(f"s_lshl_b32 s{sT0}, s{sT0}, 8")
            a(f"s_add_u32 s{sT0}, s{sT0}, {STAMP_OFF}"); a(f"s_add_u32 s34, s{pWS}, s{sT0}"); a(f"s_addc_u32 s35, s{pWS+1}, 0")
            a(f"v_lshlrev_b32 v{T}, 2, v{vL}")
            a(f"v_writelane_b32 v{vST}, s{sTO}, 15")
            a(f"global_store_dword v{T}, v{vST}, s[34:35]")
        self.lab("L_end")
        a("s_endpgm")
        self.r_handler(); self.r_pv2(pv2w); self.r_loop(); self.r_vcopy(); self.r_cs()
        for l, go in self.tailstubs:
            self.lab(l); a(f"s_mov_b32 s{sTO}, 0"); a(f"s_branch {go}")
        self.lab("L_codeend")
        a("s_endpgm")
        a(".fill 256, 4, 0xBF800000")
        self.L += kernel_desc(name, 512, 102, 256)
        return "\n".join(self.L) + "\n"

    def wo_copy_sel(self, ab, slot):
        self.wo_copy(WOC if ab == "A" else WON, slot)


if __name__ == "__main__":
    import argparse, json
    ap = argparse.ArgumentParser()
    ap.add_argument("-o", default="main.s")
    ap.add_argument("kv", nargs="*")
    x = ap.parse_args()
    kw = {}
    for kv in x.kv:
        k, v = kv.split("=") if "=" in kv else (kv, "1")
        if k == "gaps": kw[k] = tuple(int(t) for t in v.split(","))
        elif k in ("exp", "wpol", "rpol", "ppol", "qpol", "fpol"): kw[k] = v.replace("+", " ")
        else: kw[k] = int(v)
    if kw.get("posst"): kw["stamps"] = 1
    g = Gen(**kw)
    s = g.build()
    open(x.o, "w").write(s)
    print("chain log:", g.log)
    if g.stamps: json.dump(g.stamp_names, open(x.o + ".stamps.json", "w"))
```

```python
import sys
from gen_common import *

WQ_LDS = 131072
SCR = WQ_LDS + 28672
LDS_TOTAL = 163840
BASE = 0x100000
GSTRIDE = 53376
QOFF, OOFF, STOFF, XOFF, SXOFF = 0, 8320, 41088, 43136, 50304
X3OFF = 8 * GSTRIDE
LSTRIDE = X3OFF + 229376
XCBASE = BASE + 4 * LSTRIDE
WS_SIZE = XCBASE + 8 * 4096
STAMP_OFF = 0x1000000

sRET2 = 0
sW, sG, sJ, sB, sS = 3, 4, 5, 6, 7
pAX, pKA, pVA, pWQA, pWOA, pKB, pVB, pWQB, pWOB, pOUT, pDBG, pWS = 8, 10, 12, 14, 16, 20, 22, 24, 26, 28, 30, 32
sJQ, sQM = 18, 19
rPF = 20
rKA, rVA, rKB, rVB, rWS, rTMP = 36, 40, 44, 48, 52, 56
sPH, sAge, sKBok, sWOok = 36, 37, 38, 39
sThr = 7
sRET = 60
sRing, sScrW = 62, 63
sM = 64
sT0, sT1, sTO, sL = 72, 73, 74, 75
oQR, oST, oOW, oOR, oSR, oX3W, oX3R, oXW, oXR, oQW = range(76, 86)
oSXW, oSXR = 90, 91
OFFS = list(range(76, 86)) + [90, 91]
mP, mX = 86, 88
rPS = 92
sC, sXN, sSB, sSI = 96, 97, 98, 99
sStream, sONE = 100, 101
sSENT1, sSENT2, sA0, sA1 = 10, 11, 12, 13
WO_I, WO_C, H3_I, H3_C, QP_I, QP_C, AT_I, AT_C, DONE, Q1_C, Q1_I = range(11)

vL, vKb, vVb0, vVb1, vKr0, vVr0, vScr, vQr, vPw, vPr, vOw, vQw, vX3w, vXw, vXn, vWr, vXres, vIdx, vSr, vST = range(20)
vSink = vST + 0
T = 20
CS = 28
S = 32
D = 48
QP = 64
WOC, WON = 96, 112
VAT = 128

CSCALE = 0x3DB8AA3B
ONES = 0x3F803F80


def srd(r): return f"s[{r}:{r+3}]"
def sp(r): return f"s[{r}:{r+1}]"
def vr(r, n=4): return f"v[{r}:{r+n-1}]"
def ar(r, n=4): return f"a[{r}:{r+n-1}]"
DPP = "row_mask:0xf bank_mask:0xf"
MFMA = "v_mfma_f32_16x16x32_bf16"
SMF = "v_smfmac_f32_16x16x64_bf16"
ODD = "0xaaaaaaaa"


class Op:
    def __init__(self, pos, counted): self.pos, self.counted, self.done = pos, counted, False


class Gen:
    def __init__(self, **k):
        d = dict(T=8, Thi=12, Tlo=4, K0=8, wpol="nt", stamps=False, posst=False, slow=False, P0=18, P1=30, P2=58,
                 gaps=(2, 3, 2, 1), hold=3, WQ1=4, WO2=-1, warm=True, codepf=False, iwarm=False, TO=300000, exp="", Ar=1, stag=0, stearly=0, qp2=0, olay=0, sxl=0, qrun=0, LR=28, tlb=0, wos=0, qpblk=1, nohnd=0, stagB=0, T2=14, G2=24, fpol='', woslot=0, wqs=0, womid=True, h3d=6, Tr=2, bal=False, ppol='sc1', qpol='sc1', nat=False, PVB=8, WOA=12, wqsplit=False, WQB=10, XP=3, rpol='sc1 nt', stop=0, pipe=False)
        d.update(k)
        self.__dict__.update(d)
        self.Tbase = self.T
        self.A = (self.Thi - self.Tlo + 1) // 2
        self.L = []
        self.nlab = 0
        self.stamp_names = {}
        self.nops = 0
        self.live = []
        self.lg_epoch = 0
        self.slot_epoch = [-1] * 8
        self.slot_pending = [False] * 8
        self.log = []
        self.stream = []
        self.thr_on = False
        self.tailstubs = []
        self.sink = CS + 3 if False else (T + 7 if False else None)

    def a(self, s): self.L.append("    " + s)
    def lab(self, s): self.L.append(s + ":")
    def newlab(self, p="L"):
        self.nlab += 1
        return f"{p}_{self.nlab}"

    def stamp(self, name, idx, layered=False):
        if not self.stamps: return
        if self.posst and layered: return
        a = self.a
        a("s_memrealtime s[34:35]")
        if layered:
            a(f"s_add_u32 s{sSI}, s{sSB}, {idx}")
            for L in range(4): self.stamp_names[16 + L * 12 + idx] = f"L{L+1}.{name}"
        else:
            a(f"s_mov_b32 s{sSI}, {idx}")
            self.stamp_names[idx] = name
        a(f"s_lshl_b64 exec, 1, s{sSI}")
        a("s_waitcnt lgkmcnt(0)")
        a(f"v_mov_b32 v{vST}, s34")
        a("s_mov_b64 exec, -1")

    def counted(self):
        o = Op(self.nops, True); self.nops += 1; self.live.append(o); return o
    def optional(self):
        o = Op(self.nops, False); self.live.append(o); return o
    def after(self, o): return self.nops - 1 - o.pos if o.counted else self.nops - o.pos
    def wait_vm(self, k):
        assert k <= 63
        self.a(f"s_waitcnt vmcnt({k})")
        for o in self.live:
            if self.after(o) >= k: o.done = True
        self.live = [o for o in self.live if not o.done]
    def wait_for(self, o):
        if not o.done: self.wait_vm(self.after(o))
    def throttle(self):
        if self.thr_on and len(self.stream) >= self.T: self.wait_for(self.stream[-self.T])
    def streamop(self):
        o = self.counted(); self.stream.append(o); return o
    def lg0(self):
        self.a("s_waitcnt lgkmcnt(0)")
        self.lg_epoch += 1
    def slot_free(self, m):
        assert not self.slot_pending[m], m
        self.slot_pending[m] = True
        if self.slot_epoch[m] == self.lg_epoch: self.lg0()
    def slot_read(self, m):
        self.slot_epoch[m] = self.lg_epoch
        self.slot_pending[m] = False

    def pub(self, op, data, addr, off, imm=""):
        self.a(f"{op} {data}, v{addr}, {srd(rPF)}, s{off} offen {imm} {self.fpol}")
        if "nodual" in self.exp and off != oQW: return
        self.a(f"{op} {data}, v{addr}, {srd(rPS)}, s{off} offen {imm} {self.ppol}")

    def budget(self, go):
        a = self.a
        l = self.newlab("Lbud")
        a(f"s_sub_u32 s{sTO}, s{sTO}, 1"); a(f"s_cbranch_scc1 {l}")
        self.tailstubs.append((l, go))
    def call(self, target): self.a(f"s_call_b64 {sp(sRET)}, {target}")
    def ret_if_stream(self):
        self.a(f"s_cmp_lg_u32 s{sStream}, 0"); self.a("s_cbranch_scc1 RET")

    def check(self, regs, acc, waits=None, sent=f"s{sSENT2}"):
        a = self.a
        first = True
        for n, (r, c) in enumerate(regs):
            if waits is not None: a(f"s_waitcnt vmcnt({waits[n]})")
            rs = list(range(r, r + c))
            if first:
                a(f"v_max3_u32 v{acc}, v{rs[0]}, v{rs[1]}, v{rs[2]}"); rs = rs[3:]
                first = False
            while len(rs) >= 2:
                a(f"v_max3_u32 v{acc}, v{acc}, v{rs[0]}, v{rs[1]}"); rs = rs[2:]
            if rs: a(f"v_max_u32 v{acc}, v{acc}, v{rs[0]}")
        a(f"v_cmp_eq_u32 vcc, {sent}, v{acc}")

    def pipelined(self, name, nsets, issue, regs, go, acc):
        a = self.a
        nl = len(regs(0))
        self.lab(f"{name}_poll")
        for k in range(nsets): issue(k)
        self.lab(f"{name}_loop")
        for k in range(nsets):
            w0 = nl * nsets - 1
            self.check(regs(k), acc, waits=[w0 - n for n in range(nl)])
            a(f"s_cbranch_vccz {name}_h{k}")
            if k == nsets - 1: self.budget(f"{name}_h{k}")
            issue(k)
        a(f"s_branch {name}_loop")
        for k in list(range(1, nsets)) + [0]:
            self.lab(f"{name}_h{k}")
            go(k)
            if k: a(f"s_branch {name}_go2")
        self.lab(f"{name}_go2")

    wo_st, wo_o = [(QP + 16, 4)], [(QP, 4), (QP + 4, 4), (QP + 8, 4), (QP + 12, 4)]
    def wo_issue_o(self):
        for n in range(4):
            self.a(f"buffer_load_dwordx4 {vr(QP+4*n)}, v{vXn if self.olay else vScr}, {srd(rWS)}, s{oOR} offen offset:{1024*n} sc1")
    def wo_issue(self):
        self.a(f"buffer_load_dwordx4 {vr(QP+16)}, v{vSr}, {srd(rWS)}, s{oSR} offen sc1")
        self.wo_issue_o()
    def wo_scales(self, mid=None):
        a = self.a
        Lj, M, Mb, e, bp = QP + 16, QP + 20, QP + 21, QP + 22, T + 1
        a(f"v_permlane32_swap_b32 v{Lj+3}, v{M}")
        a(f"v_add_f32 v{Lj}, v{Lj}, v{Lj+1}"); a(f"v_add_f32 v{Lj+2}, v{Lj+2}, v{Lj+3}")
        a(f"v_max_f32_dpp v{Mb}, v{M}, v{M} quad_perm:[1,0,3,2] {DPP}")
        a(f"v_add_f32 v{Lj}, v{Lj}, v{Lj+2}"); a(f"v_and_b32 v{bp}, 48, v{vL}")
        a(f"v_max_f32_dpp v{Mb}, v{Mb}, v{Mb} quad_perm:[2,3,0,1] {DPP}")
        a(f"v_sub_f32 v{e}, v{M}, v{Mb}"); a(f"v_exp_f32 v{e}, v{e}")
        if mid and self.womid == 1: mid()
        a(f"s_mul_i32 s{sT0}, s{sW}, 1020")
        a(f"v_mul_f32 v{Lj}, v{Lj}, v{e}")
        a(f"v_subrev_u32 v{T+2}, s{sT0}, v{vScr}")
        a("s_nop 0")
        a(f"v_add_f32_dpp v{Lj}, v{Lj}, v{Lj} quad_perm:[1,0,3,2] {DPP}")
        a("s_nop 1")
        a(f"v_add_f32_dpp v{Lj}, v{Lj}, v{Lj} quad_perm:[2,3,0,1] {DPP}")
        if mid and self.womid == 2: mid()
        a(f"v_rcp_f32 v{Lj}, v{Lj}"); a("s_nop 0"); a(f"v_mul_f32 v{e}, v{e}, v{Lj}")
        for rt in range(2):
            for r in range(4):
                a(f"ds_bpermute_b32 v{QP+24+4*rt+r}, v{bp}, v{e} offset:{(16*rt+r)*4}")
        if mid and self.womid == 3: mid()
    def r_wo(self):
        a = self.a
        self.lab("WO_poll")
        if self.womid:
            a(f"buffer_load_dwordx4 {vr(QP+16)}, v{vSr}, {srd(rWS)}, s{oSR} offen sc1")
        else: self.wo_issue()
        self.lab("WO_w")
        self.check(self.wo_st, T + 0, waits=[0 if self.womid else 4], sent=f"s{sSENT1}")
        a("s_cbranch_vccnz WO_r1")
        self.lab("WO_sc")
        self.wo_scales(self.wo_issue_o if self.womid else None)
        self.lab("WO_o")
        self.check(self.wo_o, T + 0, waits=[3, 2, 1, 0])
        a("s_cbranch_vccnz WO_r2")
        self.lab("WO_go2")
        self.stamp("wo_go", 0, True)
        for rt in range(2):
            for i in range(2):
                for ct in range(2):
                    d = D + 8 * rt + 4 * ct
                    a(f"{MFMA} {vr(d)}, {vr(QP+8*rt+4*i)}, {vr(WOC+8*i+4*ct)}, {'0' if i == 0 else vr(d)}")
        a("s_waitcnt lgkmcnt(0)"); a("s_nop 1")
        for rt in range(2):
            c = QP + 24 + 4 * rt
            d0, d1 = D + 8 * rt, D + 8 * rt + 4
            a(f"v_pk_mul_f32 {vr(d0,2)}, {vr(d0,2)}, {vr(c,2)}")
            if rt == 0: a("s_nop 0")
            a(f"v_pk_mul_f32 {vr(d1,2)}, {vr(d1,2)}, {vr(c,2)}")
            a(f"v_pk_fma_f32 {vr(d0,2)}, {vr(d0+2,2)}, {vr(c+2,2)}, {vr(d0,2)}")
            a(f"v_pk_fma_f32 {vr(d1,2)}, {vr(d1+2,2)}, {vr(c+2,2)}, {vr(d1,2)}")
            a(f"v_add_f32 v{d0}, v{d0}, v{d0+1}"); a(f"v_add_f32 v{d1}, v{d1}, v{d1+1}")
            a(f"ds_write_b32 v{T+2}, v{d0} offset:{(2*rt)*1024}")
            a(f"ds_write_b32 v{T+2}, v{d1} offset:{(2*rt+1)*1024}")
        a("s_waitcnt lgkmcnt(0)")
        a("s_barrier")
        a(f"ds_read_b128 {vr(S)}, v{vScr}")
        a("s_waitcnt lgkmcnt(0)")
        a(f"v_pk_add_f32 {vr(S,2)}, {vr(S,2)}, {vr(S+2,2)}"); a(f"v_add_f32 v{S}, v{S}, v{S+1}")
        a(f"v_min_u32 v{S}, -2, v{S}")
        a(f"buffer_store_dword v{S}, v{vX3w}, {srd(rWS)}, s{oX3W} offen sc1")
        self.stamp("x3_pub", 1, True)
        self.ret_if_stream()
    def r_wo_stubs(self):
        a = self.a
        self.lab("WO_r1"); self.budget("WO_sc"); a("s_branch WO_poll")
        self.lab("WO_r2"); self.budget("WO_go2"); self.wo_issue_o(); a("s_branch WO_o")

    def h3_regs(self, k): return [(QP + 8 * k, 4), (QP + 8 * k + 4, 4)]
    def h3_issue(self, k=0):
        self.a(f"buffer_load_dwordx4 {vr(QP+8*k)}, v{vScr}, {srd(rWS)}, s{oX3R} offen sc1")
        self.a(f"buffer_load_dwordx4 {vr(QP+8*k+4)}, v{vScr}, {srd(rWS)}, s{oX3R} offen offset:1024 sc1")
    def r_h3(self):
        a = self.a
        A = S
        def head(k):
            a(f"v_pk_add_f32 {vr(A,2)}, {vr(QP+8*k,2)}, {vr(QP+8*k+4,2)}")
            a(f"v_pk_add_f32 {vr(A+2,2)}, {vr(QP+8*k+2,2)}, {vr(QP+8*k+6,2)}")
        self.pipelined("H3", 3 if self.pipe else 1, self.h3_issue, self.h3_regs, head, T + 0)
        self.stamp("h3_go", 2, True)
        a(f"v_lshlrev_b32 v{T+4}, 16, v{vXres}")
        a(f"v_and_b32 v{T+5}, 0xffff0000, v{vXres}")
        a(f"v_permlane32_swap_b32 v{A}, v{A+2}")
        a(f"v_permlane32_swap_b32 v{A+1}, v{A+3}")
        a(f"v_pk_add_f32 {vr(A,2)}, {vr(A,2)}, {vr(A+2,2)}")
        a(f"s_cmp_eq_u32 s{sL}, 3"); a("s_nop 0")
        a(f"v_add_f32_dpp v{A}, v{A}, v{A} row_ror:8 {DPP}")
        a(f"v_add_f32_dpp v{A+1}, v{A+1}, v{A+1} row_ror:8 {DPP}")
        a(f"v_mov_b64 {vr(A+2,2)}, {vr(A,2)}")
        a("s_nop 1")
        a(f"v_permlane16_swap_b32 v{A}, v{A+2}")
        a(f"v_permlane16_swap_b32 v{A+1}, v{A+3}")
        a(f"v_pk_add_f32 {vr(A,2)}, {vr(A,2)}, {vr(A+2,2)}")
        a(f"v_cvt_pk_bf16_f32 v{A+1}, v{A}, v{A+1}")
        a(f"v_lshlrev_b32 v{A}, 16, v{A+1}")
        a(f"v_and_b32 v{A+1}, 0xffff0000, v{A+1}")
        a(f"v_pk_add_f32 {vr(A,2)}, {vr(A,2)}, {vr(T+4,2)}")
        a(f"v_cvt_pk_bf16_f32 v{vXres}, v{A}, v{A+1}")
        a(f"s_mov_b64 exec, {sp(mX)}")
        a(f"v_min_u32 v{A}, -2, v{vXres}")
        a("s_cbranch_scc1 H3_final")
        self.pub("buffer_store_dword", f"v{A}", vXw, oXW)
        a("s_mov_b64 exec, -1")
        self.stamp("x_pub", 3, True)
        a(f"v_lshlrev_b32 v{A+2}, 16, v{vXres}"); a(f"v_and_b32 v{A+3}, 0xffff0000, v{vXres}")
        a(f"v_add_f32 v{A}, v{A+2}, v{A+3}"); a(f"v_mul_f32 v{A+1}, v{A+2}, v{A+2}"); a(f"v_fmac_f32 v{A+1}, v{A+3}, v{A+3}")
        a(f"v_lshrrev_b32 v{A+2}, 5, v{vL}"); a(f"v_bfe_u32 v{A+3}, v{vL}, 2, 1")
        a(f"v_permlane32_swap_b32 v{A}, v{A+1}")
        a(f"v_add_f32 v{A}, v{A}, v{A+1}")
        a(f"v_lshlrev_b32 v{A+2}, {2 if self.sxl else 10}, v{A+2}"); a(f"v_lshl_add_u32 v{A+2}, v{A+3}, {3 if self.sxl else 7}, v{A+2}")
        a(f"v_add_f32_dpp v{A}, v{A}, v{A} quad_perm:[1,0,3,2] {DPP}")
        a("s_mov_b32 vcc_lo, 0x11"); a("s_mov_b32 vcc_hi, 0x11")
        a(f"v_add_f32_dpp v{A}, v{A}, v{A} quad_perm:[2,3,0,1] {DPP}")
        a("s_mov_b64 exec, vcc")
        a(f"v_min_u32 v{A}, -2, v{A}")
        self.pub("buffer_store_dword", f"v{A}", A + 2, oSXW)
        a("s_mov_b64 exec, -1")
    def r_h3_final(self):
        a = self.a
        self.lab("H3_final")
        a(f"buffer_store_dword v{vXres}, v{vKb if self.olay else vXn}, {srd(rTMP)}, s{sXN} offen")
        a("s_mov_b64 exec, -1")
        self.stamp("x_pub", 3, True)
        a("s_branch L_fin")

    def advance(self):
        for o in OFFS: self.a(f"s_add_u32 s{o}, s{o}, {LSTRIDE}")
        self.a(f"s_add_u32 s{sL}, s{sL}, 1")
        if self.stamps: self.a(f"s_add_u32 s{sSB}, s{sSB}, 12")

    qp_regs = [(QP + 4 * i, 4) for i in range(7)] + [(T, 4), (T + 4, 4)]
    WSLOT = [S, S + 4, S + 8, S + 12, D + 8, D + 12, QP + 28]
    WORDER = [k for i in range(7) for k in (i, 7 + i)]
    def w_read(self, k, dst):
        self.a(f"ds_read_b64_tr_b16 {vr(dst,2)}, v{vWr} offset:{k*2048}")
        self.a(f"ds_read_b64_tr_b16 {vr(dst+2,2)}, v{vWr} offset:{k*2048+256}")
    def qp_preload(self):
        for n in range(7): self.w_read(self.WORDER[n], self.WSLOT[n])
    def qp_prep(self):
        a = self.a
        if self.sxl:
            a(f"v_lshlrev_b32 v{D+1}, 3, v{vL}"); a(f"v_mov_b64 {vr(T+6,2)}, 0")
            return
        a(f"v_and_b32 v{D+1}, 7, v{vL}"); a(f"v_lshlrev_b32 v{D+1}, 7, v{D+1}"); a(f"v_lshrrev_b32 v{D+2}, 3, v{vL}")
        a(f"v_lshl_add_u32 v{D+1}, v{D+2}, 4, v{D+1}")
        for k in range(4): a(f"v_mov_b64 {vr(T+2*k,2)}, 0")
    def qp_issue(self):
        a = self.a
        a(f"s_add_u32 s{sA1}, s{oXR}, 4096")
        for i in range(7):
            a(f"buffer_load_dwordx4 {vr(QP+4*i)}, v{vScr}, {srd(rWS)}, s{oXR if i < 4 else sA1} offen offset:{1024*(i%4)} sc1")
        self.qp_issue_sx()
    def qp_issue_sx(self):
        a = self.a
        if self.sxl:
            for k in range(4):
                if k == 3: a("s_mov_b32 exec_hi, 0")
                a(f"buffer_load_dwordx2 {vr(T+2*k,2)}, v{D+1}, {srd(rWS)}, s{oSXR} offen offset:{512*k} sc1")
            a("s_mov_b32 exec_hi, -1")
            return
        a("s_mov_b32 exec_hi, 0xffffff")
        a(f"buffer_load_dwordx4 {vr(T)}, v{D+1}, {srd(rWS)}, s{oSXR} offen sc1")
        a(f"buffer_load_dwordx4 {vr(T+4)}, v{D+1}, {srd(rWS)}, s{oSXR} offen offset:1024 sc1")
        a("s_mov_b32 exec_hi, -1")
    def x_stats(self):
        a = self.a
        for k in range(4): a(f"v_mov_b64 {vr(T+2*k,2)}, 0")
        a(f"s_mov_b32 s{sT0}, {ONES}")
        for x in range(QP, QP + 28):
            if self.sxl: a(f"v_dot2c_f32_bf16 v{T+2*(x&1)}, s{sT0}, v{x}"); a(f"v_dot2c_f32_bf16 v{T+1+2*(x&1)}, v{x}, v{x}")
            else: a(f"v_dot2c_f32_bf16 v{T+(x&1)}, s{sT0}, v{x}"); a(f"v_dot2c_f32_bf16 v{T+4+(x&1)}, v{x}, v{x}")
        a("s_nop 2")
    def r_qp(self):
        a = self.a
        self.lab("QP_first")
        self.qp_prep()
        self.qp_issue()
        self.qp_preload()
        self.lab("QP_chk")
        if self.qp2:
            self.check(self.qp_regs[:7], D, waits=[8, 7, 6, 5, 4, 3, 2])
            a("s_cbranch_vccnz QP_r")
            self.lab("QP_chk2")
            self.check(self.qp_regs[7:], D, waits=[1, 0])
            a("s_cbranch_vccnz QP_r2")
        else:
            self.check(self.qp_regs, D, waits=[10, 9, 8, 7, 6, 5, 4, 2, 0] if self.sxl else [8, 7, 6, 5, 4, 3, 2, 1, 0])
            a("s_cbranch_vccnz QP_r")
        self.lab("QP_go")
        self.stamp("qp_go", 4, True)
        a("s_waitcnt lgkmcnt(0)")
        s1, s2, t = T + 0, T + 4, T + 1
        if self.sxl: s2 = T + 1
        sh = [f"v_pk_add_f32 {vr(T,2)}, {vr(T,2)}, {vr(T+2,2)}", f"v_pk_add_f32 {vr(T+4,2)}, {vr(T+4,2)}, {vr(T+6,2)}"] + \
             ([f"v_pk_add_f32 {vr(T,2)}, {vr(T,2)}, {vr(T+4,2)}"] if self.sxl else [f"v_add_f32 v{s1}, v{T}, v{T+1}", f"v_add_f32 v{s2}, v{T+4}, v{T+5}"]) + ["N", "N",
              f"v_permlane32_swap_b32 v{s1}, v{s2}", f"v_add_f32 v{s1}, v{s1}, v{s2}", f"v_mov_b32 v{t}, v{s1}", "N", "N",
              f"v_permlane16_swap_b32 v{s1}, v{t}", f"v_add_f32 v{s1}, v{s1}, v{t}", "N", "N",
              f"v_add_f32_dpp v{s1}, v{s1}, v{s1} row_ror:8 {DPP}",
              f"v_mul_f32 v{s1}, 0x3b124925, v{s1}",
              f"v_mov_b32 v{t}, v{s1}", "N", "N",
              f"v_permlane32_swap_b32 v{s1}, v{t}",
              f"v_fma_f32 v{t}, -v{s1}, v{s1}, v{t}", f"v_max_f32 v{t}, 0, v{t}", f"v_add_f32 v{t}, 0x3727c5ac, v{t}",
              f"v_rsq_f32 v{t}, v{t}", "N",
              f"v_mul_f32 v{s1}, v{s1}, v{t}",
              f"v_pk_mul_f32 {vr(T+4,2)}, {vr(CS,2)}, {vr(T,2)} op_sel_hi:[1,0]", f"v_pk_mul_f32 {vr(T+6,2)}, {vr(CS+2,2)}, {vr(T,2)} op_sel_hi:[1,0]"]
        for n in range(14):
            i, half = n // 2, n % 2
            d = D + 4 * half
            st = 0
            if n >= 7: a(f"s_waitcnt lgkmcnt({2*(13-n)})"); st += 1
            a(f"{MFMA} {vr(d)}, {vr(self.WSLOT[n%7])}, {vr(QP+4*i)}, {'0' if i == 0 else vr(d)}"); st += 1
            if n < 7: self.w_read(self.WORDER[n + 7], self.WSLOT[n]); st += 2
            while sh and sh[0] == "N" and st: sh.pop(0); st -= 1
            k = 0
            while sh and k < (1 if n < 7 else 2):
                x = sh.pop(0); self.emit_shadow_item(x); k += 1
        nrem = len(sh) + k
        for x in sh: self.emit_shadow_item(x)
        if nrem < 8: a(f"s_nop {7 - nrem}")
        for r in range(4): a(f"v_add_f32_dpp v{D+r}, v{D+4+r}, v{D+r} row_ror:8 {DPP}")
        a(f"v_pk_fma_f32 {vr(D+2,2)}, {vr(D+2,2)}, {vr(T,2)}, {vr(T+6,2)} op_sel:[0,1,0] neg_lo:[0,0,1] neg_hi:[0,0,1]")
        a(f"v_pk_fma_f32 {vr(D,2)}, {vr(D,2)}, {vr(T,2)}, {vr(T+4,2)} op_sel:[0,1,0] neg_lo:[0,0,1] neg_hi:[0,0,1]")
        a(f"v_cvt_pk_bf16_f32 v{D+5}, v{D+2}, v{D+3}")
        a(f"v_cvt_pk_bf16_f32 v{D+4}, v{D+0}, v{D+1}")
        a("s_nop 0")
        a(f"v_mov_b32_dpp v{D+4}, v{D+5} row_ror:8 row_mask:0xf bank_mask:0xc")
        a(f"v_min_u32 v{D+4}, -2, v{D+4}")
        self.pub("buffer_store_dword", f"v{D+4}", vQw, oQW)
        self.stamp("q_pub", 5, True)
        self.ret_if_stream()
    def r_qp_stubs(self):
        self.lab("QP_r"); self.budget("QP_go"); self.qp_issue(); self.a("s_branch QP_chk")
        if self.qp2:
            self.lab("QP_r2"); self.budget("QP_go"); self.qp_issue_sx(); self.a("s_branch QP_chk2")

    def att_regs(self, k): return [(S + 4 * k, 4)]
    def att_issue(self, k=0):
        self.a(f"buffer_load_dwordx4 {vr(S+4*k)}, v{vScr}, {srd(rWS)}, s{oQR} offen sc1")
    def r_att(self):
        a = self.a
        self.pipelined("ATT", 3 if self.pipe else 1, self.att_issue, self.att_regs, lambda k: a(f"ds_write_b128 v{vScr}, {vr(S+4*k)}"), T + 0)
        for i in range(4): a(f"ds_read_b128 {vr(QP+4*i)}, v{vQr} offset:{128*i}")
        self.stamp("att_go", 6, True)
        a(f"s_bitcmp1_b32 s{sL}, 0")
        for k in range(8): a(f"v_mov_b64 {vr(D+2*k,2)}, 0")
        a("s_cbranch_scc1 ATT_qkB")
        def sel(t):
            d = D + 4 * t
            return [f"v_add_f32_dpp v{T+h}, v{d+h}, v{d+2+h} quad_perm:[0,1,2,3] row_mask:{1<<t:#x} bank_mask:0xf" for h in range(2)]
        def qk(base):
            fill = {4: [f"v_lshrrev_b32 v{T+5}, 5, v{vL}"], 5: [f"v_lshlrev_b32 v{T+5}, 2, v{T+5}"],
                    6: [f"v_add_u32 v{T+5}, s{sScrW}, v{T+5}"], 11: [sel(0)[0]], 12: [sel(0)[1]]}
            for t in range(4):
                for i in range(4):
                    if t == 0: a(f"s_waitcnt lgkmcnt({3-i})")
                    a(f"{SMF} {vr(D+4*t)}, {vr(QP+4*i)}, {ar(base+32*t+8*i,8)}, v{vIdx}")
                    for x in fill.get(4 * t + i, []): a(x)
        qk(0)
        a("s_branch ATT_sm")
        self.lab("ATT_qkB")
        qk(128)
        self.lab("ATT_sm")
        z = [f"v_mov_b64 {vr(QP+16+2*k,2)}, 0" for k in range(8)]
        def Z(n):
            for _ in range(n): a(z.pop(0) if z else "s_nop 0")
        for x in sel(1): a(x)
        Z(1)
        for x in sel(2): a(x)
        Z(3)
        for x in sel(3): a(x)
        m, t = T + 2, T + 3
        a(f"v_mov_b64 {vr(m,2)}, {vr(T,2)}")
        Z(2)
        a(f"v_permlane32_swap_b32 v{m}, v{t}")
        a(f"v_max_f32 v{m}, v{m}, v{t}")
        a(f"v_mov_b32 v{t}, v{m}")
        Z(2)
        a(f"v_permlane16_swap_b32 v{m}, v{t}")
        a(f"v_max_f32 v{m}, v{m}, v{t}")
        for r in (8, 4, 2, 1):
            a("s_nop 1"); a(f"v_max_f32_dpp v{m}, v{m}, v{m} row_ror:{r} {DPP}")
        a(f"v_mul_f32 v{m}, s{sC}, v{m}")
        a(f"v_mov_b32 v{t}, v{m}")
        a(f"v_mov_b32 v{T+4}, v{m}")
        a(f"ds_write_b32 v{T+5}, v{m} offset:256")
        a(f"v_permlane32_swap_b32 v{m}, v{t}")
        a(f"v_fma_f32 v{T+0}, v{T+0}, s{sC}, -v{m}")
        a(f"v_fma_f32 v{T+1}, v{T+1}, s{sC}, -v{t}")
        a(f"v_exp_f32 v{T+0}, v{T+0}")
        a(f"v_exp_f32 v{T+1}, v{T+1}")
        a(f"s_cmp_lg_u32 s{sStream}, 0")
        a(f"v_cvt_pk_bf16_f32 v{T+2}, v{T+0}, v{T+1}")
        a(f"ds_write_b16 v{vPw}, v{T+2}")
        a(f"ds_write_b16_d16_hi v{vPw}, v{T+2} offset:128")
        a(f"v_permlane32_swap_b32 v{T+0}, v{T+1}")
        a(f"v_add_f32 v{T+0}, v{T+0}, v{T+1}")
        a(f"v_mov_b32 v{T+1}, v{T+0}")
        a(f"v_and_b32 v{T+5}, 0xffffff6f, v{vPr}")
        a(f"v_and_b32 v{T+3}, 0xfffff000, v{vPr}")
        a(f"v_permlane16_swap_b32 v{T+0}, v{T+1}")
        a(f"v_add_f32 v{T+0}, v{T+0}, v{T+1}")
        a("s_waitcnt lgkmcnt(0)")
        if self.stamps and not self.posst:
            self.stamp("att_end", 7, True); a(f"s_cmp_lg_u32 s{sStream}, 0")
        a("s_cbranch_scc1 RET")

    def pv_reads(self):
        a = self.a
        a("s_barrier")
        a(f"s_mov_b64 exec, {sp(mP)}")
        for mp in range(4): a(f"ds_read_b128 {vr(QP+16+4*mp)}, v{vPr} offset:{32*mp}")
        a("s_mov_b64 exec, -1")
        a(f"ds_read_b64 {vr(T+6,2)}, v{T+5} offset:256")
        for w in range(4): a(f"ds_read_b64 {vr(QP+2*w,2)}, v{T+3} offset:{1024*w+256}")
    def pv_shadow(self):
        l, M0, M1, t = T + 0, QP + 8, QP + 9, T + 2
        o = []
        for r in (8, 4, 2, 1):
            o += [f"v_add_f32_dpp v{l}, v{l}, v{l} row_ror:{r} {DPP}", "N", "N"]
        o = o[:-2]
        o += ["W",
              f"v_max3_f32 v{M0}, v{QP}, v{QP+2}, v{QP+4}", f"v_max3_f32 v{M1}, v{QP+1}, v{QP+3}, v{QP+5}",
              f"v_max_f32 v{M0}, v{M0}, v{QP+6}", f"v_max_f32 v{M1}, v{M1}, v{QP+7}",
              f"v_pk_add_f32 {vr(T+6,2)}, {vr(T+6,2)}, {vr(M0,2)} neg_lo:[0,1] neg_hi:[0,1]",
              f"v_exp_f32 v{T+6}, v{T+6}", f"v_exp_f32 v{T+7}, v{T+7}",
              f"v_mov_b32_dpp v{M0}, v{M1} quad_perm:[0,1,2,3] row_mask:0xc bank_mask:0xf",
              f"v_sub_f32 v{t}, v{T+4}, v{M0}",
              f"v_exp_f32 v{t}, v{t}",
              f"v_lshrrev_b32 v{t+1}, 5, v{vL}",
              f"v_mul_f32 v{l}, v{l}, v{t}",
              f"v_lshlrev_b32 v{t+1}, 10, v{t+1}",
              f"v_and_b32 v{t}, 1, v{vL}",
              f"v_mov_b32_dpp v{l}, v{M0} quad_perm:[0,1,2,3] row_mask:0xf bank_mask:0xf ODDSEL",
              f"v_lshl_add_u32 v{t}, v{t}, 4, v{t+1}",
              f"v_min_u32 v{l}, -2, v{l}",
              "STATS"]
        return o
    def emit_shadow_item(self, x):
        a = self.a
        if x == "N": a("s_nop 0")
        elif x == "W": a("s_waitcnt lgkmcnt(0)")
        elif x.endswith("ODDSEL"):
            a(f"v_cndmask_b32 v{T+0}, v{T+0}, v{QP+8}, vcc")
        elif x == "STATS":
            a("s_mov_b32 exec_lo, 3"); a("s_mov_b32 exec_hi, 3")
            self.pub("buffer_store_dword", f"v{T+0}", T + 2, oST)
            a("s_mov_b64 exec, -1")
        else: a(x)
    def odd_vcc(self):
        self.a(f"s_mov_b32 vcc_lo, {ODD}"); self.a(f"s_mov_b32 vcc_hi, {ODD}")
    def r_pv(self):
        a = self.a
        self.lab("PV")
        self.pv_reads()
        sh = self.pv_shadow()
        z = [f"v_mov_b64 {vr(D+2*k,2)}, 0" for k in range(8)]
        while sh[0] != "W":
            x = sh.pop(0)
            a(z.pop(0) if x == "N" else x)
        for x in z: a(x)
        self.odd_vcc()
        for mp in range(4):
            if mp == 0: a(f"s_waitcnt lgkmcnt(8)")
            for dt in range(4):
                if mp == 0 and dt == 3: a(sh.pop(0) and "s_waitcnt lgkmcnt(0)")
                a(f"{SMF} {vr(D+4*dt)}, {vr(QP+16+4*mp)}, {vr(VAT+32*mp+8*dt,8)}, v{vIdx}")
                if mp * 4 + dt >= 3:
                    for _ in range(2 if mp == 3 or dt == 0 else 1):
                        if sh: self.emit_shadow_item(sh.pop(0))
        for x in sh: self.emit_shadow_item(x)
        self.lab("EPI")
        if self.stearly:
            a(f"buffer_load_dwordx4 {vr(QP+16)}, v{vSr}, {srd(rWS)}, s{oSR} offen sc1"); a("s_nop 3")
        else: a("s_nop 4")
        self.stamp("pv_mfma_end", 8, True)
        for dt in range(4): a(f"v_pk_add_f32 {vr(D+4*dt,2)}, {vr(D+4*dt,2)}, {vr(D+4*dt+2,2)}")
        for dt in (0, 2, 1, 3): a(f"v_pk_mul_f32 {vr(D+4*dt,2)}, {vr(D+4*dt,2)}, {vr(T+6,2)}")
        a(f"v_permlane32_swap_b32 v{D+0}, v{D+8}")
        a(f"v_permlane32_swap_b32 v{D+1}, v{D+9}")
        a(f"v_permlane32_swap_b32 v{D+4}, v{D+12}")
        a(f"v_permlane32_swap_b32 v{D+5}, v{D+13}")
        a(f"v_pk_add_f32 {vr(D,2)}, {vr(D,2)}, {vr(D+8,2)}")
        a(f"v_pk_add_f32 {vr(D+4,2)}, {vr(D+4,2)}, {vr(D+12,2)}")
        a("s_nop 1")
        a(f"v_permlane16_swap_b32 v{D+0}, v{D+4}")
        a(f"v_permlane16_swap_b32 v{D+1}, v{D+5}")
        a(f"v_pk_add_f32 {vr(D,2)}, {vr(D,2)}, {vr(D+4,2)}")
        a(f"v_cndmask_b32 v{T+0}, v{D+1}, v{D+0}, vcc")
        a("s_nop 1")
        a(f"v_mov_b32_dpp v{T+1}, v{T+0} quad_perm:[1,0,3,2] {DPP}")
        a(f"v_cndmask_b32 v{T+2}, v{D+0}, v{T+1}, vcc")
        a(f"v_cndmask_b32 v{T+3}, v{T+1}, v{D+1}, vcc")
        a(f"v_cvt_pk_bf16_f32 v{T+0}, v{T+2}, v{T+3}")
        a(f"v_min_u32 v{T+0}, -2, v{T+0}")
        self.pub("buffer_store_dword", f"v{T+0}", vOw, oOW)
        self.stamp("o_pub", 9, True)
        self.ret_if_stream()

    def v_addr(self, tmp):
        for k in range(1, 4): self.a(f"v_xor_b32 v{tmp+k-1}, {k<<5}, v{vVr0}")
    def v_read(self, mp, dt, dst, tmp):
        ad = vVr0 if dt == 0 else tmp + dt - 1
        for hi in range(2):
            for h in range(2):
                self.a(f"ds_read_b64_tr_b16 {vr(dst+4*hi+2*h,2)}, v{ad} offset:{mp*8192+hi*2048+h*512}")
    def r_vcopy(self):
        for mp in range(4):
            self.lab(f"VC_{mp}")
            self.v_addr(T + 1)
            for dt in range(4): self.v_read(mp, dt, VAT + 32 * mp + 8 * dt, T + 1)
            if mp < 3: self.ret_if_stream()
        self.a(f"s_setpc_b64 {sp(sRET)}")
    def r_pv2(self, waits):
        a = self.a
        self.lab("PV2")
        BUF = [S, S + 8, QP + 8, QP]
        self.pv_reads()
        self.odd_vcc()
        sh = self.pv_shadow()
        z = [f"v_mov_b64 {vr(D+2*k,2)}, 0" for k in range(8)]
        tmp = [vKr0, vVb0, vVb1]
        for k in range(1, 4): a(f"v_xor_b32 v{tmp[k-1]}, {k<<5}, v{vVr0}")
        def rd(n, dt):
            mp, w = waits[n]
            if dt == 0 and w is not None:
                a(f"s_waitcnt vmcnt({w})")
                if n == len(waits) - 1: self.stamp("stream_end", 4)
            ad = vVr0 if dt == 0 else tmp[dt - 1]
            for hi in range(2):
                for h in range(2):
                    a(f"ds_read_b64_tr_b16 {vr(BUF[dt]+4*hi+2*h,2)}, v{ad} offset:{mp*8192+hi*2048+h*512}")
        rd(0, 0); rd(0, 1)
        while sh[0] != "W":
            x = sh.pop(0)
            a(z.pop(0) if x == "N" else x)
        for x in z: a(x)
        sh.pop(0); a("s_waitcnt lgkmcnt(8)")
        for x in sh: self.emit_shadow_item(x)
        rd(0, 2); rd(0, 3)
        for n in range(4):
            mp = waits[n][0]
            for dt in range(4):
                a(f"s_waitcnt lgkmcnt({12 if n < 3 else 12-4*dt})")
                a(f"{SMF} {vr(D+4*dt)}, {vr(QP+16+4*mp)}, {vr(BUF[dt],8)}, v{vIdx}")
                if n < 3: rd(n + 1, dt)
        a("s_branch EPI")

    def r_cs(self):
        a = self.a
        self.lab("CSUM")
        for k in range(4): a(f"v_mov_b32 v{T+k}, {ONES}")
        for k in range(4): self.w_read(k, S + 4 * k)
        for k in range(14):
            a(f"s_waitcnt lgkmcnt({min(6, 2*(13-k))})")
            a(f"{MFMA} {vr(CS)}, {vr(S+4*(k%4))}, {vr(T)}, {'0' if k == 0 else vr(CS)}")
            if k + 4 < 14: self.w_read(k + 4, S + 4 * (k % 4))
        a("s_nop 7")
        a(f"s_setpc_b64 {sp(sRET)}")

    def r_loop(self):
        a = self.a
        self.lab("LOOP")
        a(f"s_cmp_ge_u32 s{sJ}, 28"); a("s_cbranch_scc1 L_skipwo")
        assert self.womid
        if self.stearly:
            a(f"s_cmp_lg_u32 s{sL}, 1"); a("s_cbranch_scc1 WO_e")
            a("s_waitcnt vmcnt(5)")
            self.call("WOT")
            self.lab("WO_e")
            self.check(self.wo_st, T + 0, waits=[2], sent=f"s{sSENT1}")
            a("s_cbranch_vccz WO_sc")
        else:
            a(f"buffer_load_dwordx4 {vr(QP+16)}, v{vSr}, {srd(rWS)}, s{oSR} offen sc1")
            a(f"s_cmp_eq_u32 s{sL}, 1"); a("s_cbranch_scc1 L_wot")
            for k in range(16): a(f"v_swap_b32 v{WOC+k}, v{WON+k}")
            a("s_branch WO_w")
            self.lab("L_wot")
            a("s_waitcnt vmcnt(5)")
            self.call("WOT")
            a("s_branch WO_w")
        self.r_wo()
        if self.stearly:
            for k in range(16): a(f"v_swap_b32 v{WOC+k}, v{WON+k}")
        a(f"s_cmp_eq_u32 s{sL}, 2"); a("s_cbranch_scc1 L_vpf")
        a(f"s_cmp_eq_u32 s{sL}, 1"); a("s_cbranch_scc1 L_h3w")
        a(f"s_cmp_lg_u32 s{sG}, 0"); a("s_cbranch_scc1 L_fin")
        self.lab("L_h3w")
        if self.h3d: a(f"s_sleep {self.h3d}")
        self.r_h3()
        self.lab("ADV")
        self.advance()
        self.ret_if_stream()
        a(f"s_and_b32 s{sT0}, s{sL}, 1"); a(f"s_cmp_lg_u32 s{sT0}, s{sQM}"); a("s_cbranch_scc1 ATT_poll")
        self.r_qp()
        self.r_att()
        self.r_pv()
        a("s_branch LOOP")
        self.lab("RET")
        a(f"s_setpc_b64 {sp(sRET)}")
        self.lab("L_vpf")
        self.call("VC_0")
        self.tmp_srd(pOUT, 7168)
        if self.olay:
            a(f"v_bfe_u32 v{T}, v{vL}, 2, 1"); a(f"v_mul_u32_u24 v{T}, 896, v{T}"); a(f"v_and_b32 v{vKb}, 3, v{vL}"); a(f"v_lshl_add_u32 v{T}, v{vKb}, 3, v{T}")
            a(f"v_lshrrev_b32 v{vKb}, 5, v{vL}"); a(f"v_lshl_add_u32 v{vKb}, v{vKb}, 2, v{T}")
        a("s_branch H3_poll")
        self.lab("L_skipwo")
        a(f"s_cmp_eq_u32 s{sL}, 3"); a("s_cbranch_scc1 L_fin")
        a(f"s_cmp_eq_u32 s{sL}, 1"); a("s_cbranch_scc1 ADV")
        self.call("VC_0")
        a("s_branch ADV")
        self.lab("WOT"); self.wot(); a(f"s_setpc_b64 {sp(sRET)}")
        self.r_h3_final(); self.r_wo_stubs(); self.r_qp_stubs()

    def to_qp(self, delay, qdelay=None):
        a = self.a
        a(f"s_cmp_eq_u32 s{sQM}, 1")
        a(f"s_cselect_b32 s{sPH}, {QP_I}, {AT_I}")
        a(f"s_cselect_b32 s{sAge}, {delay if qdelay is None else qdelay}, {delay + self.gaps[3] + self.A}")
    def q1_issue(self):
        a = self.a
        a(f"v_lshrrev_b32 v{T+5}, 1, v{vL}"); a(f"v_lshlrev_b32 v{T+5}, 8, v{T+5}"); a(f"v_and_b32 v{T+6}, 1, v{vL}")
        a(f"v_lshl_add_u32 v{T+5}, v{T+6}, 4, v{T+5}")
        a(f"s_mul_i32 s{sA1}, s{sG}, {GSTRIDE}"); a(f"s_lshl_b32 s{sT1}, s{sB}, 5"); a(f"s_add_u32 s{sA1}, s{sA1}, s{sT1}"); a(f"s_add_u32 s{sA1}, s{sA1}, {BASE}")
        a(f"buffer_load_dwordx4 {vr(S)}, v{T+5}, {srd(rWS)}, s{sA1} offen {self.qpol}")
        a(f"v_and_b32 v{T+6}, 31, v{vL}"); a(f"v_lshlrev_b32 v{T+6}, 7, v{T+6}")
        a(f"s_lshl_b32 s{sA1}, s{sG}, 12"); a(f"s_add_u32 s{sA1}, s{sA1}, {XCBASE}")
        a(f"buffer_load_dword v{T+7}, v{T+6}, {srd(rWS)}, s{sA1} offen {self.qpol}")
    def r_q1(self):
        a = self.a
        self.lab("Q1_poll")
        self.q1_issue()
        a("s_waitcnt vmcnt(0)")
        self.check([(S, 4), (T + 7, 1)], T + 0)
        a("s_cbranch_vccz Q1_go")
        a(f"s_cmp_eq_u32 s{sTO}, 0"); a("s_cbranch_scc1 Q1_go"); a(f"s_sub_u32 s{sTO}, s{sTO}, 1"); a("s_branch Q1_poll")
        self.lab("Q1_go")
        a(f"v_readfirstlane_b32 s{sT0}, v{T+7}")
        a("s_nop 1")
        a(f"v_cmp_ne_u32 vcc, s{sT0}, v{T+7}")
        a("s_cbranch_vccnz XC_slow")
        if not self.slow:
            a(f"s_mov_b32 s{rPF+2}, {WS_SIZE}"); a(f"s_mov_b32 s{rPS+2}, 0")
        self.lab("XC_slow")
        self.stamp("gate", 2)
        l = self.newlab("Lw0")
        a(f"s_cmp_lg_u32 s{sW}, 2"); a(f"s_cbranch_scc1 {l}"); a(f"s_cmp_ge_u32 s{sJ}, 28"); a(f"s_cbranch_scc1 {l}")
        self.reset_loc(layer=1)
        self.lab(l)
        l = self.newlab("Lna")
        a(f"s_cmp_lg_u32 s{sJ}, 31"); a(f"s_cbranch_scc1 {l}"); a(f"s_cmp_lg_u32 s{sW}, 0"); a(f"s_cbranch_scc1 {l}")
        a(f"s_lshl_b32 s{sT0}, s{sG}, 2"); a(f"v_mov_b32 v{T+6}, s{sT0}"); a(f"v_mov_b32 v{T+7}, 1")
        a("s_mov_b64 exec, 1")
        a(f"global_store_dword v{T+6}, v{T+7}, {sp(pDBG)} offset:128 sc1")
        a("s_mov_b64 exec, -1")
        self.lab(l)
        self.warm_part(OOFF, 9)
        a("s_waitcnt lgkmcnt(0)")
        self.call("ATT_h0")
        a(f"s_mov_b32 s{sPH}, {DONE}")
        a(f"s_setpc_b64 {sp(sRET2)}")
    def r_handler(self):
        a = self.a
        G, A, Ar = self.gaps, self.A, self.Ar
        ret = f"s_setpc_b64 {sp(sRET2)}"
        self.lab("HND")
        if self.qrun:
            a(f"s_cmp_ge_u32 s{sThr}, 1"); a("s_cbranch_scc0 HND_0")
            a(f"s_waitcnt vmcnt({self.Tbase - 2})")
            self.lab("HND_0")
        a(f"s_cmp_eq_u32 s{sAge}, 0"); a("s_cbranch_scc1 HND_act")
        a(f"s_sub_u32 s{sAge}, s{sAge}, 1")
        a(f"s_bitcmp1_b32 s{sPH}, 0"); a("s_cbranch_scc1 HND_ret")
        a(f"s_cmp_gt_u32 s{sAge}, {self.hold}"); a("s_cbranch_scc1 HND_ret")
        a(f"s_waitcnt vmcnt({self.Tlo - 2})"); a(ret)
        self.lab("HND_act")
        for stt, nm in ((DONE, "HND_ret"), (Q1_I, "H_Q1I"), (Q1_C, "H_Q1C"), (WO_C, "H_WOC"), (H3_I, "H_H3I"), (H3_C, "H_H3C"), (QP_I, "H_QPI"), (QP_C, "H_QPC"), (AT_I, "H_ATI0"), (AT_C, "H_ATC")):
            a(f"s_cmp_eq_u32 s{sPH}, {stt}"); a(f"s_cbranch_scc1 {nm}")
        def issue(lab, fn, nxt_):
            self.lab(lab)
            if self.stamps and not self.posst: self.stamp(lab + "_first", {"H_WOI": 26, "H_H3I": 38, "H_QPI": 50, "H_QPIz": 50, "H_ATI": 62}[lab])
            a(f"s_waitcnt vmcnt({self.Tlo})"); a(f"s_mov_b32 s{sAge}, {A-1}"); a(f"s_mov_b32 s{sA0}, 0"); a(f"s_branch {lab}x")
            self.lab(lab + "r"); a(f"s_waitcnt vmcnt({self.Tr})"); a(f"s_mov_b32 s{sAge}, {Ar-1}"); a(f"s_mov_b32 s{sA0}, 1")
            self.lab(lab + "x")
            if self.stamps and not self.posst: self.stamp(lab + "_last", {"H_WOI": 27, "H_H3I": 39, "H_QPI": 51, "H_QPIz": 51, "H_ATI": 63}[lab])
            fn(); a(f"s_mov_b32 s{sPH}, {nxt_}"); a(ret)
        def landed(lab):
            self.lab(lab)
            l = self.newlab("Lw")
            a(f"s_waitcnt vmcnt({2*A})")
            a(f"s_cmp_eq_u32 s{sA0}, 0"); a(f"s_cbranch_scc1 {l}"); a(f"s_waitcnt vmcnt({2*Ar})"); self.lab(l)
        issue("H_WOI", self.wo_issue, WO_C)
        landed("H_WOC")
        self.check(self.wo_st + self.wo_o, T + 0); a("s_cbranch_vccnz H_WOIr")
        a(f"s_cmp_eq_u32 s{sWOok}, 0"); a("s_cbranch_scc1 HND_ret")
        a("s_waitcnt lgkmcnt(0)")
        self.gate2("G2")
        self.call("WOT")
        self.wo_scales()
        self.call("WO_go2")
        self.warm_part(XOFF, 3)
        a(f"s_mov_b32 s{sPH}, {H3_I}"); a(f"s_mov_b32 s{sAge}, {G[1]}"); a(ret)
        issue("H_H3I", self.h3_issue, H3_C)
        landed("H_H3C")
        self.check(self.h3_regs(0), T + 0); a("s_cbranch_vccnz H_H3Ir")
        self.call("H3_h0")
        self.warm_part(LSTRIDE + QOFF, 3)
        self.to_qp(G[2])
        a(ret)
        if self.qrun:
            self.lab("H_QPI"); a(ret)
        elif self.qpblk:
            self.lab("H_QPI"); self.call("QP_first")
            a(f"s_mov_b32 s{sPH}, {AT_I}"); a(f"s_mov_b32 s{sAge}, {G[3]}"); a(ret)
        issue("H_QPI" + ("z" if self.qpblk else ""), lambda: (self.qp_prep(), self.qp_issue()), QP_C)
        landed("H_QPC")
        self.check(self.qp_regs, D); a("s_cbranch_vccnz H_QPI" + ("z" if self.qpblk else "") + "r")
        self.qp_preload()
        self.call("QP_go")
        a(f"s_mov_b32 s{sPH}, {AT_I}"); a(f"s_mov_b32 s{sAge}, {G[3]}"); a(ret)
        self.lab("H_ATI0")
        a(f"s_cmp_eq_u32 s{sKBok}, 0"); a("s_cbranch_scc1 HND_ret")
        issue("H_ATI", self.att_issue, AT_C)
        landed("H_ATC")
        self.check(self.att_regs(0), T + 0); a("s_cbranch_vccnz H_ATIr")
        a(f"s_cmp_lt_u32 s{sKBok}, 2"); a("s_cbranch_scc1 HND_ret")
        a("s_waitcnt lgkmcnt(0)")
        self.call("ATT_h0")
        a(f"s_mov_b32 s{sPH}, {DONE}")
        self.lab("HND_ret")
        a(ret)
        An = (self.Tbase + 1) // 2
        self.lab("H_Q1C")
        a(f"s_waitcnt vmcnt({2*An})")
        self.check([(S, 4), (T + 7, 1)], T + 0); a("s_cbranch_vccz Q1_go")
        self.lab("H_Q1I")
        self.q1_issue(); a(f"s_mov_b32 s{sPH}, {Q1_C}"); a(f"s_mov_b32 s{sAge}, {An-1}"); a(ret)
        self.r_q1()
    def gate2(self, nm):
        a = self.a
        self.lab(f"{nm}_chk")
        a(f"v_cmp_eq_u32 vcc, 0, v{T+7}")
        a(f"s_cbranch_vccz {nm}_ok")
        a(f"s_cmp_eq_u32 s{sTO}, 0"); a(f"s_cbranch_scc1 {nm}_ok"); a(f"s_sub_u32 s{sTO}, s{sTO}, 1")
        a("s_sleep 4")
        a(f"global_load_dword v{T+7}, v{T+6}, {sp(pDBG)} offset:128 sc1"); a("s_waitcnt vmcnt(0)"); a(f"s_branch {nm}_chk")
        self.lab(f"{nm}_ok")
    def finish_chain(self):
        a = self.a
        l1, l2, l3, l4 = (self.newlab("Lfin") for _ in range(4))
        a(f"s_cmp_gt_u32 s{sPH}, {WO_C}"); a(f"s_cbranch_scc1 {l1}")
        a("s_waitcnt vmcnt(0)")
        self.gate2("F2")
        self.call("WOT")
        self.call("WO_poll")
        self.lab(l1)
        self.wo_load(pWOB, uniform=True)
        a(f"s_cmp_gt_u32 s{sPH}, {H3_C}"); a(f"s_cbranch_scc1 {l2}")
        self.call("H3_poll")
        self.to_qp(0)
        self.lab(l2)
        a(f"s_cmp_gt_u32 s{sPH}, {QP_C}"); a(f"s_cbranch_scc1 {l3}")
        self.call("QP_first")
        self.lab(l3)
        a(f"s_cmp_eq_u32 s{sPH}, {DONE}"); a(f"s_cbranch_scc1 {l4}")
        self.call("ATT_poll")
        a("s_waitcnt vmcnt(0)")
        self.lab(l4)

    def k_dma(self, r, m, i):
        a = self.a
        if i == 0:
            self.slot_free(m)
            a(f"s_add_u32 m0, s{sRing}, {m*4096}")
        x = (8 * (m & 1) + 2 * i) << 4
        if x: a(f"v_xor_b32 v{D+15}, {x}, v{vKb}")
        elif i == 0: a("s_nop 0")
        self.throttle()
        a(f"buffer_load_dwordx4 v{D+15 if x else vKb}, {srd(r)}, s{sM+m} offen offset:{i*1024} nt lds")
        return self.streamop()
    def k_copy(self, base, t):
        a = self.a
        for k in range(1, 4): a(f"v_xor_b32 v{D+11+k}, {k<<6}, v{vKr0}")
        for i in range(8):
            ad = vKr0 if i % 4 == 0 else D + 11 + i % 4
            a(f"ds_read_b128 {ar(base+32*t+4*i)}, v{ad} offset:{t*8192+(i//4)*256}")
        self.slot_read(2 * t); self.slot_read(2 * t + 1)
    def v_dma(self, r, m, w):
        a = self.a
        if w == 0:
            self.slot_free(m)
            a(f"s_add_u32 m0, s{sRing}, {m*4096}")
            a("s_nop 0")
        else:
            a(f"s_add_u32 s{sT0}, s{sM+m}, {3072*w}")
        self.throttle()
        a(f"buffer_load_dwordx4 v{vVb0+(m&1)}, {srd(r)}, s{sM+m if w == 0 else sT0} offen offset:{w*1024} nt lds")
        return self.streamop()
    def v_copy(self, mp):
        self.call(f"VC_{mp}"); self.slot_read(2 * mp); self.slot_read(2 * mp + 1)
    def tmp_srd(self, p, size):
        a = self.a
        a(f"s_mov_b32 s{rTMP}, s{p}"); a(f"s_mov_b32 s{rTMP+1}, s{p+1}"); a(f"s_mov_b32 s{rTMP+2}, {size}"); a(f"s_mov_b32 s{rTMP+3}, 0x20000")
    def wo_load(self, p, uniform=False):
        a = self.a
        if not uniform: l = self.if_j28()
        self.tmp_srd(p, 4096 * 896)
        if uniform:
            a(f"s_cmp_ge_u32 s{sJ}, 28"); a(f"s_cselect_b32 s{rTMP+2}, 0, s{rTMP+2}")
        a(f"s_lshl_b32 s{sT0}, s{sG}, 1"); a(f"s_and_b32 s{sT1}, s{sJ}, 1"); a(f"s_add_u32 s{sT0}, s{sT0}, s{sT1}")
        a(f"s_lshl_b32 s{sT0}, s{sT0}, 2"); a(f"s_add_u32 s{sT0}, s{sT0}, s{sW}"); a(f"s_mul_i32 s{sT0}, s{sT0}, {64*896}")
        a(f"s_lshr_b32 s{sT1}, s{sJ}, 1"); a(f"s_lshl_b32 s{sT1}, s{sT1}, 6"); a(f"s_add_u32 s{sT0}, s{sT0}, s{sT1}")
        a(f"v_and_b32 v{D+15}, 15, v{vL}"); a(f"v_mul_u32_u24 v{D+15}, 896, v{D+15}")
        a(f"v_and_b32 v{D+14}, 48, v{vL}"); a(f"v_add_u32 v{D+15}, v{D+14}, v{D+15}")
        for kk in range(4):
            if kk: a(f"s_add_u32 s{sT0}, s{sT0}, {16*896}")
            a(f"buffer_load_dwordx4 {vr(WON+4*kk)}, v{D+15}, {srd(rTMP)}, s{sT0} offen {self.wpol}")
            if uniform: self.counted()
        if uniform: return None
        self.lab(l)
        return self.optional()
    def wot(self):
        a = self.a
        I, Z = T, T + 4
        a(f"v_and_b32 v{Z}, 1, v{vL}"); a(f"v_lshlrev_b32 v{Z}, 4, v{Z}"); a(f"v_lshlrev_b32 v{Z}, v{Z}, s{sONE}")
        a(f"v_bfe_u32 v{Z+1}, v{vL}, 3, 1"); a(f"v_lshrrev_b32 v{Z+2}, 4, v{vL}"); a(f"v_cmp_eq_u32 vcc, v{Z+1}, v{Z+2}")
        a(f"v_bfe_u32 v{Z+1}, v{vL}, 1, 2"); a("s_nop 0"); a(f"v_cndmask_b32 v{Z}, 0, v{Z}, vcc")
        for r in range(4): a(f"v_cmp_eq_u32 s[{34}:{35}], {r}, v{Z+1}" if r & 1 else f"v_cmp_eq_u32 vcc, {r}, v{Z+1}"); \
            (r & 1) and (a("s_nop 0"), a(f"v_cndmask_b32 v{I+r-1}, 0, v{Z}, vcc"), a(f"v_cndmask_b32 v{I+r}, 0, v{Z}, s[34:35]"))
        a(f"v_mov_b64 {vr(Z,2)}, 0"); a(f"v_mov_b64 {vr(Z+2,2)}, 0")
        OUT = lambda k, ct: (D if ct == 0 else S) + 4 * k
        for k in range(4): a(f"{MFMA} {vr(OUT(k,0))}, {vr(WON+4*k)}, {vr(I)}, 0")
        for r in range(4): a(f"v_permlane32_swap_b32 v{Z+r}, v{I+r}")
        a("s_nop 1")
        for k in range(4): a(f"{MFMA} {vr(OUT(k,1))}, {vr(WON+4*k)}, {vr(Z)}, 0")
        for k in range(8): a(f"v_mov_b64 {vr(WON+2*k,2)}, {vr(WOC+2*k,2)}")
        for ct in range(2):
            for k in range(4):
                d = WOC + 8 * (k >> 1) + 4 * ct + 2 * (k & 1)
                a(f"v_cvt_pk_bf16_f32 v{d}, v{OUT(k,ct)}, v{OUT(k,ct)+1}"); a(f"v_cvt_pk_bf16_f32 v{d+1}, v{OUT(k,ct)+2}, v{OUT(k,ct)+3}")
    def wq_all(self, only=None):
        a = self.a
        skip = None
        if only is not False and only is not None:
            skip = self.newlab("Lwq")
            a(f"s_cmp_ge_u32 s{sA0}, 16"); a(f"s_cbranch_scc{1 - only} {skip}")
        a(f"s_cmp_ge_u32 s{sA0}, 16")
        a(f"s_cselect_b32 s{rTMP}, s{pWQB}, s{pWQA}"); a(f"s_cselect_b32 s{rTMP+1}, s{pWQB+1}, s{pWQA+1}")
        a(f"s_mov_b32 s{rTMP+2}, {448*8192}"); a(f"s_mov_b32 s{rTMP+3}, 0x20000")
        nq = 7
        if self.bal:
            a(f"s_mul_i32 s{sT1}, s{sW}, 4"); a(f"s_cmp_eq_u32 s{sW}, 3"); a(f"s_cselect_b32 s{sT1}, 18, s{sT1}")
            nq = 10
        else:
            a(f"s_mul_i32 s{sT1}, s{sW}, 7")
        a(f"s_lshl_b32 s{sT0}, s{sT1}, 17"); a(f"s_lshl_b32 s{sT1}, s{sT1}, 10"); a(f"s_add_u32 s{sA1}, s{sT1}, {WQ_LDS}")
        a(f"s_lshl_b32 s{sT1}, s{sG}, 10"); a(f"s_add_u32 s{sT0}, s{sT0}, s{sT1}")
        a(f"s_and_b32 s{sT1}, s{sA0}, 15"); a(f"s_lshl_b32 s{sT1}, s{sT1}, 6"); a(f"s_add_u32 s{sT0}, s{sT0}, s{sT1}")
        a(f"v_lshrrev_b32 v{D+15}, 2, v{vL}"); a(f"v_lshlrev_b32 v{D+15}, 13, v{D+15}")
        a(f"v_and_b32 v{D+14}, 3, v{vL}"); a(f"v_lshl_add_u32 v{D+15}, v{D+14}, 4, v{D+15}")
        o = None
        short = None
        for q in range(nq):
            if self.bal and q == 4:
                short = self.newlab("Lwqs")
                a(f"s_cmp_lt_u32 s{sW}, 2"); a(f"s_cbranch_scc1 {short}")
            a(f"s_add_u32 m0, s{sA1}, {q*1024}")
            if q: a(f"s_add_u32 s{sT0}, s{sT0}, {1 << 17}")
            else: a("s_nop 0")
            a(f"buffer_load_dwordx4 v{D+15}, {srd(rTMP)}, s{sT0} offen {self.wpol} lds")
            if skip is None and short is None: o = self.counted()
        if short is not None: self.lab(short)
        if skip is not None: self.lab(skip)
        if skip is not None or short is not None: o = self.optional()
        return o
    def wq_part(self, q0, n):
        a = self.a
        a(f"s_cmp_ge_u32 s{sA0}, 16")
        a(f"s_cselect_b32 s{rTMP}, s{pWQB}, s{pWQA}"); a(f"s_cselect_b32 s{rTMP+1}, s{pWQB+1}, s{pWQA+1}")
        a(f"s_mov_b32 s{rTMP+2}, {448*8192}"); a(f"s_mov_b32 s{rTMP+3}, 0x20000")
        a(f"s_mul_i32 s{sT1}, s{sW}, 7"); a(f"s_add_u32 s{sT1}, s{sT1}, {q0}")
        a(f"s_lshl_b32 s{sT0}, s{sT1}, 17"); a(f"s_lshl_b32 s{sT1}, s{sT1}, 10"); a(f"s_add_u32 s{sA1}, s{sT1}, {WQ_LDS}")
        a(f"s_lshl_b32 s{sT1}, s{sG}, 10"); a(f"s_add_u32 s{sT0}, s{sT0}, s{sT1}")
        a(f"s_and_b32 s{sT1}, s{sA0}, 15"); a(f"s_lshl_b32 s{sT1}, s{sT1}, 6"); a(f"s_add_u32 s{sT0}, s{sT0}, s{sT1}")
        a(f"v_lshrrev_b32 v{D+15}, 2, v{vL}"); a(f"v_lshlrev_b32 v{D+15}, 13, v{D+15}")
        a(f"v_and_b32 v{D+14}, 3, v{vL}"); a(f"v_lshl_add_u32 v{D+15}, v{D+14}, 4, v{D+15}")
        for q in range(n):
            a(f"s_add_u32 m0, s{sA1}, {q*1024}")
            if q: a(f"s_add_u32 s{sT0}, s{sT0}, {1 << 17}")
            else: a("s_nop 0")
            self.throttle()
            a(f"buffer_load_dwordx4 v{D+15}, {srd(rTMP)}, s{sT0} offen {self.wpol} lds")
            o = self.streamop()
        return o
    def role(self):
        self.a(f"s_mov_b32 s{sA0}, s{sJ}"); self.a(f"s_lshr_b32 s{sT0}, s{sJ}, 1")
        for v, d in ((3, 22), (14, -22), (11, 8), (15, -8)):
            self.a(f"s_add_i32 s{sT1}, s{sJ}, {d}"); self.a(f"s_cmp_eq_u32 s{sT0}, {v}"); self.a(f"s_cselect_b32 s{sA0}, s{sT1}, s{sA0}")
        self.a(f"s_and_b32 s{sJQ}, s{sA0}, 15"); self.a(f"s_lshl_b32 s{sJQ}, s{sJQ}, 1"); self.a(f"s_add_u32 s{sJQ}, s{sJQ}, s{sW}")
        self.a(f"s_lshr_b32 s{sQM}, s{sA0}, 4"); self.a(f"s_cmp_ge_u32 s{sW}, 2"); self.a(f"s_cselect_b32 s{sQM}, 2, s{sQM}")
    def x_first(self):
        a = self.a
        t0, t1 = D + 14, D + 15
        a(f"v_and_b32 v{t0}, 7, v{vL}"); a(f"v_mul_u32_u24 v{t0}, 896, v{t0}"); a(f"v_bfe_u32 v{t1}, v{vL}, 3, 1"); a(f"v_mul_u32_u24 v{t1}, 448, v{t1}")
        a(f"v_add_u32 v{t0}, v{t0}, v{t1}"); a(f"v_and_b32 v{t1}, 48, v{vL}"); a(f"v_add_u32 v{t0}, v{t0}, v{t1}")
        self.tmp_srd(pAX, 7168)
        for i in range(7):
            a(f"buffer_load_dwordx4 {vr(QP+4*i)}, v{t0}, {srd(rTMP)}, 0 offen offset:{64*i}")
    def loc0(self, dst):
        a = self.a
        a(f"s_mul_i32 s{dst}, s{sG}, {GSTRIDE}"); a(f"s_add_u32 s{dst}, s{dst}, {BASE}"); a(f"s_sub_u32 s{dst}, s{dst}, s{sScrW}")
    SENT = S + 12
    def reset_leader(self):
        a = self.a
        l2 = self.newlab("Ldn")
        i1 = f"buffer_store_dwordx4 {vr(self.SENT)}, v{vScr}, {srd(rWS)}, s{sT0} offen"
        a(f"s_cmp_lg_u32 s{sB}, 4"); a(f"s_cbranch_scc1 {l2}")
        a(f"s_cmp_lg_u32 s{sW}, 2"); a(f"s_cbranch_scc1 {l2}")
        self.loc0(sA1)
        a(f"s_lshl_b32 s{sT1}, s{sS}, 11"); a(f"s_add_u32 s{sT0}, s{sA1}, s{sT1}")
        a(i1 + " sc1"); a(i1 + " offset:1024 sc1")
        a(f"s_lshl_b32 s{sT0}, s{sG}, 2"); a(f"s_add_u32 s{sT0}, s{sT0}, s{sS}"); a(f"s_lshl_b32 s{sT0}, s{sT0}, 10")
        a(f"s_add_u32 s{sT0}, s{sT0}, {XCBASE}"); a(f"s_sub_u32 s{sT0}, s{sT0}, s{sScrW}")
        a(i1 + " sc1")
        self.lab(l2)
    def reset_general(self):
        a = self.a
        l = self.if_wave(2)
        self.loc0(sT0)
        a(f"s_mul_i32 s{sT1}, s{sJ}, 1408"); a(f"s_add_u32 s{sT0}, s{sT0}, s{sT1}"); a(f"s_add_u32 s{sT0}, s{sT0}, {OOFF}")
        i1 = f"buffer_store_dwordx4 {vr(self.SENT)}, v{vScr}, {srd(rWS)}, s{sT0} offen"
        a(i1 + " " + self.rpol); a("s_mov_b64 exec, 0xffffff"); a(i1 + " offset:1024 " + self.rpol); a("s_mov_b64 exec, -1")
        self.lab(l)
        l = self.if_wave(3)
        a(f"s_mul_i32 s{sT0}, s2, 896")
        a(f"s_add_u32 s{sT0}, s{sT0}, {BASE + LSTRIDE + X3OFF}"); a(f"s_sub_u32 s{sT0}, s{sT0}, s{sScrW}")
        a("s_mov_b32 exec_hi, 0xffffff"); a(i1 + " " + self.rpol); a("s_mov_b32 exec_hi, -1")
        self.lab(l)
        l = self.if_j28()
        a(f"buffer_store_dword v{self.SENT}, v{vX3w}, {srd(rWS)}, s{oX3W} offen {self.rpol}")
        self.lab(l)
    def reset_loc(self, sent=None, layer=None):
        a = self.a
        sent = sent or self.SENT
        self.loc0(sT0)
        if layer is None: a(f"s_mul_i32 s{sT1}, s{sW}, {LSTRIDE}"); a(f"s_add_u32 s{sT0}, s{sT0}, s{sT1}")
        else: a(f"s_add_u32 s{sT0}, s{sT0}, {layer * LSTRIDE}")
        a(f"s_mul_i32 s{sT1}, s{sJ}, 1872"); a(f"s_add_u32 s{sT0}, s{sT0}, s{sT1}")
        self.pub("buffer_store_dwordx4", vr(sent), vScr, sT0)
        a("s_mov_b32 exec_hi, 0x1fffff"); self.pub("buffer_store_dwordx4", vr(sent), vScr, sT0, "offset:1024"); a("s_mov_b32 exec_hi, -1")
    def late_resets(self):
        a = self.a
        l = self.if_j28()
        for k in range(2): a(f"v_mov_b64 {vr(D+2*k,2)}, -1")
        l2, l3 = self.newlab("Llr"), self.newlab("Ldn")
        a(f"s_cmp_lt_u32 s{sW}, 2"); a(f"s_cbranch_scc1 {l2}")
        self.reset_loc(D)
        a(f"s_branch {l3}")
        self.lab(l2)
        a(f"s_mul_i32 s{sT0}, s{sW}, {LSTRIDE}"); a(f"s_lshl_b32 s{sT1}, s2, 10"); a(f"s_add_u32 s{sT0}, s{sT0}, s{sT1}")
        a(f"s_add_u32 s{sT0}, s{sT0}, {BASE + 2 * LSTRIDE + X3OFF}"); a(f"s_sub_u32 s{sT0}, s{sT0}, s{sScrW}")
        a(f"buffer_store_dwordx4 {vr(D)}, v{vScr}, {srd(rWS)}, s{sT0} offen sc1")
        self.lab(l3)
        self.lab(l)
    def warm_part(self, off, n):
        if not self.warm: return
        a = self.a
        l = self.if_wave(3)
        a(f"s_mul_i32 s{sT0}, s{sG}, {GSTRIDE}"); a(f"s_mul_i32 s{sT1}, s{sJ}, {n*128}"); a(f"s_add_u32 s{sT0}, s{sT0}, s{sT1}")
        a(f"s_add_u32 s{sT0}, s{sT0}, {BASE + off}")
        a(f"v_lshlrev_b32 v{CS+1}, 7, v{vL}")
        a(f"s_mov_b64 exec, {(1 << n) - 1}")
        a(f"buffer_load_dword v{CS}, v{CS+1}, {srd(rWS)}, s{sT0} offen")
        a("s_mov_b64 exec, -1")
        self.lab(l)
    def warm_loads(self, t0, sink):
        if not self.warm: return
        a = self.a
        l = self.if_wave(3)
        a(f"v_mul_u32_u24 v{t0+1}, 79, v{vL}"); a(f"v_lshrrev_b32 v{t0+1}, 10, v{t0+1}")
        a(f"v_mul_u32_u24 v{t0}, 13, v{t0+1}"); a(f"v_sub_u32 v{t0}, v{vL}, v{t0}")
        a(f"s_mov_b32 s{sT0}, {LSTRIDE}"); a(f"v_mul_lo_u32 v{t0+1}, v{t0+1}, s{sT0}")
        a(f"v_lshl_add_u32 v{t0+1}, v{t0}, 7, v{t0+1}")
        a(f"s_mul_i32 s{sT0}, s{sG}, {GSTRIDE}"); a(f"s_mul_i32 s{sT1}, s{sJ}, {13*128}"); a(f"s_add_u32 s{sT0}, s{sT0}, s{sT1}")
        a(f"s_add_u32 s{sT0}, s{sT0}, {BASE}")
        a(f"buffer_load_dword v{sink}, v{t0+1}, {srd(rWS)}, s{sT0} offen")
        self.lab(l)
    def if_wave(self, w):
        l = self.newlab("Lnw")
        self.a(f"s_cmp_lg_u32 s{sW}, {w}"); self.a(f"s_cbranch_scc1 {l}")
        return l
    def if_qm(self, p):
        l = self.newlab("Lnq")
        self.a(f"s_cmp_lg_u32 s{sQM}, {p}"); self.a(f"s_cbranch_scc1 {l}")
        return l
    def if_j28(self):
        l = self.newlab("Lj28")
        self.a(f"s_cmp_ge_u32 s{sJ}, 28"); self.a(f"s_cbranch_scc1 {l}")
        return l

    def build(self):
        name = KN + "_kernel"
        self.L = header([f"; @launch grid=(256,1,1) block=(256,1,1) lds={LDS_TOTAL}"]) + kernel_begin(name)
        a = self.a
        a("s_cmp_ge_u32 s2, 256"); a("s_cbranch_scc1 L_end")
        a("s_load_dwordx16 s[8:23], s[0:1], 0")
        a("s_load_dwordx8 s[24:31], s[0:1], 64")
        a("s_load_dwordx2 s[32:33], s[0:1], 96")
        a(f"v_lshrrev_b32 v1, 6, v0"); a(f"v_and_b32 v{vL}, 63, v0"); a(f"v_readfirstlane_b32 s{sW}, v1")
        a(f"s_and_b32 s{sG}, s2, 7"); a(f"s_lshr_b32 s{sJ}, s2, 3"); a(f"s_lshr_b32 s{sB}, s2, 5"); a(f"s_and_b32 s{sS}, s{sJ}, 3")
        a(f"s_lshl_b32 s{sRing}, s{sW}, 15"); a(f"s_lshl_b32 s{sScrW}, s{sW}, 10"); a(f"s_add_u32 s{sScrW}, s{sScrW}, {SCR}")
        for m in range(8): a(f"s_mov_b32 s{sM+m}, {m*65536}")
        t0, t1, t2 = T, T + 1, T + 2
        a(f"s_lshl_b32 s{sT0}, s{sS}, 14"); a(f"s_lshl_b32 s{sT1}, s{sW}, 12"); a(f"s_add_u32 s{sT1}, s{sT0}, s{sT1}")
        a(f"v_lshrrev_b32 v{t0}, 5, v{vL}"); a(f"v_and_b32 v{t1}, 31, v{vL}"); a(f"v_xor_b32 v{t1}, v{t1}, v{t0}")
        a(f"v_lshlrev_b32 v{t0}, 9, v{t0}"); a(f"v_lshl_add_u32 v{t0}, v{t1}, 4, v{t0}"); a(f"v_add_u32 v{vKb}, s{sT1}, v{t0}")
        a(f"s_lshl_b32 s{sT0}, s{sB}, 3"); a(f"s_add_u32 s{sT0}, s{sT0}, s{sG}"); a(f"s_lshl_b32 s{sT0}, s{sT0}, 21")
        a(f"s_add_u32 s{sT0}, s{sT0}, 0x180000")
        if self.stamps:
            a(f"v_mov_b32 v{vST}, 0"); a(f"s_mov_b32 s{sSB}, 16")
            a("s_memtime s[100:101]")
        a("s_waitcnt lgkmcnt(0)")
        if self.stamps: a(f"v_writelane_b32 v{vST}, s100, 13")
        self.stamp("start", 0)
        for r, p in ((rKA, pKA), (rVA, pVA), (rKB, pKB), (rVB, pVB)):
            a(f"s_add_u32 s{r}, s{p}, s{sT0}"); a(f"s_addc_u32 s{r+1}, s{p+1}, 0"); a(f"s_mov_b32 s{r+2}, 0x80000"); a(f"s_mov_b32 s{r+3}, 0x20000")
        kA = {}
        if self.WQ1 < 0:
            self.role()
            wq0 = self.wq_all(self.wqsplit and 0)
        for m in range(self.K0 // 4):
            for i in range(4): kA[(m, i)] = self.k_dma(rKA, m, i)
        if self.tlb:
            l = self.if_wave(3) if self.tlb == 1 else None
            a("s_mov_b64 exec, 1")
            for r in (rVA, rKB, rVB):
                a(f"buffer_load_dword v{CS+2}, v{vKb}, {srd(r)}, 0 offen nt")
            a("s_mov_b64 exec, -1")
            if l: self.lab(l)
        self.stamp("k0", 6)
        for r, size in ((rWS, 0), (rPF, 0), (rPS, 0)):
            a(f"s_mov_b32 s{r}, s{pWS}"); a(f"s_mov_b32 s{r+1}, s{pWS+1}"); a(f"s_mov_b32 s{r+2}, {size}"); a(f"s_mov_b32 s{r+3}, 0x20000")
        a(f"s_mov_b32 s{sTO}, {self.TO}"); a(f"s_mov_b32 s{sL}, 0"); a(f"s_mov_b32 s{sC}, {CSCALE}")
        a(f"s_mov_b32 s{sStream}, 1"); a(f"s_mov_b32 s{sONE}, 0x3f80"); a(f"s_mov_b32 s{sSENT1}, -1"); a(f"s_mov_b32 s{sSENT2}, 0")
        for r, v in ((mX, 0xFF),):
            a(f"s_mov_b32 s{r}, {v:#x}"); a(f"s_mov_b32 s{r+1}, {v:#x}")
        a(f"s_mov_b32 s{mP}, 0x00f0000f"); a(f"s_mov_b32 s{mP+1}, 0xf0000f00")
        if self.WQ1 >= 0: self.role()
        n_, kq_, r_, c_, o_ = D, D + 1, D + 2, D + 3, D + 4
        a(f"v_and_b32 v{n_}, 15, v{vL}"); a(f"v_lshrrev_b32 v{kq_}, 4, v{vL}"); a(f"v_bfe_u32 v{r_}, v{vL}, 2, 2"); a(f"v_and_b32 v{c_}, 3, v{vL}")
        a(f"v_and_b32 v{o_}, 1, v{vL}")
        a(f"v_lshlrev_b32 v{t0}, 4, v{vL}"); a(f"v_add_u32 v{vScr}, s{sScrW}, v{t0}")
        a(f"v_bfe_u32 v{t0}, v{vL}, 2, 1"); a(f"v_mul_u32_u24 v{t0}, 896, v{t0}"); a(f"v_lshl_add_u32 v{t0}, v{c_}, 3, v{t0}")
        a(f"v_lshrrev_b32 v{t1}, 5, v{vL}"); a(f"v_lshl_add_u32 v{vXn}, v{t1}, 2, v{t0}")
        a(f"v_bfe_u32 v{t0}, v{vL}, 1, 1"); a(f"v_lshlrev_b32 v{t0}, 8, v{t0}"); a(f"v_lshl_add_u32 v{t0}, v{t1}, 2, v{t0}")
        a(f"v_bfe_u32 v{t1}, v{vL}, 2, 1"); a(f"v_lshl_add_u32 v{t0}, v{t1}, 4, v{t0}"); a(f"v_lshl_add_u32 v{vXw}, v{o_}, 3, v{t0}")
        a(f"v_lshrrev_b32 v{t0}, 1, v{kq_}"); a(f"v_lshlrev_b32 v{t0}, 11, v{t0}"); a(f"v_and_b32 v{t1}, 1, v{kq_}")
        a(f"v_lshl_add_u32 v{t0}, v{t1}, 6, v{t0}"); a(f"v_lshl_add_u32 v{vX3w}, v{n_}, 2, v{t0}")
        a(f"s_lshl_b32 s{sT0}, s{sS}, 14"); a(f"s_lshl_b32 s{sT1}, s{sW}, 7"); a(f"s_add_u32 s{sT0}, s{sT0}, s{sT1}")
        a(f"v_and_b32 v{t0}, 7, v{vL}"); a(f"v_lshlrev_b32 v{t1}, 1, v{t1}"); a(f"v_xor_b32 v{t0}, v{t0}, v{t1}")
        a(f"v_lshrrev_b32 v{t1}, 3, v{vL}"); a(f"v_lshlrev_b32 v{t1}, 9, v{t1}"); a(f"v_lshl_add_u32 v{t0}, v{t0}, 4, v{t1}")
        a(f"v_add_u32 v{vVb0}, s{sT0}, v{t0}"); a(f"v_xor_b32 v{vVb1}, 64, v{vVb0}")
        a(f"v_bfe_u32 v{t0}, v{vL}, 3, 1"); a(f"v_lshlrev_b32 v{t0}, 12, v{t0}"); a(f"v_and_b32 v{t1}, 7, v{vL}"); a(f"v_lshl_add_u32 v{t0}, v{t1}, 9, v{t0}")
        a(f"v_xor_b32 v{t1}, v{kq_}, v{n_}"); a(f"v_lshl_add_u32 v{t0}, v{t1}, 4, v{t0}"); a(f"v_add_u32 v{vKr0}, s{sRing}, v{t0}")
        a(f"v_and_b32 v{t1}, 1, v{kq_}"); a(f"v_mul_u32_u24 v{t0}, 4160, v{t1}"); a(f"v_lshrrev_b32 v{t1}, 1, v{kq_}"); a(f"v_lshl_add_u32 v{t0}, v{t1}, 10, v{t0}")
        a(f"v_lshl_add_u32 v{t0}, v{r_}, 7, v{t0}"); a(f"v_lshl_add_u32 v{t0}, v{c_}, 3, v{t0}")
        a(f"v_lshrrev_b32 v{t1}, 1, v{r_}"); a(f"v_lshl_add_u32 v{t0}, v{t1}, 5, v{t0}"); a(f"v_add_u32 v{vVr0}, s{sRing}, v{t0}")
        a(f"v_bfe_u32 v{t2}, v{vL}, 1, 1")
        a(f"v_mul_u32_u24 v{vIdx}, 0xaaaa, v{t2}"); a(f"v_add_u32 v{vIdx}, 0x4444, v{vIdx}")
        a(f"v_lshlrev_b32 v{t0}, 9, v{o_}"); a(f"v_lshl_add_u32 v{t0}, v{kq_}, 5, v{t0}"); a(f"v_lshl_add_u32 v{t0}, v{t2}, 4, v{t0}")
        a(f"v_add_u32 v{vQr}, s{sScrW}, v{t0}")
        a(f"v_lshlrev_b32 v{t0}, 7, v{o_}"); a(f"v_lshl_add_u32 v{t0}, v{kq_}, 10, v{t0}"); a(f"v_lshl_add_u32 v{t0}, v{t2}, 4, v{t0}")
        a(f"v_add_u32 v{vPr}, {SCR}, v{t0}")
        a(f"v_lshlrev_b32 v{t0}, 5, v{kq_}"); a(f"v_lshl_add_u32 v{t0}, v{t2}, 4, v{t0}"); a(f"v_lshl_add_u32 v{t0}, v{r_}, 2, v{t0}")
        a(f"v_lshl_add_u32 v{t0}, v{o_}, 1, v{t0}"); a(f"v_add_u32 v{vPw}, s{sScrW}, v{t0}")
        a(f"v_and_b32 v{t0}, 2, v{vL}"); a(f"v_lshlrev_b32 v{t0}, 1, v{t0}"); a(f"v_lshl_add_u32 v{t0}, v{o_}, 14, v{t0}")
        a(f"v_lshrrev_b32 v{t1}, 5, v{vL}"); a(f"v_lshl_add_u32 v{t0}, v{t1}, 10, v{t0}")
        a(f"v_lshl_add_u32 v{t0}, v{r_}, 8, v{t0}")
        a(f"v_and_b32 v{t2}, 1, v{kq_}"); a(f"v_lshl_add_u32 v{vOw}, v{t2}, 3, v{t0}")
        if self.olay:
            a(f"v_mul_u32_u24 v{t2}, 240, v{r_}"); a(f"v_sub_u32 v{vOw}, v{vOw}, v{t2}")
        a(f"v_and_b32 v{t0}, 31, v{vL}"); a(f"v_lshlrev_b32 v{t0}, 5, v{t0}"); a(f"v_lshl_add_u32 v{vSr}, v{t1}, 4, v{t0}")
        a(f"v_and_b32 v{t0}, 7, v{vL}"); a(f"v_lshlrev_b32 v{t0}, 5, v{t0}"); a(f"v_lshl_add_u32 v{t0}, v{kq_}, 2, v{t0}")
        a(f"v_bfe_u32 v{t2}, v{vL}, 3, 1"); a(f"v_lshl_add_u32 v{vQw}, v{t2}, 4, v{t0}")
        a(f"s_and_b32 s{sT0}, s{sW}, 1"); a(f"s_lshl_b32 s{sT0}, s{sT0}, 5"); a(f"s_add_u32 s{sT0}, s{sT0}, {WQ_LDS}")
        a(f"v_lshlrev_b32 v{t0}, 9, v{kq_}"); a(f"v_lshl_add_u32 v{t0}, v{r_}, 6, v{t0}"); a(f"v_lshl_add_u32 v{t0}, v{c_}, 3, v{t0}")
        a(f"v_add_u32 v{vWr}, s{sT0}, v{t0}")
        a(f"s_mul_i32 s{sA1}, s{sG}, {GSTRIDE}"); a(f"s_add_u32 s{sA1}, s{sA1}, {BASE}")
        a(f"s_sub_u32 s{oXR}, s{sA1}, s{sScrW}")
        a(f"s_lshl_b32 s{sT0}, s{sB}, 10"); a(f"s_add_u32 s{oQR}, s{oXR}, s{sT0}")
        a(f"s_lshl_b32 s{sT0}, s{sJQ}, 8"); a(f"s_add_u32 s{oQW}, s{sA1}, s{sT0}")
        a(f"s_lshl_b32 s{sT0}, s{sJ}, 5"); a(f"s_lshl_b32 s{sT1}, s{sW}, 2"); a(f"s_add_u32 s{sT0}, s{sT0}, s{sT1}")
        a(f"s_add_u32 s{oSR}, s{sA1}, {STOFF}"); a(f"s_add_u32 s{oST}, s{oSR}, s{sT0}")
        a(f"s_and_b32 s{sT1}, s{sJ}, 1"); a(f"s_lshl_b32 s{sT0}, s{sT1}, 10"); a(f"s_add_u32 s{oSR}, s{oSR}, s{sT0}")
        a(f"s_lshl_b32 s{sT0}, s{sW}, 12"); a(f"s_add_u32 s{sT0}, s{sT0}, {OOFF}")
        a(f"s_add_u32 s{oOW}, s{sA1}, s{sT0}"); a(f"s_add_u32 s{oOR}, s{oXR}, s{sT0}")
        a(f"s_lshl_b32 s{sT0}, s{sT1}, 14"); a(f"s_add_u32 s{oOR}, s{oOR}, s{sT0}")
        a(f"s_lshr_b32 s{sT0}, s{sJ}, 4"); a(f"s_lshl_b32 s{sT0}, s{sT0}, 11"); a(f"s_add_u32 s{oOW}, s{oOW}, s{sT0}")
        a(f"s_and_b32 s{sT0}, s{sJ}, 15"); a(f"s_lshl_b32 s{sT0}, s{sT0}, {6 if self.olay else 4}"); a(f"s_add_u32 s{oOW}, s{oOW}, s{sT0}")
        a(f"s_and_b32 s{oX3W}, s{sJ}, 30"); a(f"s_lshl_b32 s{oX3W}, s{oX3W}, 13"); a(f"s_lshl_b32 s{sT0}, s{sW}, 12"); a(f"s_add_u32 s{oX3W}, s{oX3W}, s{sT0}")
        a(f"s_lshl_b32 s{sT0}, s{sG}, 8"); a(f"s_add_u32 s{oX3W}, s{oX3W}, s{sT0}"); a(f"s_lshl_b32 s{sT0}, s{sT1}, 7"); a(f"s_add_u32 s{oX3W}, s{oX3W}, s{sT0}")
        a(f"s_add_u32 s{oX3W}, s{oX3W}, {BASE + X3OFF}")
        a(f"s_lshl_b32 s{oX3R}, s{sJ}, 13"); a(f"s_lshl_b32 s{sT0}, s{sW}, 11"); a(f"s_add_u32 s{oX3R}, s{oX3R}, s{sT0}")
        a(f"s_add_u32 s{oX3R}, s{oX3R}, {BASE + X3OFF}"); a(f"s_sub_u32 s{oX3R}, s{oX3R}, s{sScrW}")
        a(f"s_lshr_b32 s{sXN}, s{sJ}, 1"); a(f"s_lshl_b32 s{oXW}, s{sXN}, 10"); a(f"s_cmp_ge_u32 s{sXN}, 7")
        a(f"s_cselect_b32 s{sT0}, {(128 - 7168) & 0xffffffff}, 0"); a(f"s_add_u32 s{oXW}, s{oXW}, s{sT0}"); a(f"s_lshl_b32 s{sXN}, s{sXN}, 6")
        a(f"s_lshl_b32 s{sT1}, s{sT1}, 1"); a(f"s_and_b32 s{sT0}, s{sW}, 1"); a(f"s_add_u32 s{sT1}, s{sT1}, s{sT0}")
        a(f"s_lshl_b32 s{sT0}, s{sT1}, 5"); a(f"s_add_u32 s{oXW}, s{oXW}, s{sT0}"); a(f"s_mul_i32 s{sT0}, s{sT1}, 1792"); a(f"s_add_u32 s{sXN}, s{sXN}, s{sT0}")
        a(f"s_lshr_b32 s{sT1}, s{sW}, 1"); a(f"s_lshl_b32 s{sT0}, s{sT1}, 9"); a(f"s_add_u32 s{oXW}, s{oXW}, s{sT0}")
        a(f"s_lshl_b32 s{sT0}, s{sT1}, 5"); a(f"s_add_u32 s{sXN}, s{sXN}, s{sT0}")
        a(f"s_add_u32 s{oXW}, s{oXW}, s{sA1}"); a(f"s_add_u32 s{oXW}, s{oXW}, {XOFF}")
        a(f"s_add_u32 s{oXR}, s{oXR}, {(XOFF - LSTRIDE) & 0xffffffff}")
        a(f"s_add_u32 s{oSXR}, s{sA1}, {(SXOFF - LSTRIDE) & 0xffffffff}")
        a(f"s_and_b32 s{sT0}, s{sJ}, 30"); a(f"s_add_u32 s{sT0}, s{sT0}, s{sT1}"); a(f"s_lshl_b32 s{oSXW}, s{sT0}, {6 if self.sxl else 2}")
        a(f"s_and_b32 s{sT0}, s{sJ}, 1"); a(f"s_lshl_b32 s{sT0}, s{sT0}, {5 if self.sxl else 9}"); a(f"s_add_u32 s{oSXW}, s{oSXW}, s{sT0}")
        a(f"s_and_b32 s{sT0}, s{sW}, 1"); a(f"s_lshl_b32 s{sT0}, s{sT0}, {4 if self.sxl else 8}"); a(f"s_add_u32 s{oSXW}, s{oSXW}, s{sT0}")
        a(f"s_add_u32 s{oSXW}, s{oSXW}, s{sA1}"); a(f"s_add_u32 s{oSXW}, s{oSXW}, {SXOFF}")
        if self.codepf:
            l = self.newlab("Lpf")
            a(f"s_lshl_b32 s{sT0}, s{sJ}, 2"); a(f"s_add_u32 s{sT0}, s{sT0}, s{sW}")
            a(f"s_cmp_ge_u32 s{sT0}, (L_codeend - {name} + 1023) / 1024"); a(f"s_cbranch_scc1 {l}")
            a(f"s_getpc_b64 s[34:35]")
            self.lab("L_pc")
            a(f"s_lshl_b32 s{sT0}, s{sT0}, 10"); a(f"s_sub_u32 s{sT0}, s{sT0}, L_pc - {name}")
            a(f"s_ashr_i32 s{sT1}, s{sT0}, 31")
            a(f"s_add_u32 s34, s34, s{sT0}"); a(f"s_addc_u32 s35, s35, s{sT1}")
            a(f"v_lshlrev_b32 v{t0}, 4, v{vL}")
            a(f"global_load_dword v{CS}, v{t0}, s[34:35]")
            self.lab(l)
        a(f"s_mov_b32 s{rWS+2}, {WS_SIZE}")
        for k in range(4): a(f"v_mov_b32 v{self.SENT+k}, -1")
        self.reset_leader()
        if self.P0 == 0: self.reset_general()
        rst = self.optional()
        a(f"s_mov_b32 s{sSENT2}, -1"); a(f"s_mov_b32 s{(rPF if 'plainq' in self.exp else rPS)+2}, {WS_SIZE}")
        self.tmp_srd(pAX, 7168)
        a(f"buffer_load_dword v{vXres}, v{vXn}, {srd(rTMP)}, s{sXN} offen")
        self.counted()
        if self.olay:
            a(f"v_and_b32 v{t0}, 15, v{vL}"); a(f"v_lshlrev_b32 v{t0}, 6, v{t0}"); a(f"v_and_b32 v{t1}, 48, v{vL}")
            a(f"v_add3_u32 v{vXn}, v{t0}, v{t1}, s{sScrW}")
        self.stamp("setup_end", 7)

        self.thr_on = True
        order2 = list(range(8))
        groups = [("K", "A", m) for m in range(8)] + [("V", "A", m) for m in range(8)] + \
                 [("K", "B", m) for m in order2] + [("V", "B", m) for m in order2]
        extra = {i: [] for i in range(32)}
        if self.stagB:
            for k, w in enumerate([2, 3, 0, 1]): extra[self.WQB + (self.stagB * k) // 2].append(("WW", "B", w, k))
        if self.stag:
            order = [2, 3, 0, 1]
            for k, w in enumerate(order): extra[self.WQ1 + (self.stag * k) // 2].append(("WW", "A", w, 0))
            extra[self.WQ1 + (self.stag * 3) // 2].append(("X", "A", 0, 0))
        elif self.wqs:
            g0 = self.WQ1
            for q0 in range(0, 7, self.wqs):
                extra[g0].append(("WP", "A", q0, min(self.wqs, 7 - q0))); g0 += 1
            extra[g0 - 1].append(("X", "A", 0, 0))
        elif "nowq" not in self.exp and self.WQ1 >= 0: extra[self.WQ1].append(("WQ", "A", 0, 0))
        if self.WQ1 < 0: extra[self.XP].append(("X", "A", 0, 0))
        if self.wqsplit and not self.stagB: extra[self.WQB].append(("WQ", "B", 0, 0))
        if self.WOA >= 0: extra[self.WOA].append(("WO", "A", 0, 0))
        extra[self.LR].append(("LR", "B", 0, 0))
        prog = []
        for gi, (kd, ab, m) in enumerate(groups):
            prog += [(kd, ab, m, i) for i in range(4) if not (kd == "K" and ab == "A" and (m, i) in kA)]
            prog += extra[gi]
        ops = {("K", "A") + k: v for k, v in kA.items()}
        copies = [([kA[(m, i)] for m in (2 * t, 2 * t + 1) for i in range(4)], (lambda t=t: self.k_copy(0, t)), ("K", "A", t))
                  for t in range(self.K0 // 8)]
        copied = set()
        st = {"phase": 0, "smark": 0}
        G = self.gaps
        def need(tags): return all(t in copied for t in tags)
        KA_all = [("K", "A", t) for t in range(4)]
        KB_all = [("K", "B", t) for t in range(4)]
        VA_all = [("V", "A", mp) for mp in range(4)]
        def drain_to(n):
            if len(self.stream) > n: self.wait_for(self.stream[-n - 1])
        def burst_done(): return len(self.stream) - st["smark"] >= self.Thi - self.Tlo
        def polled():
            st["smark"] = len(self.stream); self.T = self.Thi

        def chain():
            ph, pos = st["phase"], self.nops
            if "nochain" in self.exp and ph >= self.stop:
                if "wqmark" in st and len(self.stream) - st["wqmark"] >= self.Thi - self.Tlo: self.T = self.Tbase
                return False
            def nxt(): st["phase"] += 1; self.log.append((ph, pos))
            if ph == 0 and pos >= self.K0 + 3:
                l = self.newlab("Lnl")
                a(f"s_cmp_lg_u32 s{sB}, 4"); a(f"s_cbranch_scc1 {l}"); a(f"s_cmp_lg_u32 s{sW}, 2"); a(f"s_cbranch_scc1 {l}")
                a(f"s_waitcnt vmcnt({self.after(rst)})")
                a(f"s_lshl_b32 s{sT0}, s{sG}, 2"); a(f"s_add_u32 s{sT0}, s{sT0}, s{sS}"); a(f"s_lshl_b32 s{sT0}, s{sT0}, 2")
                a(f"v_mov_b32 v{T+4}, s{sT0}"); a(f"v_mov_b32 v{T+5}, 1")
                a("s_mov_b64 exec, 1")
                a(f"global_store_dword v{T+4}, v{T+5}, {sp(pDBG)} sc1")
                a("s_mov_b64 exec, -1")
                self.stamp("arrive", 9)
                self.lab(l)
                nxt(); return True
            if ph == 1 and pos >= self.P0:
                if "noreset" not in self.exp and self.P0: self.reset_general()
                st["rstx"] = self.optional()
                nxt(); return True
            if ph == 2 and pos >= self.P1:
                a(f"v_and_b32 v{T+6}, 3, v{vL}"); a(f"s_lshl_b32 s{sT0}, s{sG}, 2"); a(f"v_add_lshl_u32 v{T+6}, v{T+6}, s{sT0}, 2")
                a(f"global_load_dword v{T+7}, v{T+6}, {sp(pDBG)} sc1")
                st["op"] = self.counted()
                nxt(); return True
            if ph == 3:
                if "wqmark" not in st: return False
                if self.nat:
                    if not (ops[("WQ", "A", 0, 0)].done and st["op"].done): return False
                elif len(self.stream) - st["wqmark"] < self.Thi - self.Tlo: return False
                self.wait_for(ops[("WQ", "A", 0, 0)])
                self.wait_for(st["op"]); self.wait_for(st["rstx"])
                self.stamp("pre_gate", 10)
                self.lab("GATE_chk")
                a(f"v_cmp_eq_u32 vcc, 0, v{T+7}")
                a("s_cbranch_vccz GATE_ok")
                a(f"s_cmp_eq_u32 s{sTO}, 0"); a("s_cbranch_scc1 GATE_ok"); a(f"s_sub_u32 s{sTO}, s{sTO}, 1")
                a("s_sleep 4")
                a(f"global_load_dword v{T+7}, v{T+6}, {sp(pDBG)} sc1"); a("s_waitcnt vmcnt(0)"); a("s_branch GATE_chk")
                self.lab("GATE_ok")
                self.stamp("pre_bar0", 8)
                if "nobar" not in self.exp: a("s_barrier")
                l = self.if_wave(3)
                a(f"s_getreg_b32 s{sT0}, hwreg(HW_REG_XCC_ID, 0, 4)")
                a(f"v_mov_b32 v{T+4}, s{sT0}"); a(f"v_lshlrev_b32 v{T+5}, 2, v{vL}")
                a(f"s_lshl_b32 s{sT0}, s{sG}, 5"); a(f"s_add_u32 s{sT0}, s{sT0}, s{sJ}"); a(f"s_lshl_b32 s{sT0}, s{sT0}, 7")
                a(f"s_add_u32 s{sT0}, s{sT0}, {XCBASE}")
                a("s_mov_b32 exec_hi, 0")
                a(f"buffer_store_dword v{T+4}, v{T+5}, {srd(rWS)}, s{sT0} offen {'' if 'plainx' in self.exp else self.ppol}")
                a("s_mov_b32 exec_hi, -1")
                self.lab(l)
                l = self.newlab("Lnq"); l3 = self.newlab("Ldn")
                if self.wqsplit: a(f"s_cmp_lg_u32 s{sQM}, 0")
                else: a(f"s_cmp_eq_u32 s{sQM}, 2")
                a(f"s_cbranch_scc1 {l}")
                if "noqp" in self.exp: a(f"s_branch {l}")
                self.call("CSUM")
                l2 = self.if_qm(0)
                self.qp_preload()
                self.x_stats()
                self.call("QP_go")
                self.lab(l2)
                a(f"s_branch {l3}")
                self.lab(l)
                self.lab(l3)
                for k in range(4): a(f"v_mov_b32 v{self.SENT+k}, -1")
                a(f"v_and_b32 v{T}, 7, v{vL}"); a(f"v_mul_u32_u24 v{T}, 992, v{T}"); a(f"v_add_u32 v{vQw}, v{vQw}, v{T}")
                a(f"s_mul_i32 s{sT0}, s{sJQ}, 224"); a(f"s_sub_u32 s{oQW}, s{oQW}, s{sT0}")
                self.stamp("bar0", 1)
                self.T = self.Tbase
                nxt(); return True
            if ph == 4 and pos >= self.P2 and need(KA_all):
                a(f"s_mov_b32 s{sPH}, {Q1_I}"); a(f"s_mov_b32 s{sAge}, 0"); a(f"s_mov_b32 s{sThr}, 0")
                st["dyn1"] = True
                st["phase"] = 6; self.log.append((ph, pos)); return True
            if ph == 6 and ("V", "A", 7, 3) in ops:
                polled()
                self.T = self.Tbase; st["smark"] -= self.Thi - self.Tlo - self.PVB
                nxt(); return True
            if ph == 7 and burst_done() and not need(VA_all):
                self.wait_for(ops[("V", "A", 7, 3)])
                return True
            if ph == 7 and need(VA_all):
                st["dyn1"] = False
                l = self.newlab("Lq1")
                a(f"s_cmp_eq_u32 s{sPH}, {DONE}"); a(f"s_cbranch_scc1 {l}")
                a(f"s_call_b64 {sp(sRET2)}, Q1_poll")
                self.lab(l)
                self.lg0()
                self.stamp("pre_pv1", 11)
                a(f"v_and_b32 v{T+5}, 0xffffff6f, v{vPr}"); a(f"v_and_b32 v{T+3}, 0xfffff000, v{vPr}")
                if self.wqsplit: assert ops[("WQ", "B", 0, 0)].done
                self.call("PV")
                if self.wqsplit:
                    l = self.if_qm(1); self.call("CSUM"); self.lab(l)
                a(f"v_and_b32 v{T+6}, 7, v{vL}"); a(f"v_lshlrev_b32 v{T+6}, 2, v{T+6}")
                a(f"global_load_dword v{T+7}, v{T+6}, {sp(pDBG)} offset:128 sc1"); self.counted()
                a(f"s_mov_b32 s{sPH}, {WO_I}"); a(f"s_mov_b32 s{sAge}, {G[0]}"); a(f"s_mov_b32 s{sKBok}, 0"); a(f"s_mov_b32 s{sWOok}, 0")
                l = self.newlab("Llt28")
                a(f"s_cmp_lt_u32 s{sJ}, 28"); a(f"s_cbranch_scc1 {l}")
                self.call("ADV")
                self.to_qp(G[0] + G[1] + G[2] + 3 * self.A, qdelay=99)
                self.lab(l)
                st["dyn"] = True
                self.T = self.Tbase
                if self.qrun:
                    self.T = self.T2
                    a(f"s_cmp_lg_u32 s{sQM}, 1"); a(f"s_cselect_b32 s{sThr}, 1, 0")
                nxt(); return True
            return False
        LASTPH = 7

        def service():
            made = True
            while made:
                made = False
                for c in list(copies):
                    nd, fn, tag = c
                    if all(o.done for o in nd):
                        fn(); copied.add(tag); copies.remove(c); made = True
                if chain(): made = True

        pi = 0
        while pi < len(prog):
            it = prog[pi]; pi += 1
            kind, ab, m, i = it
            if self.T2 and len(self.stream) >= 4 * self.G2:
                self.T = self.T2
                if self.qrun and len(self.stream) == 4 * self.G2 and kind in "KV" and i == 0: a(f"s_mov_b32 s{sThr}, 0")
            if kind == "K":
                ops[it] = self.k_dma(rKA if ab == "A" else rKB, m, i)
                if i == 3 and (m & 1) and not (ab == "A" and m // 2 < self.K0 // 8):
                    t = m // 2
                    copies.append(([ops[("K", ab, mm, ii)] for mm in (2 * t, 2 * t + 1) for ii in range(4)],
                                   (lambda b=(0 if ab == "A" else 128), t=t: self.k_copy(b, t)), ("K", ab, t)))
            elif kind == "V":
                ops[it] = self.v_dma(rVA if ab == "A" else rVB, m, i)
                if i == 3 and (m & 1) and ab == "A":
                    copies.append(([ops[("V", ab, mm, ii)] for mm in (m - 1, m) for ii in range(4)], (lambda mp=m // 2: self.v_copy(mp)), ("V", ab, m // 2)))
            elif kind == "LR":
                self.late_resets()
            elif kind == "WO":
                ops[it] = self.wo_load(pWOA)
                st["woA"] = ops[it]
            elif kind == "WQ":
                if "nodrain" not in self.exp and not self.nat: drain_to(self.Tlo)
                if "nox" not in self.exp and ab == "A":
                    l = self.if_qm(0); self.x_first(); self.lab(l)
                ops[it] = self.wq_all(self.wqsplit and (0 if ab == "A" else 1))
                if ab == "A":
                    st["wqmark"] = len(self.stream)
                    if not self.nat: self.T = self.Thi
            elif kind == "WW":
                l = self.if_wave(m)
                n0, lv = self.nops, list(self.live)
                self.wq_all(1 if ab == "B" else None)
                self.nops, self.live = n0, lv
                self.lab(l)
                ops[("WQ", "B", 0, 0)] = self.optional()
            elif kind == "WP":
                self.wq_part(m, i)
            elif kind == "X":
                l = self.if_qm(0); self.x_first(); self.lab(l)
                ops[("WQ", "A", 0, 0)] = self.optional(); st["wqmark"] = len(self.stream); self.T = self.Thi
            service()
            if st.get("dyn") and self.WOA < 0 and not st.get("woq") and kind in "KV" and i == 3:
                prog[pi:pi] = [("WO", "A", 0, 0)]
                st["woq"] = True
            if st.get("dyn1") and kind in "KV" and i in (1, 3):
                a(f"s_call_b64 {sp(sRET2)}, HND")
            if st.get("dyn"):
                if ("K", "B", 2) in copied and not st.get("kb1"): a(f"s_mov_b32 s{sKBok}, 1"); st["kb1"] = True
                if need(KB_all) and not st.get("kb2"): a(f"s_mov_b32 s{sKBok}, 2"); st["kb2"] = True
                if "woA" in st and st["woA"].done and not st.get("wok"):
                    a(f"s_mov_b32 s{sWOok}, 1"); st["wok"] = True; self.log.append(("wo_ok", self.nops))
                if kind in "KV" and i in (1, 3) and not self.nohnd:
                    if not st.get("nh"): self.log.append(("first_hnd", self.nops))
                    a(f"s_call_b64 {sp(sRET2)}, HND"); st["nh"] = True
            if self.posst and i == 3 and kind in "KV":
                st["nst"] = st.get("nst", 0) + 1
                self.stamp(f"s{len(self.stream):03d}_{kind}{ab}{m}_ph{st['phase']}", 16 + st["nst"])
        self.log.append(("issue_end", self.nops))
        self.stamp("issue_end", 3)
        if "nochain" in self.exp:
            a("s_waitcnt vmcnt(0)"); self.stamp("stream_end", 4); a("s_branch L_fin")
            pv2w = [(1, None), (2, None), (3, None), (0, 0)]
        else:
            assert st["phase"] > LASTPH and need(KB_all) and not copies
            self.lg0()
            self.warm_loads(D + 14, vKb)
            self.finish_chain()
            self.stamp("chain_done", 12)
            a(f"s_mov_b32 s{sStream}, 0")
            pv2w = []
            for mp in (0, 1, 2, 3):
                o = ops[("V", "B", 2 * mp + 1, 3)]
                pv2w.append((mp, None if o.done else self.after(o)))
            a("s_branch PV2")
        self.lab("L_fin")
        if self.stamps:
            self.stamp("end", 5)
            a("s_memtime s[34:35]"); a("s_waitcnt lgkmcnt(0)"); a(f"v_writelane_b32 v{vST}, s34, 14")
            a(f"s_lshl_b32 s{sT0}, s2, 2"); a(f"s_add_u32 s{sT0}, s{sT0}, s{sW}"); a(f"s_lshl_b32 s{sT0}, s{sT0}, 8")
            a(f"s_add_u32 s{sT0}, s{sT0}, {STAMP_OFF}"); a(f"s_add_u32 s34, s{pWS}, s{sT0}"); a(f"s_addc_u32 s35, s{pWS+1}, 0")
            a(f"v_lshlrev_b32 v{T}, 2, v{vL}")
            a(f"v_writelane_b32 v{vST}, s{sTO}, 15")
            a(f"global_store_dword v{T}, v{vST}, s[34:35]")
        self.lab("L_end")
        a("s_endpgm")
        self.r_handler(); self.r_pv2(pv2w); self.r_loop(); self.r_vcopy(); self.r_cs()
        for l, go in self.tailstubs:
            self.lab(l); a(f"s_mov_b32 s{sTO}, 0"); a(f"s_branch {go}")
        self.lab("L_codeend")
        a("s_endpgm")
        a(".fill 256, 4, 0xBF800000")
        self.L += kernel_desc(name, 512, 102, 256)
        return "\n".join(self.L) + "\n"

    def wo_copy_sel(self, ab, slot):
        self.wo_copy(WOC if ab == "A" else WON, slot)


if __name__ == "__main__":
    import argparse, json
    ap = argparse.ArgumentParser()
    ap.add_argument("-o", default="main.s")
    ap.add_argument("kv", nargs="*")
    x = ap.parse_args()
    kw = {}
    for kv in x.kv:
        k, v = kv.split("=") if "=" in kv else (kv, "1")
        if k == "gaps": kw[k] = tuple(int(t) for t in v.split(","))
        elif k in ("exp", "wpol", "rpol", "ppol", "qpol", "fpol"): kw[k] = v.replace("+", " ")
        else: kw[k] = int(v)
    if kw.get("posst"): kw["stamps"] = 1
    g = Gen(**kw)
    s = g.build()
    open(x.o, "w").write(s)
    print("chain log:", g.log)
    if g.stamps: json.dump(g.stamp_names, open(x.o + ".stamps.json", "w"))
```
